```python
import torch

def _softmax(x, axis=-1):
    return torch.softmax(x, dim=axis)

def _gelu(x):
    return torch.nn.functional.gelu(x, approximate='tanh')

def _silu(x):
    return torch.nn.functional.silu(x)

def _sigmoid(x):
    return torch.sigmoid(x)

def _layernorm(x, axis=-1, eps=1e-05):
    m = x.mean(dim=axis, keepdim=True)
    v = x.var(dim=axis, keepdim=True, unbiased=False)
    return (x - m) / torch.sqrt(v + eps)

def _scatter_add(tgt, idx, src, axis=0):
    return tgt.clone().index_add_(axis, idx, src)

def _segment_sum(src, seg, n):
    out = torch.zeros((n,) + src.shape[1:], dtype=src.dtype)
    return out.index_add_(0, seg, src)

def _pad(x, pw):
    flat = tuple((v for pair in reversed(pw) for v in pair))
    return torch.nn.functional.pad(x, flat)
kernel_name = 'adaLN_cond__ssm_conv_s4d__glu_gated_geglu__prompt'

def setup_inputs():

    _w = lambda a: (lambda t: t.to(torch.bfloat16) if t.is_floating_point() else t)(torch.as_tensor(a))

    def _A_setup():
        Bsz, L, D, N = (1, 2048, 512, 128)
        return {'u': _w((lambda *s: torch.randn(*s, dtype=torch.bfloat16) * 0.05)(Bsz, L, D)), 'log_A_real': _w((lambda *s: torch.randn(*s, dtype=torch.bfloat16) * 3.2)(D, N) * 0.5), 'A_imag': _w((lambda *s: torch.randn(*s, dtype=torch.bfloat16) * 0.05)(D, N) * 3.14), 'C_real': _w((lambda *s: torch.randn(*s, dtype=torch.bfloat16) * 0.4)(D, N) / N ** 0.5), 'C_imag': _w((lambda *s: torch.randn(*s, dtype=torch.bfloat16) * 0.4)(D, N) / N ** 0.5), 'log_dt': _w((lambda *s: torch.randn(*s, dtype=torch.bfloat16) * 0.05)(D) * 0.5 - 4.0), 'D_skip': _w((lambda *s: torch.randn(*s, dtype=torch.bfloat16) * 0.1)(D))}
    _A_in = _A_setup()

    def _B_setup():
        B, S, Dm, Df = (1, 2048, 512, 1376)
        return {'x': _w((lambda *s: torch.randn(*s, dtype=torch.bfloat16) * 0.05)(B, S, Dm)), 'w_gate': _w((lambda *s: torch.randn(*s, dtype=torch.bfloat16) * 0.8)(Dm, Df) * Dm ** (-0.5)), 'w_up': _w((lambda *s: torch.randn(*s, dtype=torch.bfloat16) * 0.8)(Dm, Df) * Dm ** (-0.5)), 'w_down': _w((lambda *s: torch.randn(*s, dtype=torch.bfloat16) * 0.8)(Df, Dm) * Df ** (-0.5))}
    _B_in = _B_setup()
    return {'A_u': _A_in['u'], 'A_log_A_real': _A_in['log_A_real'], 'A_A_imag': _A_in['A_imag'], 'A_C_real': _A_in['C_real'], 'A_C_imag': _A_in['C_imag'], 'A_log_dt': _A_in['log_dt'], 'A_D_skip': _A_in['D_skip'], 'B_x': _B_in['x'], 'B_w_gate': _B_in['w_gate'], 'B_w_up': _B_in['w_up'], 'B_w_down': _B_in['w_down'], 'c': _w((lambda *s: torch.randn(*s, dtype=torch.bfloat16) * 0.2)(1, 512) * 8.0), 'w_mod': _w((lambda *s: torch.randn(*s, dtype=torch.bfloat16) * 0.2)(512, 6 * 512) * 512 ** (-0.5) * 8.0)}

def reference(A_u, A_log_A_real, A_A_imag, A_C_real, A_C_imag, A_log_dt, A_D_skip, B_x, B_w_gate, B_w_up, B_w_down, c, w_mod):

    def _A_ref(u, log_A_real, A_imag, C_real, C_imag, log_dt, D_skip):
        L = u.shape[1]
        dt = torch.exp(log_dt)
        A = -torch.exp(log_A_real) + 1j * A_imag
        C = (C_real + 1j * C_imag) * dt[:, None]
        pos = (lambda x, dt: x.to(dt))(torch.arange(L), log_dt.dtype)
        P = torch.exp((A * dt[:, None])[:, :, None] * pos[None, None, :])
        K = 2.0 * torch.einsum('dn,dnl->dl', C, P).real
        L2 = 2 * L
        u_t = (lambda x, *d: x.permute(*d))(u, 0, 2, 1)
        Kf = (lambda x, *a, **k: torch.fft.rfft(x.float(), *a, **k))(K, L2)
        Uf = (lambda x, *a, **k: torch.fft.rfft(x.float(), *a, **k))(u_t, L2)
        y = (lambda x, *a, **k: torch.fft.irfft(x, *a, **k).to(torch.bfloat16))(Uf * Kf[None, :, :], L2)[:, :, :L]
        y = (lambda x, *d: x.permute(*d))(y, 0, 2, 1)
        return y + u * D_skip[None, None, :]

    def _B_ref(x, w_gate, w_up, w_down):
        g = torch.einsum('bsd,df->bsf', x, w_gate)
        u = torch.einsum('bsd,df->bsf', x, w_up)
        h = _gelu(g) * u
        return torch.einsum('bsf,fd->bsd', h, w_down)
    x = A_u
    mod = (_silu(c) @ w_mod).reshape(c.shape[0], 6, 1, -1)
    sa, ca, ga, sb, cb, gb = (mod[:, 0].clone(), mod[:, 1].clone(), mod[:, 2].clone(), mod[:, 3].clone(), mod[:, 4].clone(), mod[:, 5].clone())
    h = _layernorm(x, axis=-1) * (1 + ca) + sa
    x = x + ga * _A_ref(h, A_log_A_real, A_A_imag, A_C_real, A_C_imag, A_log_dt, A_D_skip)
    h = _layernorm(x, axis=-1) * (1 + cb) + sb
    x = x + gb * _B_ref(h, B_w_gate, B_w_up, B_w_down)
    return x
```

```python
class Asm:
    def __init__(self):
        self.lines = []
        self.lbl = 0
    def __call__(self, s):
        for l in s.strip('\n').split('\n'):
            self.lines.append('    ' + l.strip() if not l.strip().endswith(':') else l.strip())
    def label(self, base='L'):
        self.lbl += 1
        return '%s_%d' % (base, self.lbl)
    def text(self):
        return '\n'.join(self.lines) + '\n'

def kernel_header(name):
    return '.globl %s\n.p2align 8\n.type %s,@function\n%s:\n' % (name, name, name)

def kernel_desc(name, vgpr, sgpr=102, accum=None, wgy=False):
    if accum is None:
        accum = min(256, (vgpr + 3) // 4 * 4)
    s = '.amdhsa_kernel %s\n' % name
    s += '  .amdhsa_next_free_vgpr %d\n  .amdhsa_next_free_sgpr %d\n  .amdhsa_accum_offset %d\n' % (vgpr, sgpr, accum)
    s += '  .amdhsa_group_segment_fixed_size 0\n  .amdhsa_kernarg_size 128\n  .amdhsa_user_sgpr_count 2\n'
    s += '  .amdhsa_user_sgpr_kernarg_segment_ptr 1\n  .amdhsa_system_sgpr_workgroup_id_x 1\n'
    s += '  .amdhsa_float_denorm_mode_32 3\n'
    s += '.end_amdhsa_kernel\n'
    return s

def build(launches, kernels, header=''):
    out = header
    for n, g, b, lds in launches:
        out += '; @launch kernel=%s grid=(%d,1,1) block=(%d,1,1) lds=%d\n' % (n, g, b, lds)
    out += '.amdgcn_target "amdgcn-amd-amdhsa--gfx950"\n.text\n'
    for n, body, vg, acc in kernels:
        out += kernel_header(n) + body
    out += '.section .rodata,"a"\n'
    for n, body, vg, acc in kernels:
        out += '.p2align 6\n' + kernel_desc(n, vg, 102, acc)
    return out
```

```python
from gen_common import *
from layout import *
LOG2E = 0x3fb8aa3b
INV2PI = 0x3e22f983
def prologue(a):
    a('''
    s_load_dwordx16 s[16:31], s[0:1], 0
    s_load_dwordx16 s[32:47], s[0:1], 64
    v_lshrrev_b32 v1, 6, v0
    v_and_b32 v2, 63, v0
    v_readfirstlane_b32 s3, v1
    s_mov_b32 s6, 0x1000000
    s_mov_b32 s7, 0x20000
    s_mov_b32 s11, 0x20000
    ''')
def wait_args(a):
    a('''
    s_waitcnt lgkmcnt(0)
    s_mov_b32 s4, s46
    s_mov_b32 s5, s47
    ''')
def cmul(a, d, x, y, t):
    a('v_pk_mul_f32 v[%d:%d], v[%d:%d], v[%d:%d] op_sel:[0,0] op_sel_hi:[1,0]' % (t, t+1, x, x+1, y, y+1))
    a('v_pk_fma_f32 v[%d:%d], v[%d:%d], v[%d:%d], v[%d:%d] op_sel:[1,1,0] op_sel_hi:[0,1,1] neg_lo:[1,0,0]' % (d, d+1, x, x+1, y, y+1, t, t+1))

N_KG, N_LN, N_MOD, N_WD = 256, 64, 96, 32
K1_GRID = N_KG + N_LN + N_MOD + N_WD
PITCH = 544
CHB = 64*PITCH
K1_LDS = 2*CHB

def gen_k1():
    a = Asm()
    prologue(a)
    a('''
    s_cmp_ge_u32 s2, %d
    s_cbranch_scc1 K1_other
    ''' % N_KG)
    a('''
    s_lshl_b32 s8, s2, 9
    v_lshl_add_u32 v3, v0, 1, s8
    s_lshr_b32 s9, s3, 1
    s_and_b32 s10, s3, 1                  ; half
    s_lshl_b32 s12, s2, 1
    s_add_u32 s12, s12, s9                ; channel
    s_lshl_b32 s13, s12, 1
    v_mov_b32 v4, s13
    v_mov_b32 v8, 0
    v_mov_b32 v9, 0
    v_mov_b32 v10, 0
    v_mov_b32 v11, 0
    v_mov_b32 v12, 0
    ''')
    wait_args(a)
    a('''
    global_load_short_d16_hi v12, v4, s[26:27]
    global_load_short_d16_hi v8, v3, s[18:19]
    global_load_short_d16_hi v9, v3, s[20:21]
    global_load_short_d16_hi v10, v3, s[22:23]
    global_load_short_d16_hi v11, v3, s[24:25]
    s_mul_i32 s14, s9, %d
    s_lshl_b32 s15, s10, 8
    s_add_u32 s15, s15, s14
    s_mov_b32 m0, s15
    ''' % CHB)
    a('''
    v_and_b32 v5, 15, v2                  ; m / n'
    v_lshrrev_b32 v6, 4, v2               ; g
    v_sub_u32 v7, 15, v5
    v_cvt_f32_u32 v7, v7                  ; beta
    v_lshl_add_u32 v13, v6, 4, s14        ; chbase + 16 g
    s_cmp_eq_u32 s10, 0
    ''')
    inv = {1: 0x3f800000, 2: 0x3f000000, 4: 0x3e800000, 8: 0x3e000000}
    for i, (s0, b0, b1) in enumerate([(1, 0, 35), (2, 16, 38), (4, 25, 41), (4, 30, 44)]):
        a('''
        s_mov_b32 s48, 0x%x
        s_cselect_b32 s48, s48, 0x%x
        s_cselect_b32 s49, %d, %d
        v_mul_f32 v14, s48, v7
        v_rndne_f32 v14, v14
        v_cvt_u32_f32 v14, v14
        v_add_u32 v14, s49, v14
        v_mul_u32_u24 v14, %d, v14
        v_add_u32 v%d, v14, v13
        ''' % (inv[s0], inv[8], b0, b1, PITCH, 20+i))
    a('''
    v_sub_u32 v14, 62, v5
    v_mul_u32_u24 v14, %d, v14
    v_add_u32 v24, v14, v13
    v_lshlrev_b32 v25, 5, v5
    v_lshl_add_u32 v25, v6, 3, v25
    s_mul_i32 s50, s12, %d
    s_add_u32 s51, s50, %d               ; pad word address
    s_lshl_b32 s52, s10, 11
    s_sub_u32 s50, s50, s52
    s_add_u32 s50, s50, %d
    v_mov_b32 v26, 0x3f80                 ; z^0 = (1, 0)
    ds_write_addtid_b32 v26 offset:0
    v_mov_b32 v27, 0
    v_lshlrev_b32 v28, 2, v5
    buffer_store_dword v27, v28, s[4:7], s51 offen
    s_waitcnt vmcnt(4)
    v_mul_f32 v12, 0x%x, v12
    v_mul_f32 v8, 0x%x, v8
    v_exp_f32 v12, v12
    v_exp_f32 v8, v8
    s_nop 0
    v_cvt_pk_bf16_f32 v14, v12, v8
    v_lshlrev_b32 v12, 16, v14            ; dt
    v_and_b32 v8, 0xffff0000, v14         ; exp(logA)
    v_mul_f32 v8, v8, v12
    v_mul_f32 v8, 0x%x, v8                ; lr = -Ar dt log2e
    s_waitcnt vmcnt(3)
    v_mul_f32 v9, v9, v12
    v_mul_f32 v9, 0x%x, v9                ; th (revolutions/step)
    v_add_f32 v12, v12, v12
    ''' % (PITCH, KX_PITCH, KX_OFF + 4096, KX_OFF + 2048, LOG2E, LOG2E, LOG2E | 0x80000000, INV2PI))
    Z = lambda m: 32 + 2*m
    Q = lambda k: 68 + 2*k
    def direct(d, p, t):
        a('''
        v_mul_f32 v%d, 0x%x, v8
        v_mul_f32 v%d, 0x%x, v9
        v_exp_f32 v%d, v%d
        v_fract_f32 v%d, v%d
        v_cos_f32 v%d, v%d
        v_sin_f32 v%d, v%d
        ''' % (t, p, t+1, p, t, t, t+1, t+1, d, t+1, d+1, t+1))
    direct(Z(1), 0x3f800000, 88)
    direct(Z(16), 0x41800000, 90)
    direct(Q(1), 0x43800000, 92)
    for d, t in ((Z(1), 88), (Z(16), 90), (Q(1), 92)):
        a('v_pk_mul_f32 v[%d:%d], v[%d:%d], v[%d:%d] op_sel_hi:[1,0]' % (d, d+1, d, d+1, t, t+1))
    a('s_waitcnt vmcnt(1)')
    a('v_pk_mul_f32 v[84:85], v[10:11], v[12:13] op_sel_hi:[1,0]')
    pk = [0]
    def emit(row, r, neg=False):
        t = 96 + pk[0] % 8; pk[0] += 1
        a('v_cvt_pk_bf16_f32 v%d, v%d, %sv%d' % (t, r, '-' if neg else '', r+1))
        a('ds_write_addtid_b32 v%d offset:%d' % (t, row*PITCH))
    emit(1, Z(1))
    emit(47, 84, True)
    emit(16, Q(1))
    ops = []
    zs = []
    for m in range(2, 16):
        h = m//2
        zs.append((Z(m), Z(h), Z(m-h), m, False))
    cs = []
    for n in range(1, 16):
        cs.append((84 + 2*(n % 2), 84 + 2*((n-1) % 2), Z(16), 47+n, True))
    qs = []
    rowbase = {1: 16, 2: 25, 3: 30, 4: 35, 5: 38, 6: 41, 7: 44}
    for k in range(2, 8):
        h = k//2
        qs.append((Q(k), Q(h), Q(k-h), rowbase[k], False))
    seq = []
    for i in range(15):
        if i < len(zs): seq.append(zs[i])
        seq.append(cs[i])
        if i < len(qs): seq.append(qs[i])
    tt = 0
    for d, x, y, row, neg in seq:
        cmul(a, d, x, y, 88 + 2*(tt % 2)); tt += 1
        emit(row, d, neg)
    for k in range(1, 8):
        step = 2 if k == 1 else (4 if k < 4 else 8)
        for r in range(1, 16//step + 1):
            d = 92 + 2*(tt % 2)
            cmul(a, d, Q(k), Z(step*r), 88 + 2*(tt % 2)); tt += 1
            emit(rowbase[k] + r, d)
    a('s_waitcnt lgkmcnt(0)\ns_barrier')
    for s in range(8):
        a('ds_read_b128 v[%d:%d], v24 offset:%d' % (32+4*s, 35+4*s, 64*s))
        a('ds_read_b128 v[%d:%d], v20 offset:%d' % (64+4*s, 67+4*s, 64*s))
    for i in range(4):
        cur = 64 + 32*(i % 2); nxt = 64 + 32*((i+1) % 2)
        for s in range(8):
            if i == 0:
                a('s_waitcnt lgkmcnt(%d)' % (14 - 2*s + s))
            else:
                a('s_waitcnt lgkmcnt(%d)' % (7 if i < 3 else 7 - s))
            c = 'v[%d:%d]' % (128+4*i, 131+4*i)
            a('v_mfma_f32_16x16x32_bf16 %s, v[%d:%d], v[%d:%d], %s' % (c, cur+4*s, cur+4*s+3, 32+4*s, 35+4*s, c if s else '0'))
            if i < 3:
                a('ds_read_b128 v[%d:%d], v%d offset:%d' % (nxt+4*s, nxt+4*s+3, 21+i, 64*s))
        if i > 0:
            j = i-1
            a('''
            v_cvt_pk_bf16_f32 v%d, v%d, v%d
            v_cvt_pk_bf16_f32 v%d, v%d, v%d
            buffer_store_dwordx2 v[%d:%d], v25, s[4:7], s50 offen offset:%d
            ''' % (144+2*j, 128+4*j, 129+4*j, 145+2*j, 130+4*j, 131+4*j, 144+2*j, 145+2*j, 512*(3-j)))
    a('''
    s_nop 7
    v_cvt_pk_bf16_f32 v150, v140, v141
    v_cvt_pk_bf16_f32 v151, v142, v143
    buffer_store_dwordx2 v[150:151], v25, s[4:7], s50 offen
    s_endpgm
    ''')
    a('''
K1_other:
    s_mov_b32 s60, 0x05040100
    s_mov_b32 s61, 0x07060302
    s_cmp_ge_u32 s2, %d
    s_cbranch_scc1 K1_notln
    ''' % (N_KG + N_LN))
    a('''
    s_sub_u32 s8, s2, %d
    s_lshl_b32 s8, s8, 2
    s_add_u32 s8, s8, s3                   ; lb
    s_lshl_b32 s9, s8, 13                  ; lb*8192 : byte offset both in x and XT
    v_lshl_add_u32 v3, v2, 4, s9
    v_add_u32 v4, 0x1000, v3
    v_mov_b32 v5, 0x3f803f80
    ''' % N_KG)
    wait_args(a)
    IN = lambda r, c: 16 + 4*r + c
    for r in range(8):
        a('global_load_dwordx4 v[%d:%d], v%d, s[16:17] offset:%d' % (IN(r, 0), IN(r, 3), 3 + r//4, 1024*(r % 4)))
    S = lambda r: 48 + r
    Qq = lambda r: 56 + r
    OUT = lambda j, p: 64 + 4*j + p
    for r in range(8):
        a('s_waitcnt vmcnt(%d)' % (7-r))
        for c in range(4):
            a('v_dot2_f32_bf16 v%d, v%d, v5, %s' % (S(r), IN(r, c), 'v%d' % S(r) if c else '0'))
            a('v_dot2_f32_bf16 v%d, v%d, v%d, %s' % (Qq(r), IN(r, c), IN(r, c), 'v%d' % Qq(r) if c else '0'))
    for j in range(8):
        for p in range(4):
            a('v_perm_b32 v%d, v%d, v%d, s%d' % (OUT(j, p), IN(2*p+1, j//2), IN(2*p, j//2), 60 + j % 2))
        a('buffer_store_dwordx4 v[%d:%d], v%d, s[4:7], 0 offen offset:%d' % (OUT(j, 0), OUT(j, 3), 3 + j//4, 1024*(j % 4)))
    for r in range(8):
        a('v_permlane32_swap_b32 v%d, v%d' % (S(r), Qq(r)))
    for r in range(8):
        a('v_add_f32 v%d, v%d, v%d' % (S(r), S(r), Qq(r)))
    for i in range(4):
        a('v_permlane16_swap_b32 v%d, v%d' % (S(i), S(i+4)))
    for i in range(4):
        a('v_add_f32 v%d, v%d, v%d' % (S(i), S(i), S(i+4)))
    for sh in (8, 4, 2, 1):
        for i in range(4):
            a('v_add_f32_dpp v%d, v%d, v%d row_ror:%d row_mask:0xf bank_mask:0xf' % (S(i), S(i), S(i), sh))
    for i in range(4):
        a('v_mov_b32 v%d, v%d' % (Qq(i), S(i)))
    a('s_nop 0')
    for i in range(4):
        a('v_permlane32_swap_b32 v%d, v%d' % (S(i), Qq(i)))
    a('v_mov_b32 v6, 0x3727c5ac')
    for i in range(4):
        a('v_mul_f32 v%d, 0x3b000000, v%d' % (S(i), S(i)))
    for i in range(4):
        a('v_fmamk_f32 v%d, v%d, 0x3b000000, v6' % (Qq(i), Qq(i)))
    for i in range(4):
        a('v_fma_f32 v%d, -v%d, v%d, v%d' % (Qq(i), S(i), S(i), Qq(i)))
    RR = lambda i: 8 + 4*(i//2) + i % 2
    for i in range(4):
        a('v_rsq_f32 v%d, v%d' % (RR(i), Qq(i)))
    a('s_nop 0')
    for i in range(4):
        a('v_mul_f32 v%d, -v%d, v%d' % (RR(i)+2, S(i), RR(i)))
    a('''
    v_lshlrev_b32 v7, 9, v2                ; lane 0 -> 0, lane 16 -> 8192
    s_lshl_b32 s9, s8, 4
    s_add_u32 s9, s9, %d
    s_add_u32 s10, s9, 4096
    s_mov_b64 exec, 0x10001
    buffer_store_dwordx4 v[8:11], v7, s[4:7], s9 offen
    buffer_store_dwordx4 v[12:15], v7, s[4:7], s10 offen
    s_endpgm
    ''' % ST1_OFF)
    a('''
K1_notln:
    s_cmp_ge_u32 s2, %d
    s_cbranch_scc1 K1_wd
    ''' % (N_KG + N_LN + N_MOD))
    a('''
    s_sub_u32 s8, s2, %d                   ; column block
    v_and_b32 v3, 3, v0                    ; cq
    v_lshrrev_b32 v4, 2, v0                ; rg
    v_lshlrev_b32 v5, 4, v4                ; c offset
    v_mul_u32_u24 v6, %d, v4
    v_lshl_add_u32 v6, v3, 4, v6
    s_lshl_b32 s9, s8, 6
    ''' % (N_KG + N_LN, 8*6144))
    wait_args(a)
    a('''
    s_mov_b32 s12, s40
    s_mov_b32 s13, s41
    s_mov_b32 s14, %d
    s_mov_b32 s15, 0x20000
    global_load_dwordx4 v[8:11], v5, s[38:39]
    ''' % (512*6144))
    for r in range(8):
        a('buffer_load_dwordx4 v[%d:%d], v6, s[12:15], s9 offen' % (IN(r, 0), IN(r, 3)))
        if r < 7: a('s_add_u32 s9, s9, 6144')
    a('s_waitcnt vmcnt(8)')
    for i in range(4):
        a('v_lshlrev_b32 v%d, 16, v%d\nv_and_b32 v%d, 0xffff0000, v%d' % (48+2*i, 8+i, 49+2*i, 8+i))
    for i in range(8): a('v_mul_f32 v%d, 0x%x, v%d' % (56+i, LOG2E | 0x80000000, 48+i))
    for i in range(8): a('v_exp_f32 v%d, v%d' % (56+i, 56+i))
    for i in range(8): a('v_add_f32 v%d, 1.0, v%d' % (56+i, 56+i))
    for i in range(8): a('v_rcp_f32 v%d, v%d' % (56+i, 56+i))
    for i in range(8): a('v_mul_f32 v%d, v%d, v%d' % (48+i, 48+i, 56+i))
    for p in range(4): a('v_cvt_pk_bf16_f32 v%d, v%d, v%d' % (8+p, 48+2*p, 49+2*p))
    for p in range(4):
        a('s_waitcnt vmcnt(%d)' % (6-2*p))
        for j in range(8):
            a('v_perm_b32 v%d, v%d, v%d, s%d' % (64+j, IN(2*p+1, j//2), IN(2*p, j//2), 60 + j % 2))
        for j in range(8):
            a('v_dot2_f32_bf16 v%d, v%d, v%d, %s' % (48+j, 64+j, 8+p, 'v%d' % (48+j) if p else '0'))
    a('s_nop 2')
    for j in range(4): a('v_permlane32_swap_b32 v%d, v%d' % (48+j, 52+j))
    for j in range(4): a('v_add_f32 v%d, v%d, v%d' % (48+j, 48+j, 52+j))
    a('s_nop 0')
    for j in range(2): a('v_permlane16_swap_b32 v%d, v%d' % (48+j, 50+j))
    for j in range(2): a('v_add_f32 v%d, v%d, v%d' % (48+j, 48+j, 50+j))
    a('s_nop 0')
    for sh in (8, 4):
        for j in range(2): a('v_add_f32_dpp v%d, v%d, v%d row_ror:%d row_mask:0xf bank_mask:0xf' % (48+j, 48+j, 48+j, sh))
        a('s_nop 0')
    a('''
    v_lshrrev_b32 v4, 4, v2
    v_lshlrev_b32 v4, 3, v4
    v_lshl_add_u32 v4, v3, 5, v4
    s_lshl_b32 s9, s3, 7
    v_add_u32 v4, s9, v4
    ds_write_b64 v4, v[48:49]
    s_waitcnt lgkmcnt(0)
    s_barrier
    s_cmp_lg_u32 s3, 0
    s_cbranch_scc1 K1_end
    v_and_b32 v4, 31, v2
    v_lshlrev_b32 v4, 2, v4
    ds_read2_b32 v[8:9], v4 offset0:0 offset1:32
    ds_read2_b32 v[10:11], v4 offset0:64 offset1:96
    s_lshr_b32 s9, s8, 4
    s_cmp_eq_u32 s9, 1
    s_cselect_b32 s10, 1.0, 0
    s_cmp_eq_u32 s9, 4
    s_cselect_b32 s10, 1.0, s10
    s_lshl_b32 s9, s8, 7
    s_add_u32 s9, s9, %d
    s_waitcnt lgkmcnt(0)
    v_add_f32 v8, v8, v9
    v_add_f32 v10, v10, v11
    v_add_f32 v8, v8, v10
    v_cvt_pk_bf16_f32 v8, v8, v8
    v_and_b32 v8, 0xffff0000, v8
    v_add_f32 v8, s10, v8
    v_cvt_pk_bf16_f32 v8, v8, v8
    v_and_b32 v8, 0xffff0000, v8
    buffer_store_dword v8, v4, s[4:7], s9 offen
K1_end:
    s_endpgm
    ''' % MOD_OFF)
    a('''
K1_wd:
    s_cmp_ge_u32 s2, %d
    s_cbranch_scc1 K1_end
    s_sub_u32 s8, s2, %d
    s_lshl_b32 s8, s8, 2
    s_add_u32 s8, s8, s3
    s_and_b32 s9, s8, 7                    ; Bd
    s_lshr_b32 s10, s8, 3                  ; G
    v_and_b32 v3, 15, v2
    v_lshrrev_b32 v4, 4, v2                ; g
    v_lshlrev_b32 v3, 3, v3
    v_lshl_add_u32 v5, v4, 14, v3          ; voffA
    v_lshl_add_u32 v6, v4, 12, v3          ; voffB
    v_lshl_add_u32 v7, v4, 11, v3          ; voffC
    v_mov_b32 v8, 0x40000000
    v_cmp_eq_u32 vcc, 3, v4
    s_mul_i32 s48, s10, %d
    s_lshl_b32 s49, s9, 7
    v_cndmask_b32 v7, v7, v8, vcc
    s_add_u32 s48, s48, s49                ; base soffset
    s_add_u32 s49, s48, 4096
    s_add_u32 s50, s48, 8192
    s_add_u32 s51, s48, 12288
    s_add_u32 s52, s48, 65536
    s_add_u32 s53, s48, %d
    s_lshl_b32 s54, s9, 4
    s_add_u32 s54, s54, s10
    s_mul_i32 s54, s54, 11264
    s_add_u32 s54, s54, %d
    s_add_u32 s55, s54, 4096
    s_add_u32 s56, s54, 8192
    v_lshlrev_b32 v9, 4, v2
    v_mul_u32_u24 v10, 12, v2
    ''' % (K1_GRID, N_KG + N_LN + N_MOD, 86*1024, 80*1024, WD_OFF))
    wait_args(a)
    a('''
    s_mov_b32 s12, s36
    s_mov_b32 s13, s37
    s_mov_b32 s14, %d
    s_mov_b32 s15, 0x20000
    ''' % (1376*1024))
    Lr = lambda s, r: 16 + 4*s + 2*r
    order = [s for ch in CHUNK for s in ch]
    for s in order:
        for r in range(2):
            if s < 8:
                a('buffer_load_dwordx2 v[%d:%d], v5, s[12:15], s%d offen offset:%d' % (Lr(s, r), Lr(s, r)+1, 48 + 2*r + s//4, 1024*(s % 4)))
            elif s < 10:
                a('buffer_load_dwordx2 v[%d:%d], v6, s[12:15], s52 offen offset:%d' % (Lr(s, r), Lr(s, r)+1, 1024*(2*r + s - 8)))
            else:
                a('buffer_load_dwordx2 v[%d:%d], v7, s[12:15], s53 offen offset:%d' % (Lr(s, r), Lr(s, r)+1, 1024*r))
    done = 0; nst = 0
    for u, ch in enumerate(CHUNK):
        done += 2*len(ch)
        a('s_waitcnt vmcnt(%d)' % (22 - done + nst))
        for c in range(4):
            o = 64 + 16*u + 4*c
            for j, s in enumerate(ch):
                a('v_perm_b32 v%d, v%d, v%d, s%d' % (o+j, Lr(s, 1) + c//2, Lr(s, 0) + c//2, 60 + c % 2))
            if u < 2:
                a('buffer_store_dwordx4 v[%d:%d], v9, s[4:7], s%d offen offset:%d' % (o, o+3, 54+u, 1024*c))
            else:
                a('buffer_store_dwordx3 v[%d:%d], v10, s[4:7], s56 offen offset:%d' % (o, o+2, 768*c))
            nst += 1
    a('s_endpgm')
    return a.text()
if __name__ == '__main__':
    open('k1.s', 'w').write(build([('k1_kernel', K1_GRID, 256, K1_LDS)], [('k1_kernel', gen_k1(), 152, 152)]))
```

```python
from gen_common import *
from layout import *
from k1 import prologue, wait_args

class LdsQ:
    def __init__(self, a, cnt='lgkmcnt', maxn=15):
        self.a = a; self.issued = 0; self.pos = {}; self.done = 0; self.cnt = cnt; self.maxn = maxn
    def issue(self, text, tag=None):
        self.a(text); self.issued += 1
        if tag is not None: self.pos[tag] = self.issued
    def need(self, *tags):
        p = max(self.pos[t] for t in tags)
        if p <= self.done: return
        n = min(self.issued - p, self.maxn)
        self.a('s_waitcnt %s(%d)' % (self.cnt, n))
        self.done = self.issued - n
    def drain(self):
        self.a('s_waitcnt %s(0)' % self.cnt); self.done = self.issued

N_CONV, N_PREP = 256, 64
K2_GRID = N_CONV + N_PREP
HB = 0; HBP = 4608
KE = 9216
EX = KE + 4*4160
K2_LDS = EX + 16384

def gen_k2():
    a = Asm()
    prologue(a)
    a('''
    s_cmp_ge_u32 s2, %d
    s_cbranch_scc1 K2_prep
    s_and_b32 s8, s2, 7                   ; m8
    s_lshr_b32 s9, s2, 3
    s_and_b32 s10, s9, 7                  ; j
    s_lshr_b32 s9, s9, 3                  ; i2
    s_lshl_b32 s12, s8, 2
    s_add_u32 s12, s12, s9                ; 4*m8 + i2
    s_lshl_b32 s13, s12, 4
    s_add_u32 s13, s13, s10               ; dA
    s_lshl_b32 s14, s12, 5
    s_lshl_b32 s15, s10, 10
    s_add_u32 s14, s14, s15               ; XT offset within lb
    v_lshlrev_b32 v3, 13, v0
    v_lshlrev_b32 v4, 4, v0
    v_lshlrev_b32 v5, 4, v2               ; lane*16
    s_lshr_b32 s48, s3, 1                 ; k (channel sel of this wave)
    s_and_b32 s49, s3, 1                  ; hh / copy
    s_lshl_b32 s50, s48, 3
    s_add_u32 s50, s50, s13               ; this wave's channel d
    s_mul_i32 s51, s50, %d
    s_lshl_b32 s52, s49, 1
    s_add_u32 s51, s51, s52
    s_add_u32 s51, s51, %d                ; K source soffset
    s_mul_i32 s52, s3, 4160
    s_add_u32 s52, s52, %d
    s_mov_b32 m0, s52
    s_mov_b32 s53, %d
    s_add_u32 s54, s53, 4096
    s_add_u32 s55, s53, 8192
    s_add_u32 s56, s53, 12288
    s_lshl_b32 s57, s13, 2
    s_add_u32 s57, s57, %d
    s_lshr_b32 s58, s50, 1
    s_lshl_b32 s58, s58, 2
    ''' % (N_CONV, KX_PITCH, KX_OFF, KE, ST1_OFF, MOD_OFF))
    wait_args(a)
    a('''
    buffer_load_dwordx4 v[16:19], v3, s[4:7], s14 offen
    buffer_load_dwordx4 v[20:23], v3, s[4:7], s14 offen offset:16
    buffer_load_dwordx4 v[24:27], v4, s[4:7], s53 offen
    buffer_load_dwordx4 v[28:31], v4, s[4:7], s54 offen
    buffer_load_dwordx4 v[32:35], v4, s[4:7], s55 offen
    buffer_load_dwordx4 v[36:39], v4, s[4:7], s56 offen
    s_add_u32 s62, s46, s57
    s_addc_u32 s63, s47, 0
    s_add_u32 s64, s28, s58
    s_addc_u32 s65, s29, 0
    s_load_dword s66, s[62:63], 0          ; sa A
    s_load_dword s67, s[62:63], 32         ; sa B
    s_load_dword s68, s[62:63], 2048       ; ca1 A
    s_load_dword s69, s[62:63], 2080
    s_load_dword s70, s[62:63], 4096       ; ga A
    s_load_dword s71, s[62:63], 4128
    s_load_dword s72, s[64:65], 0          ; D pair
    buffer_load_dwordx4 v5, s[4:7], s51 offen lds
    buffer_load_dwordx4 v5, s[4:7], s51 offen offset:1024 lds
    buffer_load_dwordx4 v5, s[4:7], s51 offen offset:2048 lds
    buffer_load_dwordx4 v5, s[4:7], s51 offen offset:3072 lds
    ''')
    a('''
    v_and_b32 v6, 15, v2                   ; n / b
    v_lshrrev_b32 v7, 4, v2                ; g
    v_lshrrev_b32 v8, 1, v7
    v_lshl_add_u32 v8, v6, 1, v8
    v_lshlrev_b32 v8, 13, v8
    v_and_b32 v9, 1, v7
    v_lshl_add_u32 v8, v9, 3, v8
    s_lshl_b32 s59, s49, 20
    s_add_u32 s59, s59, s14
    s_lshl_b32 s60, s48, 4
    s_add_u32 s59, s59, s60
    buffer_load_dwordx2 v[224:225], v8, s[4:7], s59 offen
    s_add_u32 s59, s59, 0x40000
    buffer_load_dwordx2 v[226:227], v8, s[4:7], s59 offen
    s_add_u32 s59, s59, 0x40000
    buffer_load_dwordx2 v[228:229], v8, s[4:7], s59 offen
    s_add_u32 s59, s59, 0x40000
    buffer_load_dwordx2 v[230:231], v8, s[4:7], s59 offen
    ''')
    a('''
    v_mov_b32 v10, 0
    s_mul_i32 s60, s48, %d
    s_lshl_b32 s61, s49, 8
    s_add_u32 s61, s61, s60
    v_lshl_add_u32 v11, v2, 2, s61
    ds_write_b32 v11, v10 offset:%d
    v_lshl_add_u32 v11, v6, 2, s52
    ds_write_b32 v11, v10 offset:4096
    ; B address: HB[k] + 480 + 32n + 16g - 64*(4hh+3)
    v_lshlrev_b32 v12, 5, v6
    v_lshl_add_u32 v12, v7, 4, v12
    s_lshl_b32 s61, s49, 8
    s_sub_u32 s61, s60, s61
    s_add_u32 s61, s61, %d
    v_add_u32 v12, s61, v12
    ; h D-layout address: HB[k] + 512 + 2*(1024hh + 16n + 4g)
    v_lshlrev_b32 v13, 5, v6
    v_lshl_add_u32 v13, v7, 3, v13         ; also output voffset
    s_lshl_b32 s61, s49, 11
    s_add_u32 s61, s61, s60
    v_add_u32 v14, s61, v13
    ; A address: x0 = 2031 - b + 8g ; par = x0&1 ; KE + (2k+par)*4160 + 2*(x0-par) - 512q - 64r
    v_lshlrev_b32 v15, 3, v7
    v_sub_u32 v15, v15, v6
    v_add_u32 v15, 2031, v15
    v_and_b32 v9, 1, v15
    v_mul_u32_u24 v9, 4158, v9
    v_lshl_add_u32 v15, v15, 1, v9
    s_mul_i32 s61, s48, 8320
    s_lshl_b32 s73, s49, 8
    s_sub_u32 s61, s61, s73
    s_add_u32 s61, s61, %d
    v_add_u32 v40, s61, v15                ; q pair 0 (q=0,1): minus 512 minus 192
    v_subrev_u32 v41, 1024, v40
    v_subrev_u32 v42, 2048, v40
    v_subrev_u32 v43, 3072, v40
    v_add_u32 v44, %d, v4                  ; h write address
    s_lshl_b32 s74, s50, 12
    s_lshl_b32 s75, s49, 11
    s_add_u32 s74, s74, s75
    s_add_u32 s74, s74, %d                 ; output soffset
    s_lshl_b32 s75, s3, 12
    s_add_u32 s75, s75, %d
    v_add_u32 v45, s75, v5                 ; exchange write addr
    v_xor_b32 v46, 4096, v45               ; partner region (EX is 8192-aligned? handled below)
    s_waitcnt lgkmcnt(0)
    v_mov_b32 v48, s68
    v_mov_b32 v49, s66
    v_mov_b32 v50, s69
    v_mov_b32 v51, s67
    s_cmp_eq_u32 s48, 0
    s_cselect_b32 s70, s70, s71            ; ga of this wave's channel
    s_and_b32 s73, s50, 1
    s_cmp_eq_u32 s73, 0
    s_cselect_b32 s73, 16, 0
    s_lshl_b32 s72, s72, s73
    s_and_b32 s72, s72, 0xffff0000
    v_mov_b32 v47, s72
    v_mul_f32 v47, s70, v47                ; ga*D
    ''' % (HBP, HB, HB + 480 - 192, KE - 512 - 192, HB + 512, X1T_OFF, 0))
    for q in range(4):
        a('s_waitcnt vmcnt(%d)' % (11 - q))
        for k in range(2):
            x = 16 + 4*k + q; t = 52 + 2*k
            a('''
            v_lshlrev_b32 v%d, 16, v%d
            v_and_b32 v%d, 0xffff0000, v%d
            v_pk_fma_f32 v[%d:%d], v[%d:%d], v[%d:%d], v[%d:%d]
            v_pk_fma_f32 v[%d:%d], v[%d:%d], v[%d:%d], v[%d:%d] op_sel:[0,0,1] op_sel_hi:[1,0,1]
            v_cvt_pk_bf16_f32 v%d, v%d, v%d
            ''' % (t, x, t+1, x, t, t+1, t, t+1, 24+4*q, 25+4*q, 26+4*q, 27+4*q,
                   t, t+1, t, t+1, 48+2*k, 49+2*k, 48+2*k, 49+2*k, 56+4*k+q, t, t+1))
    a('''
    ds_write_b128 v44, v[56:59]
    ds_write_b128 v44, v[60:63] offset:%d
    s_waitcnt vmcnt(4) lgkmcnt(0)
    s_barrier
    ''' % HBP)
    q_ = LdsQ(a)
    ACC = lambda t: 64 + 4*t
    AF = lambda st, q: 96 + 32*st + 4*q
    BF = lambda st, d: 160 + 32*st + 4*d
    def reads(it):
        st = it % 2; L = []
        def ra(q):
            o = (1 - (q & 1))*128 + (3 - it)*16
            L.append(('ds_read2_b32 v[%d:%d], v%d offset0:%d offset1:%d' % (AF(st, q), AF(st, q)+1, 40 + q//2, o, o+1), None))
            L.append(('ds_read2_b32 v[%d:%d], v%d offset0:%d offset1:%d' % (AF(st, q)+2, AF(st, q)+3, 40 + q//2, o+2, o+3), ('A', it, q)))
        ra(0)
        for d in range(8):
            L.append(('ds_read_b128 v[%d:%d], v12 offset:%d' % (BF(st, d), BF(st, d)+3, 512*d + 64*(3-it)), ('B', it, d)))
        for q in range(1, 8): ra(q)
        return L
    first = reads(0)
    for t, tag in first[:12]: q_.issue(t, tag)
    pend = first[12:]
    hreads = [('ds_read_b64 v[%d:%d], v14 offset:%d' % (232+2*i, 233+2*i, HB + 512 + 512*i), ('H', i)) for i in range(4)]
    shadow = []
    for i in range(4):
        for hlf in range(2):
            x = 224 + 2*i + hlf; h = 232 + 2*i + hlf; b0 = 16 + 4*i + 2*hlf
            shadow += [('v_lshlrev_b32 v%d, 16, v%d' % (b0, x), None), ('v_and_b32 v%d, 0xffff0000, v%d' % (b0+1, x), None),
                       ('v_lshlrev_b32 v52, 16, v%d' % h, ('H', i)), ('v_and_b32 v53, 0xffff0000, v%d' % h, None),
                       ('v_fmac_f32 v%d, v47, v52' % b0, None), ('v_fmac_f32 v%d, v47, v53' % (b0+1), None)]
    for it in range(4):
        st = it % 2
        if it < 3: pend = pend + reads(it+1)
        if it == 2: pend = pend + hreads
        if it == 3: a('s_waitcnt vmcnt(0)')
        for q in range(8):
            for t in range(q, 8):
                q_.need(('A', it, q), ('B', it, t-q))
                c = 'v[%d:%d]' % (ACC(t), ACC(t)+3)
                a('v_mfma_f32_16x16x32_bf16 %s, v[%d:%d], v[%d:%d], %s' % (c, AF(st, q), AF(st, q)+3, BF(st, t-q), BF(st, t-q)+3, c if (it or q) else '0'))
                if pend:
                    tx, tag = pend.pop(0); q_.issue(tx, tag)
                if it == 3:
                    for _ in range(2):
                        if shadow:
                            tx, tag = shadow.pop(0)
                            if tag: q_.need(tag)
                            a(tx)
        assert not pend or it < 3, pend
    assert not shadow
    a('''
    s_cmp_eq_u32 s49, 0
    s_cbranch_scc0 K2_hi
    s_nop 6
    ''')
    def exch(send, keep):
        for i in range(4):
            a('ds_write_b128 v45, v[%d:%d] offset:%d' % (ACC(send+i), ACC(send+i)+3, EX + 1024*i))
        for i in range(16):
            a('v_fmac_f32 v%d, s70, v%d' % (16+i, ACC(keep)+i))
    exch(4, 0)
    a('s_branch K2_join\nK2_hi:')
    exch(0, 4)
    a('K2_join:\ns_waitcnt lgkmcnt(0)\ns_barrier')
    for i in range(4):
        a('ds_read_b128 v[%d:%d], v46 offset:%d' % (96+4*i, 99+4*i, EX + 1024*i))
    for i in range(4):
        a('s_waitcnt lgkmcnt(%d)' % (3-i))
        for e in range(4):
            a('v_fmac_f32 v%d, s70, v%d' % (16+4*i+e, 96+4*i+e))
        a('''
        v_cvt_pk_bf16_f32 v%d, v%d, v%d
        v_cvt_pk_bf16_f32 v%d, v%d, v%d
        buffer_store_dwordx2 v[%d:%d], v13, s[4:7], s74 offen offset:%d
        ''' % (32+2*i, 16+4*i, 17+4*i, 33+2*i, 18+4*i, 19+4*i, 32+2*i, 33+2*i, 512*i))
    a('K2_end:\ns_endpgm')
    a('''
K2_prep:
    s_cmp_ge_u32 s2, %d
    s_cbranch_scc1 K2_end
    s_sub_u32 s8, s2, %d
    s_and_b32 s9, s8, 15                   ; G
    s_lshr_b32 s10, s8, 4
    s_lshr_b32 s48, s10, 1                 ; half
    s_and_b32 s10, s10, 1                  ; mat
    s_lshl_b32 s49, s48, 2
    s_add_u32 s49, s49, s3                 ; kp
    v_lshrrev_b32 v3, 3, v2                ; pl
    v_and_b32 v4, 7, v2                    ; cg
    v_mul_u32_u24 v5, 22016, v3
    v_lshl_add_u32 v6, v4, 2, v5           ; voffB (+128)
    v_lshl_add_u32 v7, v4, 1, v5           ; voffC (+160)
    v_lshl_add_u32 v5, v4, 4, v5           ; voffA
    v_mov_b32 v8, 0x40000000
    v_cmp_lt_u32 vcc, 5, v4
    v_cmp_eq_u32 s[76:77], 6, v4
    s_mul_i32 s50, s49, %d
    s_mul_i32 s51, s9, 172
    v_cndmask_b32 v7, v7, v8, vcc
    s_add_u32 s50, s50, s51
    v_lshlrev_b32 v9, 5, v3
    s_lshl_b32 s51, s49, 8
    s_add_u32 s51, s51, %d                 ; MOD sb offset
    s_cmp_eq_u32 s10, 0
    s_cselect_b64 s[76:77], s[76:77], 0
    ''' % (K2_GRID, N_CONV, 64*2752, MOD_OFF + 3*2048))
    for e in range(8): a('v_mov_b32 v%d, 0' % (56+e))
    wait_args(a)
    a('''
    s_cselect_b32 s12, s32, s34
    s_cselect_b32 s13, s33, s35
    s_mov_b32 s14, %d
    s_mov_b32 s15, 0x20000
    buffer_load_dwordx4 v[72:75], v9, s[4:7], s51 offen
    buffer_load_dwordx4 v[76:79], v9, s[4:7], s51 offen offset:16
    buffer_load_dwordx4 v[64:67], v9, s[4:7], s51 offen offset:2048
    buffer_load_dwordx4 v[68:71], v9, s[4:7], s51 offen offset:2064
    ''' % (512*2752))
    for e in range(8):
        a('''
        buffer_load_dwordx4 v[%d:%d], v5, s[12:15], s50 offen
        buffer_load_dword v%d, v6, s[12:15], s50 offen offset:128
        buffer_load_short_d16_hi v%d, v7, s[12:15], s50 offen offset:160
        ''' % (16+4*e, 19+4*e, 48+e, 56+e))
        if e < 7: a('s_add_u32 s50, s50, 2752')
    a('''
    v_mov_b32 v10, 0x3f803f80
    v_lshrrev_b32 v11, 5, v2
    v_mul_u32_u24 v11, 11264, v11
    v_and_b32 v12, 31, v2
    v_lshl_add_u32 v11, v12, 4, v11        ; WP voffset
    s_lshl_b32 s52, s9, 4
    s_lshl_b32 s53, s49, 1
    s_add_u32 s52, s52, s53
    s_mul_i32 s52, s52, 11264
    s_lshl_b32 s53, s10, 9
    s_add_u32 s52, s52, s53
    s_add_u32 s52, s52, %d
    s_add_u32 s53, s52, 4096
    s_add_u32 s54, s52, 8192
    v_mov_b32 v135, 0
    v_mov_b32 v147, 0
    ''' % WP_OFF)
    OUT = lambda i, p: 80 + 4*i + p
    BI = lambda i: 124 + i
    CS = lambda i: 136 + i
    SX = lambda r, i: 152 + 12*r + i
    for p in range(4):
        for r in range(2):
            e = 2*p + r
            a('s_waitcnt vmcnt(%d)' % (21 - 3*e))
            sel = 'op_sel:[0,%d] op_sel_hi:[1,%d]' % (r, r)
            sel3 = 'op_sel:[0,%d,0] op_sel_hi:[1,%d,1]' % (r, r)
            for c in range(5):
                src = 16 + 4*e + c if c < 4 else 48 + e
                u = 148 + 2*(c % 2)
                a('v_lshlrev_b32 v%d, 16, v%d\nv_and_b32 v%d, 0xffff0000, v%d' % (u, src, u+1, src))
                a('v_pk_mul_f32 v[%d:%d], v[%d:%d], v[%d:%d] %s' % (SX(r, 2*c), SX(r, 2*c)+1, u, u+1, 64+2*p, 65+2*p, sel))
                if e == 0:
                    a('v_pk_mul_f32 v[%d:%d], v[%d:%d], v[%d:%d] %s' % (BI(2*c), BI(2*c)+1, u, u+1, 72+2*p, 73+2*p, sel))
                else:
                    a('v_pk_fma_f32 v[%d:%d], v[%d:%d], v[%d:%d], v[%d:%d] %s' % (BI(2*c), BI(2*c)+1, u, u+1, 72+2*p, 73+2*p, BI(2*c), BI(2*c)+1, sel3))
            a('v_mul_f32 v%d, v%d, v%d' % (SX(r, 10), 56+e, 64+e))
            if e == 0: a('v_mul_f32 v%d, v%d, v%d' % (BI(10), 56+e, 72+e))
            else: a('v_fmac_f32 v%d, v%d, v%d' % (BI(10), 56+e, 72+e))
        for i in range(11):
            a('v_cvt_pk_bf16_f32 v%d, v%d, v%d' % (OUT(i, p), SX(0, i), SX(1, i)))
        for i in range(11):
            a('v_dot2_f32_bf16 v%d, v%d, v10, %s' % (CS(i), OUT(i, p), 'v%d' % CS(i) if p else '0'))
        a('v_cndmask_b32 v%d, v%d, v10, s[76:77]' % (OUT(10, p), OUT(10, p)))
    for i in range(11):
        a('buffer_store_dwordx4 v[%d:%d], v11, s[4:7], s%d offen offset:%d' % (OUT(i, 0), OUT(i, 3), 52 + i//4, 1024*(i % 4)))
    for i in range(11): a('v_permlane32_swap_b32 v%d, v%d' % (CS(i), BI(i)))
    for i in range(11): a('v_add_f32 v%d, v%d, v%d' % (CS(i), CS(i), BI(i)))
    a('s_nop 1')
    for i in range(6): a('v_permlane16_swap_b32 v%d, v%d' % (CS(i), CS(i+6)))
    for i in range(6): a('v_add_f32 v%d, v%d, v%d' % (CS(i), CS(i), CS(i+6)))
    a('''
    v_lshrrev_b32 v12, 4, v2
    v_mul_u32_u24 v12, 192, v12
    v_lshl_add_u32 v12, v4, 2, v12
    s_mul_i32 s55, s3, 768
    v_add_u32 v12, s55, v12
    ''')
    for i in range(6): a('v_add_f32_dpp v%d, v%d, v%d row_ror:8 row_mask:0xf bank_mask:0xf' % (CS(i), CS(i), CS(i)))
    for i in range(6): a('ds_write_b32 v12, v%d offset:%d' % (CS(i), 32*i))
    a('''
    s_mul_i32 s55, s3, 192
    v_lshl_add_u32 v13, v2, 2, s55
    ; dest voffset: i*64 + (cg>>1)*16 + (cg&1)*4
    v_lshlrev_b32 v14, 6, v3
    v_lshrrev_b32 v15, 1, v4
    v_lshl_add_u32 v14, v15, 4, v14
    v_and_b32 v15, 1, v4
    v_lshl_add_u32 v14, v15, 2, v14
    s_lshl_b32 s56, s48, 4
    s_add_u32 s56, s56, s9
    s_lshl_b32 s56, s56, 1
    s_lshr_b32 s57, s3, 1
    s_add_u32 s56, s56, s57
    s_mul_i32 s56, s56, 704
    s_and_b32 s57, s3, 1
    s_mul_i32 s58, s57, 384
    s_add_u32 s56, s56, s58
    s_lshl_b32 s58, s10, 3
    s_add_u32 s56, s56, s58
    s_add_u32 s56, s56, %d
    s_cmp_eq_u32 s57, 0
    s_movk_i32 s59, 0xff
    s_cselect_b32 s59, 0xffff, s59
    s_waitcnt lgkmcnt(0)
    s_barrier
    ds_read_b32 v16, v13
    ds_read_b32 v17, v13 offset:768
    ds_read_b32 v18, v13 offset:1536
    ds_read_b32 v19, v13 offset:2304
    s_mov_b32 exec_hi, s59
    s_waitcnt lgkmcnt(0)
    v_add_f32 v16, v16, v17
    v_add_f32 v18, v18, v19
    v_add_f32 v16, v16, v18
    buffer_store_dword v16, v14, s[4:7], s56 offen
    s_endpgm
    ''' % CSB_OFF)
    return a.text()
```

```python
from gen_common import *
from layout import *
from k1 import prologue, wait_args
from k2 import LdsQ
import struct
def fhex(x): return '0x%08x' % struct.unpack('<I', struct.pack('<f', x))[0]
K3_GRID = 256
SCR = 131072
K3_LDS = SCR + 2560
K3_VGPR = 256 + 192
GK0 = -2*0.7978845608028654*1.4426950408889634
GK1 = GK0*0.044715
AHEAD = 12

def gen_k3():
    a = Asm()
    prologue(a)
    a('''
    s_cmp_ge_u32 s2, %d
    s_cbranch_scc1 K3_end
    s_and_b32 s8, s2, 7
    s_lshr_b32 s9, s2, 3
    s_and_b32 s10, s9, 15                  ; G
    s_lshr_b32 s9, s9, 4
    s_lshl_b32 s8, s8, 1
    s_add_u32 s8, s8, s9                   ; mt
    ; DMA source voffset v3
    v_lshrrev_b32 v4, 4, v2                ; lane>>4  (g)
    v_bfe_u32 v5, v2, 1, 3                 ; p
    s_and_b32 s12, s3, 1
    s_lshl_b32 s12, s12, 2
    v_or_b32 v6, s12, v4                   ; f(ch)
    v_xor_b32 v5, v5, v6                   ; logical slot
    v_lshlrev_b32 v5, 5, v5
    v_and_b32 v6, 1, v2
    v_lshl_add_u32 v5, v6, 4, v5
    v_lshl_add_u32 v3, v4, 12, v5
    s_lshl_b32 s48, s3, 15
    s_lshl_b32 s49, s8, 8
    s_add_u32 s48, s48, s49
    s_add_u32 s48, s48, %d                 ; DMA soffset (ks=0, first)
    s_lshl_b32 s49, s3, 11                 ; LDS dest (ks=0)
    ; W' voffset v7 = mat*512 + g*128 + cg*16
    v_bfe_u32 v5, v2, 1, 1
    v_lshlrev_b32 v7, 9, v5
    v_lshl_add_u32 v7, v4, 7, v7
    v_bfe_u32 v5, v2, 2, 2
    v_lshl_add_u32 v7, v5, 5, v7
    v_lshl_add_u32 v7, v6, 4, v7
    s_mul_i32 s50, s10, %d
    s_mul_i32 s51, s3, 3072
    s_add_u32 s50, s50, s51
    s_add_u32 s50, s50, %d                 ; W' soffset
    ; tr addresses v8..v15
    v_and_b32 v6, 1, v4
    v_lshl_or_b32 v6, v6, 2, v5            ; F = r | (g&1)<<2
    v_lshl_add_u32 v16, v4, 3, v5          ; 8g + r
    v_lshlrev_b32 v16, 8, v16
    v_and_b32 v17, 3, v2
    v_lshl_add_u32 v16, v17, 3, v16
    ''' % (K3_GRID, X1T_OFF, 16*11264, WP_OFF))
    for rt in range(8):
        a('v_xor_b32 v17, %d, v6\nv_lshl_add_u32 v%d, v17, 5, v16' % (rt, 8+rt))
    a('''
    v_lshlrev_b32 v224, 4, v4              ; CSB voffset
    s_mul_i32 s52, s10, 1408
    s_mul_i32 s53, s3, 192
    s_add_u32 s52, s52, s53
    s_add_u32 s52, s52, %d
    s_add_u32 s53, s52, %d
    s_lshl_b32 s54, s8, 7
    s_add_u32 s54, s54, s10
    s_mul_i32 s54, s54, 2816
    s_add_u32 s54, s54, %d                 ; HF soffset
    s_mov_b32 s56, %s
    s_mov_b32 s57, %s
    v_and_b32 v225, 15, v2
    v_and_b32 v226, 3, v2
    v_lshlrev_b32 v226, 2, v226
    v_lshl_add_u32 v226, v225, 4, v226
    v_add_u32 v226, %d, v226               ; sumsq read addr
    v_lshlrev_b32 v227, 2, v225
    v_add_u32 v227, %d, v227               ; sum addr
    ''' % (CSB_OFF, 16*1408, HF_OFF, fhex(GK1), fhex(GK0), SCR, SCR + 2048))
    wait_args(a)
    a('s_cmp_eq_u32 s3, 3\ns_cbranch_scc1 K3_w3')
    path(a, False)
    a('K3_w3:')
    path(a, True)
    a('K3_end:\ns_endpgm')
    return a.text()

def path(a, w3):
    ns = 2 if w3 else 3
    vq = LdsQ(a, 'vmcnt', 63)
    lq = LdsQ(a)
    WF = lambda ks, s: 12*ks + 4*s
    ACC = lambda s, rt: 128 + 32*s + 4*rt
    XF = lambda st, rt: 64 + 32*st + 4*rt
    def loads(ks):
        a('s_mov_b32 m0, s49\ns_add_u32 s55, s48, 0x3c00')
        vq.issue('buffer_load_dwordx4 v3, s[4:7], s48 offen lds')
        vq.issue('buffer_load_dwordx4 v3, s[4:7], s55 offen offset:1024 lds', ('D', ks))
        for s in range(ns):
            vq.issue('buffer_load_dwordx4 a[%d:%d], v7, s[4:7], s50 offen offset:%d' % (WF(ks, s), WF(ks, s)+3, 1024*s), ('W', ks))
        a('s_add_u32 s48, s48, 0x20000\ns_add_u32 s49, s49, 0x2000\ns_add_u32 s50, s50, 11264')
    def csb():
        for hf in range(2):
            for ty in range(2):
                for s in range(ns):
                    r = 16 + 24*hf + 12*ty + 4*s
                    vq.issue('buffer_load_dwordx4 v[%d:%d], v224, s[4:7], s%d offen offset:%d' % (r, r+3, 52+hf, 704*ty + 64*s), 'CSB')
    def trs(ks):
        L = []
        for rt in range(8):
            for h in range(2):
                r = XF(ks % 2, rt) + 2*h
                L.append(('ds_read_b64_tr_b16 v[%d:%d], v%d offset:%d' % (r, r+1, 8+rt, ((32*ks + 4*h)*256) % 65536), ('X', ks, rt)))
        return L
    for ks in range(AHEAD): loads(ks)
    vq.need(('D', 0))
    a('s_barrier')
    for t, tag in trs(0): lq.issue(t, tag)
    for ks in range(16):
        pend = []
        vq.need(('W', ks))
        n = 0
        for rt in range(8):
            for s in range(3):
                if n == 6 and ks < 15:
                    vq.need(('D', ks+1))
                    a('s_barrier')
                    if ks == 7:
                        for r in range(8): a('v_add_u32 v%d, 0x10000, v%d' % (8+r, 8+r))
                    pend = trs(ks+1)
                lq.need(('X', ks, rt))
                c = 'v[%d:%d]' % (ACC(s, rt), ACC(s, rt)+3)
                xf = 'v[%d:%d]' % (XF(ks % 2, rt), XF(ks % 2, rt)+3)
                A = xf if s >= ns else 'a[%d:%d]' % (WF(ks, s), WF(ks, s)+3)
                a('v_mfma_f32_16x16x32_bf16 %s, %s, %s, %s' % (c, A, xf, c if ks else '0'))
                if pend:
                    t, tag = pend.pop(0); lq.issue(t, tag)
                n += 1
        assert not pend
        if ks + AHEAD < 16: loads(ks + AHEAD)
        if ks + AHEAD == 16: csb()
    if w3:
        a('''
        v_lshlrev_b32 v228, 4, v225
        v_add_u32 v228, %d, v228
        s_mov_b32 exec_lo, 0
        s_mov_b32 exec_hi, 0xffff0000
        ''' % SCR)
        for rt in range(8): a('ds_write_b32 v227, v%d offset:%d' % (ACC(1, rt), 64*rt))
        a('s_mov_b32 exec_lo, 0x00f0000f\ns_mov_b32 exec_hi, 0xf0000f00')
        for rt in range(8): a('ds_write_b128 v228, v[%d:%d] offset:%d' % (ACC(2, rt), ACC(2, rt)+3, 256*rt))
        a('s_mov_b64 exec, -1')
    vq.need('CSB')
    for i in range(0, 12*2, 2):
        if (i % 12) // 4 < ns:
            a('v_pk_add_f32 v[%d:%d], v[%d:%d], v[%d:%d]' % (16+i, 17+i, 16+i, 17+i, 40+i, 41+i))
    a('s_waitcnt lgkmcnt(0)\ns_barrier')
    for rt in range(0, 8, 2):
        a('ds_read2_b32 v[%d:%d], v227 offset0:%d offset1:%d' % (64+rt, 65+rt, 16*rt, 16*rt+16))
        a('ds_read2st64_b32 v[%d:%d], v226 offset0:%d offset1:%d' % (72+rt, 73+rt, rt, rt+1))
    if w3:
        a('v_lshlrev_b32 v229, 4, v2\nv_add_u32 v229, 12, v229')
    else:
        a('''
        s_cmp_eq_u32 s3, 2
        s_cselect_b32 s58, 12, 16
        v_mul_u32_u24 v229, s58, v2
        s_lshl_b32 s58, s3, 10
        s_add_u32 s54, s54, s58
        ''')
    a('v_mov_b32 v230, 0x3b000000\nv_mov_b32 v231, 0x3727c5ac')
    ST = lambda rt: 80 + 2*rt
    for rt in range(0, 8, 2):
        a('s_waitcnt lgkmcnt(%d)' % (6 - rt))
        a('''
        v_pk_mul_f32 v[%d:%d], v[%d:%d], v[230:231] op_sel_hi:[1,0]
        v_pk_fma_f32 v[%d:%d], v[%d:%d], v[230:231], v[230:231] op_sel:[0,0,1] op_sel_hi:[1,0,1]
        v_pk_fma_f32 v[%d:%d], v[%d:%d], v[%d:%d], v[%d:%d] neg_lo:[1,0,0] neg_hi:[1,0,0]
        v_rsq_f32 v%d, v%d
        v_rsq_f32 v%d, v%d
        v_mul_f32 v%d, -v%d, v%d
        v_mul_f32 v%d, -v%d, v%d
        ''' % (64+rt, 65+rt, 64+rt, 65+rt,
               72+rt, 73+rt, 72+rt, 73+rt,
               72+rt, 73+rt, 64+rt, 65+rt, 64+rt, 65+rt, 72+rt, 73+rt,
               ST(rt), 72+rt, ST(rt+1), 73+rt,
               ST(rt)+1, 64+rt, ST(rt), ST(rt+1)+1, 65+rt, ST(rt+1)))
    P = lambda r: 'v[%d:%d]' % (r, r+1)
    for rt in range(8):
        st = P(ST(rt))
        T = lambda s, k: 96 + 8*s + 2*k
        O = 120 + 4*(rt % 2)
        for s in range(ns):
            a('v_pk_fma_f32 %s, %s, %s, %s op_sel:[0,1,0] op_sel_hi:[1,1,1]' % (P(T(s, 0)), P(16+4*s), st, P(28+4*s)))
            a('v_pk_fma_f32 %s, %s, %s, %s op_sel:[0,1,0] op_sel_hi:[1,1,1]' % (P(T(s, 1)), P(18+4*s), st, P(30+4*s)))
        for s in range(ns):
            a('v_pk_fma_f32 %s, %s, %s, %s op_sel_hi:[1,0,1]' % (P(T(s, 0)), P(ACC(s, rt)), st, P(T(s, 0))))
            a('v_pk_fma_f32 %s, %s, %s, %s op_sel_hi:[1,0,1]' % (P(T(s, 1)), P(ACC(s, rt)+2), st, P(T(s, 1))))
        for s in range(ns):
            a('v_pk_mul_f32 %s, %s, %s' % (P(T(s, 2)), P(T(s, 0)), P(T(s, 0))))
        for s in range(ns):
            a('v_pk_fma_f32 %s, %s, s[56:57], s[56:57] op_sel:[0,0,1] op_sel_hi:[1,0,1]' % (P(T(s, 2)), P(T(s, 2))))
        for s in range(ns):
            a('v_pk_mul_f32 %s, %s, %s' % (P(T(s, 2)), P(T(s, 2)), P(T(s, 0))))
        for s in range(ns):
            a('v_exp_f32 v%d, v%d\nv_exp_f32 v%d, v%d' % (T(s, 2), T(s, 2), T(s, 2)+1, T(s, 2)+1))
        for s in range(ns):
            a('v_pk_mul_f32 %s, %s, %s' % (P(T(s, 0)), P(T(s, 0)), P(T(s, 1))))
        for s in range(ns):
            a('v_pk_add_f32 %s, %s, 1.0 op_sel_hi:[1,0]' % (P(T(s, 2)), P(T(s, 2))))
        for s in range(ns):
            a('v_rcp_f32 v%d, v%d\nv_rcp_f32 v%d, v%d' % (T(s, 2), T(s, 2), T(s, 2)+1, T(s, 2)+1))
        if ns == 1: a('s_nop 0')
        for s in range(ns):
            a('v_pk_mul_f32 %s, %s, %s' % (P(T(s, 0)), P(T(s, 0)), P(T(s, 2))))
        for s in range(ns):
            a('v_cvt_pk_bf16_f32 v%d, v%d, v%d' % (O+s, T(s, 0), T(s, 0)+1))
        if w3:
            a('buffer_store_dword v%d, v229, s[4:7], s54 offen\nbuffer_store_dword v%d, v229, s[4:7], s54 offen offset:1024' % (O, O+1))
        else:
            a('buffer_store_dwordx3 v[%d:%d], v229, s[4:7], s54 offen' % (O, O+2))
        if rt < 7: a('s_add_u32 s54, s54, 45056')
    if not w3: a('s_endpgm')
```

```python
from gen_common import *
from layout import *
from k1 import prologue, wait_args
from k2 import LdsQ
K4_GRID = 256
K4_LDS = 49152
K4_VGPR = 512

def gen_k4():
    a = Asm()
    prologue(a)
    a('''
    s_cmp_ge_u32 s2, %d
    s_cbranch_scc1 K4_end
    s_and_b32 s8, s2, 7
    s_lshr_b32 s9, s2, 3
    s_and_b32 s10, s9, 7                   ; Bd
    s_lshr_b32 s9, s9, 3
    s_lshl_b32 s8, s8, 2
    s_add_u32 s8, s8, s9                   ; rb
    v_lshlrev_b32 v3, 4, v2
    v_mul_u32_u24 v4, 12, v2
    s_lshl_b32 s48, s8, 6
    s_lshl_b32 s49, s3, 2
    s_add_u32 s48, s48, s49
    s_mul_i32 s48, s48, 2816
    s_add_u32 s48, s48, %d                 ; HF soffset  (rt=4rb, G=4w)
    s_add_u32 s49, s48, 45056
    s_add_u32 s50, s49, 45056
    s_add_u32 s51, s50, 45056
    s_lshl_b32 s52, s10, 4
    s_lshl_b32 s53, s3, 2
    s_add_u32 s52, s52, s53
    s_mul_i32 s52, s52, 11264
    s_add_u32 s52, s52, %d                 ; WD soffset
    ; residual: X1T[d][l] d = 64Bd + 4i + c ; l = 64rb + 16w + 4g
    v_and_b32 v5, 15, v2
    v_lshrrev_b32 v6, 4, v2
    v_lshlrev_b32 v7, 14, v5
    v_lshl_add_u32 v7, v6, 3, v7
    s_lshl_b32 s54, s10, 18
    s_lshl_b32 s55, s8, 7
    s_add_u32 s54, s54, s55
    s_lshl_b32 s55, s3, 5
    s_add_u32 s54, s54, s55
    s_add_u32 s54, s54, %d
    v_lshlrev_b32 v8, 4, v5                ; gb voffset
    s_lshl_b32 s55, s10, 8
    s_add_u32 s55, s55, %d
    ; out voffset: row (4g)*1024 + i*8 ; soffset (64rb+16w)*1024 + Bd*128
    v_lshlrev_b32 v9, 12, v6
    v_lshl_add_u32 v9, v5, 3, v9
    s_lshl_b32 s56, s8, 16
    s_lshl_b32 s57, s3, 14
    s_add_u32 s56, s56, s57
    s_lshl_b32 s57, s10, 7
    s_add_u32 s56, s56, s57
    s_mov_b32 s14, 0x200000
    s_mov_b32 s15, 0x20000
    ''' % (K4_GRID, HF_OFF, WD_OFF, X1T_OFF, MOD_OFF + 5*2048))
    def R(k, which, i):
        base = 32*k + 16*which + 4*i
        return ('a', base) if k < 8 else ('v', 128 + base - 256)
    def rs(k, which, i, n=4):
        t, b = R(k, which, i); return '%s[%d:%d]' % (t, b, b+n-1)
    for k in range(2, 12, 3):
        for which in range(2):
            for i in range(4):
                t, b = R(k, which, i)
                a(('v_accvgpr_write_b32 a%d, 0' if t == 'a' else 'v_mov_b32 v%d, 0') % (b+3))
    wait_args(a)
    a('s_mov_b32 s12, s42\ns_mov_b32 s13, s43')
    vq = LdsQ(a, 'vmcnt', 63)
    def loads(k):
        u = k % 3
        for i in range(4):
            if u < 2:
                vq.issue('buffer_load_dwordx4 %s, v3, s[4:7], s%d offen offset:%d' % (rs(k, 0, i), 48+i, 1024*u))
                vq.issue('buffer_load_dwordx4 %s, v3, s[4:7], s52 offen offset:%d' % (rs(k, 1, i), 1024*i), ('L', k))
            else:
                vq.issue('buffer_load_dwordx3 %s, v4, s[4:7], s%d offen offset:2048' % (rs(k, 0, i, 3), 48+i))
                vq.issue('buffer_load_dwordx3 %s, v4, s[4:7], s52 offen offset:%d' % (rs(k, 1, i, 3), 768*i), ('L', k))
        a('s_add_u32 s52, s52, %d' % (4096 if u < 2 else 3072))
        if u == 2:
            for i in range(4): a('s_add_u32 s%d, s%d, 2816' % (48+i, 48+i))
    AH = 7
    for k in range(AH): loads(k)
    ACC = lambda mt, c: 64 + 16*mt + 4*c
    for k in range(12):
        vq.need(('L', k))
        for mt in range(4):
            for c in range(4):
                cc = 'v[%d:%d]' % (ACC(mt, c), ACC(mt, c)+3)
                a('v_mfma_f32_16x16x32_bf16 %s, %s, %s, %s' % (cc, rs(k, 0, mt), rs(k, 1, c), cc if k else '0'))
            if mt == 0:
                if k + AH < 12: loads(k + AH)
                if k + AH == 12:
                    for c in range(4):
                        vq.issue('buffer_load_dwordx2 v[%d:%d], v7, s[4:7], s54 offen' % (16+2*c, 17+2*c))
                        if c < 3: a('s_add_u32 s54, s54, 4096')
                    vq.issue('buffer_load_dwordx4 v[24:27], v8, s[4:7], s55 offen', 'RES')
    for w in range(4):
        if w < 3: a('s_cmp_eq_u32 s3, %d\ns_cbranch_scc0 K4_x%d' % (w, w+1))
        a('s_nop 5')
        for mt in range(4):
            if mt == w: continue
            for c in range(4):
                a('ds_write_b128 v3, v[%d:%d] offset:%d' % (ACC(mt, c), ACC(mt, c)+3, mt*12288 + ((w-mt-1) & 3)*4096 + c*1024))
        for i in range(0, 16, 2):
            a('v_mov_b64 v[%d:%d], v[%d:%d]' % (32+i, 33+i, ACC(w, 0)+i, ACC(w, 0)+i+1))
        if w < 3: a('s_branch K4_join\nK4_x%d:' % (w+1))
    a('''
K4_join:
    s_mul_i32 s58, s3, 12288
    v_add_u32 v10, s58, v3
    s_waitcnt lgkmcnt(0)
    s_barrier
    ''')
    for j in range(12):
        a('ds_read_b128 v[%d:%d], v10 offset:%d' % (64+4*j, 67+4*j, 1024*j))
    vq.need('RES')
    for c in range(4):
        for hlf in range(2):
            a('v_lshlrev_b32 v%d, 16, v%d\nv_and_b32 v%d, 0xffff0000, v%d' % (48+4*c+2*hlf, 16+2*c+hlf, 49+4*c+2*hlf, 16+2*c+hlf))
    for j in range(12):
        a('s_waitcnt lgkmcnt(%d)' % (11-j))
        c = j % 4
        for hlf in range(2):
            r = 32 + 4*c + 2*hlf
            a('v_pk_add_f32 v[%d:%d], v[%d:%d], v[%d:%d]' % (r, r+1, r, r+1, 64+4*j+2*hlf, 65+4*j+2*hlf))
    for c in range(4):
        for hlf in range(2):
            r = 32 + 4*c + 2*hlf
            a('v_pk_fma_f32 v[%d:%d], v[%d:%d], v[%d:%d], v[%d:%d] op_sel:[0,%d,0] op_sel_hi:[1,%d,1]' % (r, r+1, r, r+1, 24 + (c & 2), 25 + (c & 2), r+16, r+17, c & 1, c & 1))
    for reg in range(4):
        a('''
        v_cvt_pk_bf16_f32 v%d, v%d, v%d
        v_cvt_pk_bf16_f32 v%d, v%d, v%d
        buffer_store_dwordx2 v[%d:%d], v9, s[12:15], s56 offen offset:%d
        ''' % (16+2*reg, 32+reg, 36+reg, 17+2*reg, 40+reg, 44+reg, 16+2*reg, 17+2*reg, 1024*reg))
    a('K4_end:\ns_endpgm')
    return a.text()
```

```python
XT_OFF   = 0
ST1_OFF  = 0x200000
MOD_OFF  = 0x204000
CSB_OFF  = 0x208000
FLG_OFF  = 0x218000
KX_OFF   = 0x220000
KX_PITCH = 4160
WD_OFF   = 0x430000
WP_OFF   = 0x5A0000
X1T_OFF  = 0x860000
HF_OFF   = 0xA60000
WS_END   = HF_OFF + 128*16*2816
assert KX_OFF + 512*KX_PITCH <= WD_OFF
assert WD_OFF + 8*16*11264 <= WP_OFF
assert WP_OFF + 16*16*11264 <= X1T_OFF
assert WS_END < 0x1000000
DIAG_OFF = 0x1000000
def fmap(G, slot, cg):
    if slot < 8: return 86*G + 8*cg + slot
    if slot < 10: return 86*G + 64 + 2*cg + (slot-8)
    return 86*G + 80 + cg if cg < 6 else -1
CHUNK = [[0,1,2,9],[3,4,5,10],[6,7,8]]
```

```python
import sys
from gen_common import *
Asm.DIAG = 2 if 'diag2' in sys.argv else ('diag' in sys.argv)
import k1, k2
n = int(sys.argv[1]) if len(sys.argv) > 1 else 4
L = [('k1_kernel', k1.K1_GRID, 256, k1.K1_LDS), ('k2_kernel', k2.K2_GRID, 256, k2.K2_LDS)]
K = [('k1_kernel', k1.gen_k1(), 152, 152), ('k2_kernel', k2.gen_k2(), 240, 240)]
if n >= 3:
    import k3
    L.append(('k3_kernel', k3.K3_GRID, 256, k3.K3_LDS)); K.append(('k3_kernel', k3.gen_k3(), k3.K3_VGPR, 256))
if n >= 4:
    import k4
    L.append(('k4_kernel', k4.K4_GRID, 256, k4.K4_LDS)); K.append(('k4_kernel', k4.gen_k4(), k4.K4_VGPR, 256))
hdr = ''.join(l for l in open('adaLN_cond__ssm_conv_s4d__glu_gated_geglu__prompt.s.ref').readlines()[:17])
open('diag.s' if Asm.DIAG else 'all.s', 'w').write(build(L, K, hdr))
```

```python
class Asm:
    def __init__(self):
        self.lines = []
        self.lbl = 0
    def __call__(self, s):
        for l in s.strip('\n').split('\n'):
            self.lines.append('    ' + l.strip() if not l.strip().endswith(':') else l.strip())
    DIAG = False
    def stamp(self, i):
        if not Asm.DIAG: return
        if Asm.DIAG == 2 and i > 0: return
        if i == 0:
            self('s_memrealtime s[78:79]\ns_memtime s[80:81]')
        else:
            self('s_memtime s[%d:%d]' % (80+2*i, 81+2*i))
    def stamp_out(self, kidx, n):
        if not Asm.DIAG: return
        if Asm.DIAG == 2:
            self('s_waitcnt vmcnt(0)\ns_memrealtime s[100:101]\ns_sub_u32 s98, s44, %d\ns_subb_u32 s99, s45, 0\ns_mov_b64 exec, 1\ns_waitcnt lgkmcnt(0)' % (512*kidx))
            self('v_mov_b32 v1, s100\nv_mov_b32 v2, %d\ns_not_b32 s78, s78\nv_mov_b32 v3, s78\nglobal_atomic_umax v2, v1, s[98:99] offset:4\nglobal_atomic_umax v2, v3, s[98:99]' % (8*kidx))
            return
        self('s_waitcnt vmcnt(0)\ns_memtime s[%d:%d]\ns_memrealtime s[100:101]\ns_mov_b64 exec, -1\ns_waitcnt lgkmcnt(0)' % (80+2*(n+1), 81+2*(n+1)))
        self('v_mov_b32 v1, 0\nv_writelane_b32 v1, s78, 0\nv_writelane_b32 v1, s100, 1')
        for i in range(1, n+2):
            self('s_sub_u32 s100, s%d, s80\nv_writelane_b32 v1, s100, %d' % (80+2*i, i+1))
        self('s_getreg_b32 s100, hwreg(HW_REG_XCC_ID)\nv_writelane_b32 v1, s100, 15')
        self('s_lshl_b32 s100, s2, 2\ns_add_u32 s100, s100, s3\ns_lshl_b32 s100, s100, 6\ns_add_u32 s100, s100, %d' % (0x1000000 + kidx*0x20000))
        self('v_mbcnt_lo_u32_b32 v2, -1, 0\nv_mbcnt_hi_u32_b32 v2, -1, v2\nv_lshlrev_b32 v2, 2, v2\ns_mov_b64 exec, 0xffff\nbuffer_store_dword v1, v2, s[4:7], s100 offen')
    def label(self, base='L'):
        self.lbl += 1
        return '%s_%d' % (base, self.lbl)
    def text(self):
        return '\n'.join(self.lines) + '\n'

def kernel_header(name):
    return '.globl %s\n.p2align 8\n.type %s,@function\n%s:\n' % (name, name, name)

def kernel_desc(name, vgpr, sgpr=102, accum=None, wgy=False):
    if accum is None:
        accum = min(256, (vgpr + 3) // 4 * 4)
    s = '.amdhsa_kernel %s\n' % name
    s += '  .amdhsa_next_free_vgpr %d\n  .amdhsa_next_free_sgpr %d\n  .amdhsa_accum_offset %d\n' % (vgpr, sgpr, accum)
    s += '  .amdhsa_group_segment_fixed_size 0\n  .amdhsa_kernarg_size 128\n  .amdhsa_user_sgpr_count 2\n'
    s += '  .amdhsa_user_sgpr_kernarg_segment_ptr 1\n  .amdhsa_system_sgpr_workgroup_id_x 1\n'
    s += '  .amdhsa_float_denorm_mode_32 3\n'
    s += '.end_amdhsa_kernel\n'
    return s

def build(launches, kernels, header=''):
    out = header
    for n, g, b, lds in launches:
        out += '; @launch kernel=%s grid=(%d,1,1) block=(%d,1,1) lds=%d\n' % (n, g, b, lds)
    out += '.amdgcn_target "amdgcn-amd-amdhsa--gfx950"\n.text\n'
    for n, body, vg, acc in kernels:
        out += kernel_header(n) + body
    out += '.section .rodata,"a"\n'
    for n, body, vg, acc in kernels:
        out += '.p2align 6\n' + kernel_desc(n, vg, 102, acc)
    return out
```

```python
from gen_common import *
from layout import *
LOG2E = 0x3fb8aa3b
INV2PI = 0x3e22f983
def prologue(a):
    a.stamp(0)
    a('''
    s_load_dwordx16 s[16:31], s[0:1], 0
    s_load_dwordx16 s[32:47], s[0:1], 64
    v_lshrrev_b32 v1, 6, v0
    v_and_b32 v2, 63, v0
    v_readfirstlane_b32 s3, v1
    s_mov_b32 s6, 0x2000000
    s_mov_b32 s7, 0x20000
    s_mov_b32 s11, 0x20000
    ''')
def wait_args(a):
    a('''
    s_waitcnt lgkmcnt(0)
    s_mov_b32 s4, s46
    s_mov_b32 s5, s47
    ''')
    a.stamp(1)
def cmul(a, d, x, y, t):
    a('v_pk_mul_f32 v[%d:%d], v[%d:%d], v[%d:%d] op_sel:[0,0] op_sel_hi:[1,0]' % (t, t+1, x, x+1, y, y+1))
    a('v_pk_fma_f32 v[%d:%d], v[%d:%d], v[%d:%d], v[%d:%d] op_sel:[1,1,0] op_sel_hi:[0,1,1] neg_lo:[1,0,0]' % (d, d+1, x, x+1, y, y+1, t, t+1))

N_KG, N_LN, N_MOD, N_WD = 256, 64, 96, 32
K1_GRID = N_KG + N_LN + N_MOD + N_WD
PITCH = 544
CHB = 64*PITCH
K1_LDS = 2*CHB

def gen_k1():
    a = Asm()
    prologue(a)
    a('''
    s_cmp_ge_u32 s2, %d
    s_cbranch_scc1 K1_other
    ''' % N_KG)
    a('''
    s_lshl_b32 s8, s2, 9
    v_lshl_add_u32 v3, v0, 1, s8
    s_lshr_b32 s9, s3, 1
    s_and_b32 s10, s3, 1                  ; half
    s_lshl_b32 s12, s2, 1
    s_add_u32 s12, s12, s9                ; channel
    s_lshl_b32 s13, s12, 1
    v_mov_b32 v4, s13
    v_mov_b32 v8, 0
    v_mov_b32 v9, 0
    v_mov_b32 v10, 0
    v_mov_b32 v11, 0
    v_mov_b32 v12, 0
    ''')
    wait_args(a)
    a('''
    global_load_short_d16_hi v12, v4, s[26:27]
    global_load_short_d16_hi v8, v3, s[18:19]
    global_load_short_d16_hi v9, v3, s[20:21]
    global_load_short_d16_hi v10, v3, s[22:23]
    global_load_short_d16_hi v11, v3, s[24:25]
    s_mul_i32 s14, s9, %d
    s_lshl_b32 s15, s10, 8
    s_add_u32 s15, s15, s14
    s_mov_b32 m0, s15
    ''' % CHB)
    a('''
    v_and_b32 v5, 15, v2                  ; m / n'
    v_lshrrev_b32 v6, 4, v2               ; g
    v_sub_u32 v7, 15, v5
    v_cvt_f32_u32 v7, v7                  ; beta
    v_lshl_add_u32 v13, v6, 4, s14        ; chbase + 16 g
    s_cmp_eq_u32 s10, 0
    ''')
    inv = {1: 0x3f800000, 2: 0x3f000000, 4: 0x3e800000, 8: 0x3e000000}
    for i, (s0, b0, b1) in enumerate([(1, 0, 35), (2, 16, 38), (4, 25, 41), (4, 30, 44)]):
        a('''
        s_mov_b32 s48, 0x%x
        s_cselect_b32 s48, s48, 0x%x
        s_cselect_b32 s49, %d, %d
        v_mul_f32 v14, s48, v7
        v_rndne_f32 v14, v14
        v_cvt_u32_f32 v14, v14
        v_add_u32 v14, s49, v14
        v_mul_u32_u24 v14, %d, v14
        v_add_u32 v%d, v14, v13
        ''' % (inv[s0], inv[8], b0, b1, PITCH, 20+i))
    a('''
    v_sub_u32 v14, 62, v5
    v_mul_u32_u24 v14, %d, v14
    v_add_u32 v24, v14, v13
    v_lshlrev_b32 v25, 5, v5
    v_lshl_add_u32 v25, v6, 3, v25
    s_mul_i32 s50, s12, %d
    s_add_u32 s51, s50, %d               ; pad word address
    s_lshl_b32 s52, s10, 11
    s_sub_u32 s50, s50, s52
    s_add_u32 s50, s50, %d
    v_mov_b32 v26, 0x3f80                 ; z^0 = (1, 0)
    ds_write_addtid_b32 v26 offset:0
    v_mov_b32 v27, 0
    v_lshlrev_b32 v28, 2, v5
    buffer_store_dword v27, v28, s[4:7], s51 offen
    s_waitcnt vmcnt(4)
    v_mul_f32 v12, 0x%x, v12
    v_mul_f32 v8, 0x%x, v8
    v_exp_f32 v12, v12
    v_exp_f32 v8, v8
    s_nop 0
    v_cvt_pk_bf16_f32 v14, v12, v8
    v_lshlrev_b32 v12, 16, v14            ; dt
    v_and_b32 v8, 0xffff0000, v14         ; exp(logA)
    v_mul_f32 v8, v8, v12
    v_mul_f32 v8, 0x%x, v8                ; lr = -Ar dt log2e
    s_waitcnt vmcnt(3)
    v_mul_f32 v9, v9, v12
    v_mul_f32 v9, 0x%x, v9                ; th (revolutions/step)
    v_add_f32 v12, v12, v12
    ''' % (PITCH, KX_PITCH, KX_OFF + 4096, KX_OFF + 2048, LOG2E, LOG2E, LOG2E | 0x80000000, INV2PI))
    Z = lambda m: 32 + 2*m
    Q = lambda k: 68 + 2*k
    def direct(d, p, t):
        a('''
        v_mul_f32 v%d, 0x%x, v8
        v_mul_f32 v%d, 0x%x, v9
        v_exp_f32 v%d, v%d
        v_fract_f32 v%d, v%d
        v_cos_f32 v%d, v%d
        v_sin_f32 v%d, v%d
        ''' % (t, p, t+1, p, t, t, t+1, t+1, d, t+1, d+1, t+1))
    direct(Z(1), 0x3f800000, 88)
    direct(Z(16), 0x41800000, 90)
    direct(Q(1), 0x43800000, 92)
    for d, t in ((Z(1), 88), (Z(16), 90), (Q(1), 92)):
        a('v_pk_mul_f32 v[%d:%d], v[%d:%d], v[%d:%d] op_sel_hi:[1,0]' % (d, d+1, d, d+1, t, t+1))
    a('s_waitcnt vmcnt(1)')
    a.stamp(2)
    a('v_pk_mul_f32 v[84:85], v[10:11], v[12:13] op_sel_hi:[1,0]')
    pk = [0]
    def emit(row, r, neg=False):
        t = 96 + pk[0] % 8; pk[0] += 1
        a('v_cvt_pk_bf16_f32 v%d, v%d, %sv%d' % (t, r, '-' if neg else '', r+1))
        a('ds_write_addtid_b32 v%d offset:%d' % (t, row*PITCH))
    emit(1, Z(1))
    emit(47, 84, True)
    emit(16, Q(1))
    ops = []
    zs = []
    for m in range(2, 16):
        h = m//2
        zs.append((Z(m), Z(h), Z(m-h), m, False))
    cs = []
    for n in range(1, 16):
        cs.append((84 + 2*(n % 2), 84 + 2*((n-1) % 2), Z(16), 47+n, True))
    qs = []
    rowbase = {1: 16, 2: 25, 3: 30, 4: 35, 5: 38, 6: 41, 7: 44}
    for k in range(2, 8):
        h = k//2
        qs.append((Q(k), Q(h), Q(k-h), rowbase[k], False))
    seq = []
    for i in range(15):
        if i < len(zs): seq.append(zs[i])
        seq.append(cs[i])
        if i < len(qs): seq.append(qs[i])
    tt = 0
    for d, x, y, row, neg in seq:
        cmul(a, d, x, y, 88 + 2*(tt % 2)); tt += 1
        emit(row, d, neg)
    for k in range(1, 8):
        step = 2 if k == 1 else (4 if k < 4 else 8)
        for r in range(1, 16//step + 1):
            d = 92 + 2*(tt % 2)
            cmul(a, d, Q(k), Z(step*r), 88 + 2*(tt % 2)); tt += 1
            emit(rowbase[k] + r, d)
    a.stamp(3)
    a('s_waitcnt lgkmcnt(0)\ns_barrier')
    a.stamp(4)
    for s in range(8):
        a('ds_read_b128 v[%d:%d], v24 offset:%d' % (32+4*s, 35+4*s, 64*s))
        a('ds_read_b128 v[%d:%d], v20 offset:%d' % (64+4*s, 67+4*s, 64*s))
    for i in range(4):
        cur = 64 + 32*(i % 2); nxt = 64 + 32*((i+1) % 2)
        for s in range(8):
            if i == 0:
                a('s_waitcnt lgkmcnt(%d)' % (14 - 2*s + s))
            else:
                a('s_waitcnt lgkmcnt(%d)' % (7 if i < 3 else 7 - s))
            c = 'v[%d:%d]' % (128+4*i, 131+4*i)
            a('v_mfma_f32_16x16x32_bf16 %s, v[%d:%d], v[%d:%d], %s' % (c, cur+4*s, cur+4*s+3, 32+4*s, 35+4*s, c if s else '0'))
            if i < 3:
                a('ds_read_b128 v[%d:%d], v%d offset:%d' % (nxt+4*s, nxt+4*s+3, 21+i, 64*s))
        if i > 0:
            j = i-1
            a('''
            v_cvt_pk_bf16_f32 v%d, v%d, v%d
            v_cvt_pk_bf16_f32 v%d, v%d, v%d
            buffer_store_dwordx2 v[%d:%d], v25, s[4:7], s50 offen offset:%d
            ''' % (144+2*j, 128+4*j, 129+4*j, 145+2*j, 130+4*j, 131+4*j, 144+2*j, 145+2*j, 512*(3-j)))
    a('''
    s_nop 7
    v_cvt_pk_bf16_f32 v150, v140, v141
    v_cvt_pk_bf16_f32 v151, v142, v143
    buffer_store_dwordx2 v[150:151], v25, s[4:7], s50 offen
    ''')
    a.stamp(5); a.stamp_out(0, 5); a('s_endpgm')
    a('''
K1_other:
    s_mov_b32 s60, 0x05040100
    s_mov_b32 s61, 0x07060302
    s_cmp_ge_u32 s2, %d
    s_cbranch_scc1 K1_notln
    ''' % (N_KG + N_LN))
    a('''
    s_sub_u32 s8, s2, %d
    s_lshl_b32 s8, s8, 2
    s_add_u32 s8, s8, s3                   ; lb
    s_lshl_b32 s9, s8, 13                  ; lb*8192 : byte offset both in x and XT
    v_lshl_add_u32 v3, v2, 4, s9
    v_add_u32 v4, 0x1000, v3
    v_mov_b32 v5, 0x3f803f80
    ''' % N_KG)
    wait_args(a)
    IN = lambda r, c: 16 + 4*r + c
    for r in range(8):
        a('global_load_dwordx4 v[%d:%d], v%d, s[16:17] offset:%d' % (IN(r, 0), IN(r, 3), 3 + r//4, 1024*(r % 4)))
    S = lambda r: 48 + r
    Qq = lambda r: 56 + r
    OUT = lambda j, p: 64 + 4*j + p
    for r in range(8):
        a('s_waitcnt vmcnt(%d)' % (7-r))
        for c in range(4):
            a('v_dot2_f32_bf16 v%d, v%d, v5, %s' % (S(r), IN(r, c), 'v%d' % S(r) if c else '0'))
            a('v_dot2_f32_bf16 v%d, v%d, v%d, %s' % (Qq(r), IN(r, c), IN(r, c), 'v%d' % Qq(r) if c else '0'))
    a.stamp(2)
    for j in range(8):
        for p in range(4):
            a('v_perm_b32 v%d, v%d, v%d, s%d' % (OUT(j, p), IN(2*p+1, j//2), IN(2*p, j//2), 60 + j % 2))
        a('buffer_store_dwordx4 v[%d:%d], v%d, s[4:7], 0 offen offset:%d' % (OUT(j, 0), OUT(j, 3), 3 + j//4, 1024*(j % 4)))
    for r in range(8):
        a('v_permlane32_swap_b32 v%d, v%d' % (S(r), Qq(r)))
    for r in range(8):
        a('v_add_f32 v%d, v%d, v%d' % (S(r), S(r), Qq(r)))
    for i in range(4):
        a('v_permlane16_swap_b32 v%d, v%d' % (S(i), S(i+4)))
    for i in range(4):
        a('v_add_f32 v%d, v%d, v%d' % (S(i), S(i), S(i+4)))
    for sh in (8, 4, 2, 1):
        for i in range(4):
            a('v_add_f32_dpp v%d, v%d, v%d row_ror:%d row_mask:0xf bank_mask:0xf' % (S(i), S(i), S(i), sh))
    for i in range(4):
        a('v_mov_b32 v%d, v%d' % (Qq(i), S(i)))
    a('s_nop 0')
    for i in range(4):
        a('v_permlane32_swap_b32 v%d, v%d' % (S(i), Qq(i)))
    a('v_mov_b32 v6, 0x3727c5ac')
    for i in range(4):
        a('v_mul_f32 v%d, 0x3b000000, v%d' % (S(i), S(i)))
    for i in range(4):
        a('v_fmamk_f32 v%d, v%d, 0x3b000000, v6' % (Qq(i), Qq(i)))
    for i in range(4):
        a('v_fma_f32 v%d, -v%d, v%d, v%d' % (Qq(i), S(i), S(i), Qq(i)))
    RR = lambda i: 8 + 4*(i//2) + i % 2
    for i in range(4):
        a('v_rsq_f32 v%d, v%d' % (RR(i), Qq(i)))
    a('s_nop 0')
    for i in range(4):
        a('v_mul_f32 v%d, -v%d, v%d' % (RR(i)+2, S(i), RR(i)))
    a('''
    v_lshlrev_b32 v7, 9, v2                ; lane 0 -> 0, lane 16 -> 8192
    s_lshl_b32 s9, s8, 4
    s_add_u32 s9, s9, %d
    s_add_u32 s10, s9, 4096
    s_mov_b64 exec, 0x10001
    buffer_store_dwordx4 v[8:11], v7, s[4:7], s9 offen
    buffer_store_dwordx4 v[12:15], v7, s[4:7], s10 offen
    ''' % ST1_OFF)
    a.stamp(3); a.stamp_out(0, 3); a('s_endpgm')
    a('''
K1_notln:
    s_cmp_ge_u32 s2, %d
    s_cbranch_scc1 K1_wd
    ''' % (N_KG + N_LN + N_MOD))
    a('''
    s_sub_u32 s8, s2, %d                   ; column block
    v_and_b32 v3, 3, v0                    ; cq
    v_lshrrev_b32 v4, 2, v0                ; rg
    v_lshlrev_b32 v5, 4, v4                ; c offset
    v_mul_u32_u24 v6, %d, v4
    v_lshl_add_u32 v6, v3, 4, v6
    s_lshl_b32 s9, s8, 6
    ''' % (N_KG + N_LN, 8*6144))
    wait_args(a)
    a('''
    s_mov_b32 s12, s40
    s_mov_b32 s13, s41
    s_mov_b32 s14, %d
    s_mov_b32 s15, 0x20000
    global_load_dwordx4 v[8:11], v5, s[38:39]
    ''' % (512*6144))
    for r in range(8):
        a('buffer_load_dwordx4 v[%d:%d], v6, s[12:15], s9 offen' % (IN(r, 0), IN(r, 3)))
        if r < 7: a('s_add_u32 s9, s9, 6144')
    a('s_waitcnt vmcnt(8)')
    for i in range(4):
        a('v_lshlrev_b32 v%d, 16, v%d\nv_and_b32 v%d, 0xffff0000, v%d' % (48+2*i, 8+i, 49+2*i, 8+i))
    for i in range(8): a('v_mul_f32 v%d, 0x%x, v%d' % (56+i, LOG2E | 0x80000000, 48+i))
    for i in range(8): a('v_exp_f32 v%d, v%d' % (56+i, 56+i))
    for i in range(8): a('v_add_f32 v%d, 1.0, v%d' % (56+i, 56+i))
    for i in range(8): a('v_rcp_f32 v%d, v%d' % (56+i, 56+i))
    for i in range(8): a('v_mul_f32 v%d, v%d, v%d' % (48+i, 48+i, 56+i))
    for p in range(4): a('v_cvt_pk_bf16_f32 v%d, v%d, v%d' % (8+p, 48+2*p, 49+2*p))
    for p in range(4):
        a('s_waitcnt vmcnt(%d)' % (6-2*p))
        for j in range(8):
            a('v_perm_b32 v%d, v%d, v%d, s%d' % (64+j, IN(2*p+1, j//2), IN(2*p, j//2), 60 + j % 2))
        for j in range(8):
            a('v_dot2_f32_bf16 v%d, v%d, v%d, %s' % (48+j, 64+j, 8+p, 'v%d' % (48+j) if p else '0'))
    a('s_nop 2')
    a.stamp(2)
    for j in range(4): a('v_permlane32_swap_b32 v%d, v%d' % (48+j, 52+j))
    for j in range(4): a('v_add_f32 v%d, v%d, v%d' % (48+j, 48+j, 52+j))
    a('s_nop 0')
    for j in range(2): a('v_permlane16_swap_b32 v%d, v%d' % (48+j, 50+j))
    for j in range(2): a('v_add_f32 v%d, v%d, v%d' % (48+j, 48+j, 50+j))
    a('s_nop 0')
    for sh in (8, 4):
        for j in range(2): a('v_add_f32_dpp v%d, v%d, v%d row_ror:%d row_mask:0xf bank_mask:0xf' % (48+j, 48+j, 48+j, sh))
        a('s_nop 0')
    a('''
    v_lshrrev_b32 v4, 4, v2
    v_lshlrev_b32 v4, 3, v4
    v_lshl_add_u32 v4, v3, 5, v4
    s_lshl_b32 s9, s3, 7
    v_add_u32 v4, s9, v4
    ds_write_b64 v4, v[48:49]
    s_waitcnt lgkmcnt(0)
    s_barrier
    s_cmp_lg_u32 s3, 0
    s_cbranch_scc1 K1_end
    v_and_b32 v4, 31, v2
    v_lshlrev_b32 v4, 2, v4
    ds_read2_b32 v[8:9], v4 offset0:0 offset1:32
    ds_read2_b32 v[10:11], v4 offset0:64 offset1:96
    s_lshr_b32 s9, s8, 4
    s_cmp_eq_u32 s9, 1
    s_cselect_b32 s10, 1.0, 0
    s_cmp_eq_u32 s9, 4
    s_cselect_b32 s10, 1.0, s10
    s_lshl_b32 s9, s8, 7
    s_add_u32 s9, s9, %d
    s_waitcnt lgkmcnt(0)
    v_add_f32 v8, v8, v9
    v_add_f32 v10, v10, v11
    v_add_f32 v8, v8, v10
    v_cvt_pk_bf16_f32 v8, v8, v8
    v_and_b32 v8, 0xffff0000, v8
    v_add_f32 v8, s10, v8
    v_cvt_pk_bf16_f32 v8, v8, v8
    v_and_b32 v8, 0xffff0000, v8
    buffer_store_dword v8, v4, s[4:7], s9 offen
    ''' % MOD_OFF)
    a.stamp(3); a.stamp_out(0, 3); a('K1_end:\ns_endpgm')
    a('''
K1_wd:
    s_cmp_ge_u32 s2, %d
    s_cbranch_scc1 K1_end
    s_sub_u32 s8, s2, %d
    s_lshl_b32 s8, s8, 2
    s_add_u32 s8, s8, s3
    s_and_b32 s9, s8, 7                    ; Bd
    s_lshr_b32 s10, s8, 3                  ; G
    v_and_b32 v3, 15, v2
    v_lshrrev_b32 v4, 4, v2                ; g
    v_lshlrev_b32 v3, 3, v3
    v_lshl_add_u32 v5, v4, 14, v3          ; voffA
    v_lshl_add_u32 v6, v4, 12, v3          ; voffB
    v_lshl_add_u32 v7, v4, 11, v3          ; voffC
    v_mov_b32 v8, 0x40000000
    v_cmp_eq_u32 vcc, 3, v4
    s_mul_i32 s48, s10, %d
    s_lshl_b32 s49, s9, 7
    v_cndmask_b32 v7, v7, v8, vcc
    s_add_u32 s48, s48, s49                ; base soffset
    s_add_u32 s49, s48, 4096
    s_add_u32 s50, s48, 8192
    s_add_u32 s51, s48, 12288
    s_add_u32 s52, s48, 65536
    s_add_u32 s53, s48, %d
    s_lshl_b32 s54, s9, 4
    s_add_u32 s54, s54, s10
    s_mul_i32 s54, s54, 11264
    s_add_u32 s54, s54, %d
    s_add_u32 s55, s54, 4096
    s_add_u32 s56, s54, 8192
    v_lshlrev_b32 v9, 4, v2
    v_mul_u32_u24 v10, 12, v2
    ''' % (K1_GRID, N_KG + N_LN + N_MOD, 86*1024, 80*1024, WD_OFF))
    wait_args(a)
    a('''
    s_mov_b32 s12, s36
    s_mov_b32 s13, s37
    s_mov_b32 s14, %d
    s_mov_b32 s15, 0x20000
    ''' % (1376*1024))
    Lr = lambda s, r: 16 + 4*s + 2*r
    order = [s for ch in CHUNK for s in ch]
    for s in order:
        for r in range(2):
            if s < 8:
                a('buffer_load_dwordx2 v[%d:%d], v5, s[12:15], s%d offen offset:%d' % (Lr(s, r), Lr(s, r)+1, 48 + 2*r + s//4, 1024*(s % 4)))
            elif s < 10:
                a('buffer_load_dwordx2 v[%d:%d], v6, s[12:15], s52 offen offset:%d' % (Lr(s, r), Lr(s, r)+1, 1024*(2*r + s - 8)))
            else:
                a('buffer_load_dwordx2 v[%d:%d], v7, s[12:15], s53 offen offset:%d' % (Lr(s, r), Lr(s, r)+1, 1024*r))
    done = 0; nst = 0
    for u, ch in enumerate(CHUNK):
        done += 2*len(ch)
        a('s_waitcnt vmcnt(%d)' % (22 - done + nst))
        for c in range(4):
            o = 64 + 16*u + 4*c
            for j, s in enumerate(ch):
                a('v_perm_b32 v%d, v%d, v%d, s%d' % (o+j, Lr(s, 1) + c//2, Lr(s, 0) + c//2, 60 + c % 2))
            if u < 2:
                a('buffer_store_dwordx4 v[%d:%d], v9, s[4:7], s%d offen offset:%d' % (o, o+3, 54+u, 1024*c))
            else:
                a('buffer_store_dwordx3 v[%d:%d], v10, s[4:7], s56 offen offset:%d' % (o, o+2, 768*c))
            nst += 1
    a.stamp(2); a.stamp_out(0, 2)
    a('s_endpgm')
    return a.text()
if __name__ == '__main__':
    open('k1.s', 'w').write(build([('k1_kernel', K1_GRID, 256, K1_LDS)], [('k1_kernel', gen_k1(), 152, 152)]))
```

```python
from gen_common import *
from layout import *
from k1 import prologue, wait_args

class LdsQ:
    def __init__(self, a, cnt='lgkmcnt', maxn=15):
        self.a = a; self.issued = 0; self.pos = {}; self.done = 0; self.cnt = cnt; self.maxn = maxn
    def issue(self, text, tag=None):
        self.a(text); self.issued += 1
        if tag is not None: self.pos[tag] = self.issued
    def need(self, *tags):
        p = max(self.pos[t] for t in tags)
        if p <= self.done: return
        n = min(self.issued - p, self.maxn)
        self.a('s_waitcnt %s(%d)' % (self.cnt, n))
        self.done = self.issued - n
    def drain(self):
        self.a('s_waitcnt %s(0)' % self.cnt); self.done = self.issued

N_CONV, N_PREP = 256, 64
K2_GRID = N_CONV + N_PREP
HB = 0; HBP = 4608
KE = 9216
EX = KE + 4*4160
K2_LDS = EX + 16384

def gen_k2():
    a = Asm()
    prologue(a)
    a('''
    s_cmp_ge_u32 s2, %d
    s_cbranch_scc1 K2_prep
    s_and_b32 s8, s2, 7                   ; m8
    s_lshr_b32 s9, s2, 3
    s_and_b32 s10, s9, 7                  ; j
    s_lshr_b32 s9, s9, 3                  ; i2
    s_lshl_b32 s12, s8, 2
    s_add_u32 s12, s12, s9                ; 4*m8 + i2
    s_lshl_b32 s13, s12, 4
    s_add_u32 s13, s13, s10               ; dA
    s_lshl_b32 s14, s12, 5
    s_lshl_b32 s15, s10, 10
    s_add_u32 s14, s14, s15               ; XT offset within lb
    v_lshlrev_b32 v3, 13, v0
    v_lshlrev_b32 v4, 4, v0
    v_lshlrev_b32 v5, 4, v2               ; lane*16
    s_lshr_b32 s48, s3, 1                 ; k (channel sel of this wave)
    s_and_b32 s49, s3, 1                  ; hh / copy
    s_lshl_b32 s50, s48, 3
    s_add_u32 s50, s50, s13               ; this wave's channel d
    s_mul_i32 s51, s50, %d
    s_lshl_b32 s52, s49, 1
    s_add_u32 s51, s51, s52
    s_add_u32 s51, s51, %d                ; K source soffset
    s_mul_i32 s52, s3, 4160
    s_add_u32 s52, s52, %d
    s_mov_b32 m0, s52
    s_mov_b32 s53, %d
    s_add_u32 s54, s53, 4096
    s_add_u32 s55, s53, 8192
    s_add_u32 s56, s53, 12288
    s_lshl_b32 s57, s13, 2
    s_add_u32 s57, s57, %d
    s_lshr_b32 s58, s50, 1
    s_lshl_b32 s58, s58, 2
    ''' % (N_CONV, KX_PITCH, KX_OFF, KE, ST1_OFF, MOD_OFF))
    wait_args(a)
    a('''
    buffer_load_dwordx4 v[16:19], v3, s[4:7], s14 offen
    buffer_load_dwordx4 v[20:23], v3, s[4:7], s14 offen offset:16
    buffer_load_dwordx4 v[24:27], v4, s[4:7], s53 offen
    buffer_load_dwordx4 v[28:31], v4, s[4:7], s54 offen
    buffer_load_dwordx4 v[32:35], v4, s[4:7], s55 offen
    buffer_load_dwordx4 v[36:39], v4, s[4:7], s56 offen
    s_add_u32 s62, s46, s57
    s_addc_u32 s63, s47, 0
    s_add_u32 s64, s28, s58
    s_addc_u32 s65, s29, 0
    s_load_dword s66, s[62:63], 0          ; sa A
    s_load_dword s67, s[62:63], 32         ; sa B
    s_load_dword s68, s[62:63], 2048       ; ca1 A
    s_load_dword s69, s[62:63], 2080
    s_load_dword s70, s[62:63], 4096       ; ga A
    s_load_dword s71, s[62:63], 4128
    s_load_dword s72, s[64:65], 0          ; D pair
    buffer_load_dwordx4 v5, s[4:7], s51 offen lds
    buffer_load_dwordx4 v5, s[4:7], s51 offen offset:1024 lds
    buffer_load_dwordx4 v5, s[4:7], s51 offen offset:2048 lds
    buffer_load_dwordx4 v5, s[4:7], s51 offen offset:3072 lds
    ''')
    a('''
    v_and_b32 v6, 15, v2                   ; n / b
    v_lshrrev_b32 v7, 4, v2                ; g
    v_lshrrev_b32 v8, 1, v7
    v_lshl_add_u32 v8, v6, 1, v8
    v_lshlrev_b32 v8, 13, v8
    v_and_b32 v9, 1, v7
    v_lshl_add_u32 v8, v9, 3, v8
    s_lshl_b32 s59, s49, 20
    s_add_u32 s59, s59, s14
    s_lshl_b32 s60, s48, 4
    s_add_u32 s59, s59, s60
    buffer_load_dwordx2 v[224:225], v8, s[4:7], s59 offen
    s_add_u32 s59, s59, 0x40000
    buffer_load_dwordx2 v[226:227], v8, s[4:7], s59 offen
    s_add_u32 s59, s59, 0x40000
    buffer_load_dwordx2 v[228:229], v8, s[4:7], s59 offen
    s_add_u32 s59, s59, 0x40000
    buffer_load_dwordx2 v[230:231], v8, s[4:7], s59 offen
    ''')
    a('''
    v_mov_b32 v10, 0
    s_mul_i32 s60, s48, %d
    s_lshl_b32 s61, s49, 8
    s_add_u32 s61, s61, s60
    v_lshl_add_u32 v11, v2, 2, s61
    ds_write_b32 v11, v10 offset:%d
    v_lshl_add_u32 v11, v6, 2, s52
    ds_write_b32 v11, v10 offset:4096
    ; B address: HB[k] + 480 + 32n + 16g - 64*(4hh+3)
    v_lshlrev_b32 v12, 5, v6
    v_lshl_add_u32 v12, v7, 4, v12
    s_lshl_b32 s61, s49, 8
    s_sub_u32 s61, s60, s61
    s_add_u32 s61, s61, %d
    v_add_u32 v12, s61, v12
    ; h D-layout address: HB[k] + 512 + 2*(1024hh + 16n + 4g)
    v_lshlrev_b32 v13, 5, v6
    v_lshl_add_u32 v13, v7, 3, v13         ; also output voffset
    s_lshl_b32 s61, s49, 11
    s_add_u32 s61, s61, s60
    v_add_u32 v14, s61, v13
    ; A address: x0 = 2031 - b + 8g ; par = x0&1 ; KE + (2k+par)*4160 + 2*(x0-par) - 512q - 64r
    v_lshlrev_b32 v15, 3, v7
    v_sub_u32 v15, v15, v6
    v_add_u32 v15, 2031, v15
    v_and_b32 v9, 1, v15
    v_mul_u32_u24 v9, 4158, v9
    v_lshl_add_u32 v15, v15, 1, v9
    s_mul_i32 s61, s48, 8320
    s_lshl_b32 s73, s49, 8
    s_sub_u32 s61, s61, s73
    s_add_u32 s61, s61, %d
    v_add_u32 v40, s61, v15                ; q pair 0 (q=0,1): minus 512 minus 192
    v_subrev_u32 v41, 1024, v40
    v_subrev_u32 v42, 2048, v40
    v_subrev_u32 v43, 3072, v40
    v_add_u32 v44, %d, v4                  ; h write address
    s_lshl_b32 s74, s50, 12
    s_lshl_b32 s75, s49, 11
    s_add_u32 s74, s74, s75
    s_add_u32 s74, s74, %d                 ; output soffset
    s_lshl_b32 s75, s3, 12
    s_add_u32 s75, s75, %d
    v_add_u32 v45, s75, v5                 ; exchange write addr
    v_xor_b32 v46, 4096, v45               ; partner region (EX is 8192-aligned? handled below)
    s_waitcnt lgkmcnt(0)
    v_mov_b32 v48, s68
    v_mov_b32 v49, s66
    v_mov_b32 v50, s69
    v_mov_b32 v51, s67
    s_cmp_eq_u32 s48, 0
    s_cselect_b32 s70, s70, s71            ; ga of this wave's channel
    s_and_b32 s73, s50, 1
    s_cmp_eq_u32 s73, 0
    s_cselect_b32 s73, 16, 0
    s_lshl_b32 s72, s72, s73
    s_and_b32 s72, s72, 0xffff0000
    v_mov_b32 v47, s72
    v_mul_f32 v47, s70, v47                ; ga*D
    ''' % (HBP, HB, HB + 480 - 192, KE - 512 - 192, HB + 512, X1T_OFF, 0))
    a.stamp(2)
    for q in range(4):
        a('s_waitcnt vmcnt(%d)' % (11 - q))
        for k in range(2):
            x = 16 + 4*k + q; t = 52 + 2*k
            a('''
            v_lshlrev_b32 v%d, 16, v%d
            v_and_b32 v%d, 0xffff0000, v%d
            v_pk_fma_f32 v[%d:%d], v[%d:%d], v[%d:%d], v[%d:%d]
            v_pk_fma_f32 v[%d:%d], v[%d:%d], v[%d:%d], v[%d:%d] op_sel:[0,0,1] op_sel_hi:[1,0,1]
            v_cvt_pk_bf16_f32 v%d, v%d, v%d
            ''' % (t, x, t+1, x, t, t+1, t, t+1, 24+4*q, 25+4*q, 26+4*q, 27+4*q,
                   t, t+1, t, t+1, 48+2*k, 49+2*k, 48+2*k, 49+2*k, 56+4*k+q, t, t+1))
    a('''
    ds_write_b128 v44, v[56:59]
    ds_write_b128 v44, v[60:63] offset:%d
    ''' % HBP)
    a.stamp(3)
    a('s_waitcnt vmcnt(4) lgkmcnt(0)')
    a.stamp(4)
    a('s_barrier')
    a.stamp(5)
    q_ = LdsQ(a)
    ACC = lambda t: 64 + 4*t
    AF = lambda st, q: 96 + 32*st + 4*q
    BF = lambda st, d: 160 + 32*st + 4*d
    def reads(it):
        st = it % 2; L = []
        def ra(q):
            o = (1 - (q & 1))*128 + (3 - it)*16
            L.append(('ds_read2_b32 v[%d:%d], v%d offset0:%d offset1:%d' % (AF(st, q), AF(st, q)+1, 40 + q//2, o, o+1), None))
            L.append(('ds_read2_b32 v[%d:%d], v%d offset0:%d offset1:%d' % (AF(st, q)+2, AF(st, q)+3, 40 + q//2, o+2, o+3), ('A', it, q)))
        ra(0)
        for d in range(8):
            L.append(('ds_read_b128 v[%d:%d], v12 offset:%d' % (BF(st, d), BF(st, d)+3, 512*d + 64*(3-it)), ('B', it, d)))
        for q in range(1, 8): ra(q)
        return L
    first = reads(0)
    for t, tag in first[:12]: q_.issue(t, tag)
    pend = first[12:]
    hreads = [('ds_read_b64 v[%d:%d], v14 offset:%d' % (232+2*i, 233+2*i, HB + 512 + 512*i), ('H', i)) for i in range(4)]
    shadow = []
    for i in range(4):
        for hlf in range(2):
            x = 224 + 2*i + hlf; h = 232 + 2*i + hlf; b0 = 16 + 4*i + 2*hlf
            shadow += [('v_lshlrev_b32 v%d, 16, v%d' % (b0, x), None), ('v_and_b32 v%d, 0xffff0000, v%d' % (b0+1, x), None),
                       ('v_lshlrev_b32 v52, 16, v%d' % h, ('H', i)), ('v_and_b32 v53, 0xffff0000, v%d' % h, None),
                       ('v_fmac_f32 v%d, v47, v52' % b0, None), ('v_fmac_f32 v%d, v47, v53' % (b0+1), None)]
    for it in range(4):
        st = it % 2
        if it < 3: pend = pend + reads(it+1)
        if it == 2: pend = pend + hreads
        if it == 3: a('s_waitcnt vmcnt(0)')
        for q in range(8):
            for t in range(q, 8):
                q_.need(('A', it, q), ('B', it, t-q))
                c = 'v[%d:%d]' % (ACC(t), ACC(t)+3)
                a('v_mfma_f32_16x16x32_bf16 %s, v[%d:%d], v[%d:%d], %s' % (c, AF(st, q), AF(st, q)+3, BF(st, t-q), BF(st, t-q)+3, c if (it or q) else '0'))
                if pend:
                    tx, tag = pend.pop(0); q_.issue(tx, tag)
                if it == 3:
                    for _ in range(2):
                        if shadow:
                            tx, tag = shadow.pop(0)
                            if tag: q_.need(tag)
                            a(tx)
        assert not pend or it < 3, pend
    assert not shadow
    a.stamp(6)
    a('''
    s_cmp_eq_u32 s49, 0
    s_cbranch_scc0 K2_hi
    s_nop 6
    ''')
    def exch(send, keep):
        for i in range(4):
            a('ds_write_b128 v45, v[%d:%d] offset:%d' % (ACC(send+i), ACC(send+i)+3, EX + 1024*i))
        for i in range(16):
            a('v_fmac_f32 v%d, s70, v%d' % (16+i, ACC(keep)+i))
    exch(4, 0)
    a('s_branch K2_join\nK2_hi:')
    exch(0, 4)
    a('K2_join:\ns_waitcnt lgkmcnt(0)\ns_barrier')
    for i in range(4):
        a('ds_read_b128 v[%d:%d], v46 offset:%d' % (96+4*i, 99+4*i, EX + 1024*i))
    for i in range(4):
        a('s_waitcnt lgkmcnt(%d)' % (3-i))
        for e in range(4):
            a('v_fmac_f32 v%d, s70, v%d' % (16+4*i+e, 96+4*i+e))
        a('''
        v_cvt_pk_bf16_f32 v%d, v%d, v%d
        v_cvt_pk_bf16_f32 v%d, v%d, v%d
        buffer_store_dwordx2 v[%d:%d], v13, s[4:7], s74 offen offset:%d
        ''' % (32+2*i, 16+4*i, 17+4*i, 33+2*i, 18+4*i, 19+4*i, 32+2*i, 33+2*i, 512*i))
    a.stamp(7); a.stamp_out(1, 7)
    a('K2_end:\ns_endpgm')
    a('''
K2_prep:
    s_cmp_ge_u32 s2, %d
    s_cbranch_scc1 K2_end
    s_sub_u32 s8, s2, %d
    s_and_b32 s9, s8, 15                   ; G
    s_lshr_b32 s10, s8, 4
    s_lshr_b32 s48, s10, 1                 ; half
    s_and_b32 s10, s10, 1                  ; mat
    s_lshl_b32 s49, s48, 2
    s_add_u32 s49, s49, s3                 ; kp
    v_lshrrev_b32 v3, 3, v2                ; pl
    v_and_b32 v4, 7, v2                    ; cg
    v_mul_u32_u24 v5, 22016, v3
    v_lshl_add_u32 v6, v4, 2, v5           ; voffB (+128)
    v_lshl_add_u32 v7, v4, 1, v5           ; voffC (+160)
    v_lshl_add_u32 v5, v4, 4, v5           ; voffA
    v_mov_b32 v8, 0x40000000
    v_cmp_lt_u32 vcc, 5, v4
    v_cmp_eq_u32 s[76:77], 6, v4
    s_mul_i32 s50, s49, %d
    s_mul_i32 s51, s9, 172
    v_cndmask_b32 v7, v7, v8, vcc
    s_add_u32 s50, s50, s51
    v_lshlrev_b32 v9, 5, v3
    s_lshl_b32 s51, s49, 8
    s_add_u32 s51, s51, %d                 ; MOD sb offset
    s_cmp_eq_u32 s10, 0
    s_cselect_b64 s[76:77], s[76:77], 0
    ''' % (K2_GRID, N_CONV, 64*2752, MOD_OFF + 3*2048))
    for e in range(8): a('v_mov_b32 v%d, 0' % (56+e))
    wait_args(a)
    a('''
    s_cselect_b32 s12, s32, s34
    s_cselect_b32 s13, s33, s35
    s_mov_b32 s14, %d
    s_mov_b32 s15, 0x20000
    buffer_load_dwordx4 v[72:75], v9, s[4:7], s51 offen
    buffer_load_dwordx4 v[76:79], v9, s[4:7], s51 offen offset:16
    buffer_load_dwordx4 v[64:67], v9, s[4:7], s51 offen offset:2048
    buffer_load_dwordx4 v[68:71], v9, s[4:7], s51 offen offset:2064
    ''' % (512*2752))
    for e in range(8):
        a('''
        buffer_load_dwordx4 v[%d:%d], v5, s[12:15], s50 offen
        buffer_load_dword v%d, v6, s[12:15], s50 offen offset:128
        buffer_load_short_d16_hi v%d, v7, s[12:15], s50 offen offset:160
        ''' % (16+4*e, 19+4*e, 48+e, 56+e))
        if e < 7: a('s_add_u32 s50, s50, 2752')
    a('''
    v_mov_b32 v10, 0x3f803f80
    v_lshrrev_b32 v11, 5, v2
    v_mul_u32_u24 v11, 11264, v11
    v_and_b32 v12, 31, v2
    v_lshl_add_u32 v11, v12, 4, v11        ; WP voffset
    s_lshl_b32 s52, s9, 4
    s_lshl_b32 s53, s49, 1
    s_add_u32 s52, s52, s53
    s_mul_i32 s52, s52, 11264
    s_lshl_b32 s53, s10, 9
    s_add_u32 s52, s52, s53
    s_add_u32 s52, s52, %d
    s_add_u32 s53, s52, 4096
    s_add_u32 s54, s52, 8192
    v_mov_b32 v135, 0
    v_mov_b32 v147, 0
    ''' % WP_OFF)
    OUT = lambda i, p: 80 + 4*i + p
    BI = lambda i: 124 + i
    CS = lambda i: 136 + i
    SX = lambda r, i: 152 + 12*r + i
    for p in range(4):
        for r in range(2):
            e = 2*p + r
            a('s_waitcnt vmcnt(%d)' % (21 - 3*e))
            sel = 'op_sel:[0,%d] op_sel_hi:[1,%d]' % (r, r)
            sel3 = 'op_sel:[0,%d,0] op_sel_hi:[1,%d,1]' % (r, r)
            for c in range(5):
                src = 16 + 4*e + c if c < 4 else 48 + e
                u = 148 + 2*(c % 2)
                a('v_lshlrev_b32 v%d, 16, v%d\nv_and_b32 v%d, 0xffff0000, v%d' % (u, src, u+1, src))
                a('v_pk_mul_f32 v[%d:%d], v[%d:%d], v[%d:%d] %s' % (SX(r, 2*c), SX(r, 2*c)+1, u, u+1, 64+2*p, 65+2*p, sel))
                if e == 0:
                    a('v_pk_mul_f32 v[%d:%d], v[%d:%d], v[%d:%d] %s' % (BI(2*c), BI(2*c)+1, u, u+1, 72+2*p, 73+2*p, sel))
                else:
                    a('v_pk_fma_f32 v[%d:%d], v[%d:%d], v[%d:%d], v[%d:%d] %s' % (BI(2*c), BI(2*c)+1, u, u+1, 72+2*p, 73+2*p, BI(2*c), BI(2*c)+1, sel3))
            a('v_mul_f32 v%d, v%d, v%d' % (SX(r, 10), 56+e, 64+e))
            if e == 0: a('v_mul_f32 v%d, v%d, v%d' % (BI(10), 56+e, 72+e))
            else: a('v_fmac_f32 v%d, v%d, v%d' % (BI(10), 56+e, 72+e))
        for i in range(11):
            a('v_cvt_pk_bf16_f32 v%d, v%d, v%d' % (OUT(i, p), SX(0, i), SX(1, i)))
        for i in range(11):
            a('v_dot2_f32_bf16 v%d, v%d, v10, %s' % (CS(i), OUT(i, p), 'v%d' % CS(i) if p else '0'))
        a('v_cndmask_b32 v%d, v%d, v10, s[76:77]' % (OUT(10, p), OUT(10, p)))
    a.stamp(2)
    for i in range(11):
        a('buffer_store_dwordx4 v[%d:%d], v11, s[4:7], s%d offen offset:%d' % (OUT(i, 0), OUT(i, 3), 52 + i//4, 1024*(i % 4)))
    for i in range(11): a('v_permlane32_swap_b32 v%d, v%d' % (CS(i), BI(i)))
    for i in range(11): a('v_add_f32 v%d, v%d, v%d' % (CS(i), CS(i), BI(i)))
    a('s_nop 1')
    for i in range(6): a('v_permlane16_swap_b32 v%d, v%d' % (CS(i), CS(i+6)))
    for i in range(6): a('v_add_f32 v%d, v%d, v%d' % (CS(i), CS(i), CS(i+6)))
    a('''
    v_lshrrev_b32 v12, 4, v2
    v_mul_u32_u24 v12, 192, v12
    v_lshl_add_u32 v12, v4, 2, v12
    s_mul_i32 s55, s3, 768
    v_add_u32 v12, s55, v12
    ''')
    for i in range(6): a('v_add_f32_dpp v%d, v%d, v%d row_ror:8 row_mask:0xf bank_mask:0xf' % (CS(i), CS(i), CS(i)))
    for i in range(6): a('ds_write_b32 v12, v%d offset:%d' % (CS(i), 32*i))
    a('''
    s_mul_i32 s55, s3, 192
    v_lshl_add_u32 v13, v2, 2, s55
    ; dest voffset: i*64 + (cg>>1)*16 + (cg&1)*4
    v_lshlrev_b32 v14, 6, v3
    v_lshrrev_b32 v15, 1, v4
    v_lshl_add_u32 v14, v15, 4, v14
    v_and_b32 v15, 1, v4
    v_lshl_add_u32 v14, v15, 2, v14
    s_lshl_b32 s56, s48, 4
    s_add_u32 s56, s56, s9
    s_lshl_b32 s56, s56, 1
    s_lshr_b32 s57, s3, 1
    s_add_u32 s56, s56, s57
    s_mul_i32 s56, s56, 704
    s_and_b32 s57, s3, 1
    s_mul_i32 s58, s57, 384
    s_add_u32 s56, s56, s58
    s_lshl_b32 s58, s10, 3
    s_add_u32 s56, s56, s58
    s_add_u32 s56, s56, %d
    s_cmp_eq_u32 s57, 0
    s_movk_i32 s59, 0xff
    s_cselect_b32 s59, 0xffff, s59
    s_waitcnt lgkmcnt(0)
    s_barrier
    ds_read_b32 v16, v13
    ds_read_b32 v17, v13 offset:768
    ds_read_b32 v18, v13 offset:1536
    ds_read_b32 v19, v13 offset:2304
    s_mov_b32 exec_hi, s59
    s_waitcnt lgkmcnt(0)
    v_add_f32 v16, v16, v17
    v_add_f32 v18, v18, v19
    v_add_f32 v16, v16, v18
    buffer_store_dword v16, v14, s[4:7], s56 offen
    ''' % CSB_OFF)
    a.stamp(3); a.stamp_out(1, 3); a('s_endpgm')
    return a.text()
```

```python
from gen_common import *
from layout import *
from k1 import prologue, wait_args
from k2 import LdsQ
import struct
def fhex(x): return '0x%08x' % struct.unpack('<I', struct.pack('<f', x))[0]
K3_GRID = 256
SCR = 131072
K3_LDS = SCR + 2560
K3_VGPR = 256 + 192
GK0 = -2*0.7978845608028654*1.4426950408889634
GK1 = GK0*0.044715
AHEAD = 12

def gen_k3():
    a = Asm()
    prologue(a)
    a('''
    s_cmp_ge_u32 s2, %d
    s_cbranch_scc1 K3_end
    s_and_b32 s8, s2, 7
    s_lshr_b32 s9, s2, 3
    s_and_b32 s10, s9, 15                  ; G
    s_lshr_b32 s9, s9, 4
    s_lshl_b32 s8, s8, 1
    s_add_u32 s8, s8, s9                   ; mt
    ; DMA source voffset v3
    v_lshrrev_b32 v4, 4, v2                ; lane>>4  (g)
    v_bfe_u32 v5, v2, 1, 3                 ; p
    s_and_b32 s12, s3, 1
    s_lshl_b32 s12, s12, 2
    v_or_b32 v6, s12, v4                   ; f(ch)
    v_xor_b32 v5, v5, v6                   ; logical slot
    v_lshlrev_b32 v5, 5, v5
    v_and_b32 v6, 1, v2
    v_lshl_add_u32 v5, v6, 4, v5
    v_lshl_add_u32 v3, v4, 12, v5
    s_lshl_b32 s48, s3, 15
    s_lshl_b32 s49, s8, 8
    s_add_u32 s48, s48, s49
    s_add_u32 s48, s48, %d                 ; DMA soffset (ks=0, first)
    s_lshl_b32 s49, s3, 11                 ; LDS dest (ks=0)
    ; W' voffset v7 = mat*512 + g*128 + cg*16
    v_bfe_u32 v5, v2, 1, 1
    v_lshlrev_b32 v7, 9, v5
    v_lshl_add_u32 v7, v4, 7, v7
    v_bfe_u32 v5, v2, 2, 2
    v_lshl_add_u32 v7, v5, 5, v7
    v_lshl_add_u32 v7, v6, 4, v7
    s_mul_i32 s50, s10, %d
    s_mul_i32 s51, s3, 3072
    s_add_u32 s50, s50, s51
    s_add_u32 s50, s50, %d                 ; W' soffset
    ; tr addresses v8..v15
    v_and_b32 v6, 1, v4
    v_lshl_or_b32 v6, v6, 2, v5            ; F = r | (g&1)<<2
    v_lshl_add_u32 v16, v4, 3, v5          ; 8g + r
    v_lshlrev_b32 v16, 8, v16
    v_and_b32 v17, 3, v2
    v_lshl_add_u32 v16, v17, 3, v16
    ''' % (K3_GRID, X1T_OFF, 16*11264, WP_OFF))
    for rt in range(8):
        a('v_xor_b32 v17, %d, v6\nv_lshl_add_u32 v%d, v17, 5, v16' % (rt, 8+rt))
    a('''
    v_lshlrev_b32 v224, 4, v4              ; CSB voffset
    s_mul_i32 s52, s10, 1408
    s_mul_i32 s53, s3, 192
    s_add_u32 s52, s52, s53
    s_add_u32 s52, s52, %d
    s_add_u32 s53, s52, %d
    s_lshl_b32 s54, s8, 7
    s_add_u32 s54, s54, s10
    s_mul_i32 s54, s54, 2816
    s_add_u32 s54, s54, %d                 ; HF soffset
    s_mov_b32 s56, %s
    s_mov_b32 s57, %s
    v_and_b32 v225, 15, v2
    v_and_b32 v226, 3, v2
    v_lshlrev_b32 v226, 2, v226
    v_lshl_add_u32 v226, v225, 4, v226
    v_add_u32 v226, %d, v226               ; sumsq read addr
    v_lshlrev_b32 v227, 2, v225
    v_add_u32 v227, %d, v227               ; sum addr
    ''' % (CSB_OFF, 16*1408, HF_OFF, fhex(GK1), fhex(GK0), SCR, SCR + 2048))
    wait_args(a)
    a('s_cmp_eq_u32 s3, 3\ns_cbranch_scc1 K3_w3')
    path(a, False)
    a('K3_w3:')
    path(a, True)
    a('K3_end:\ns_endpgm')
    return a.text()

def path(a, w3):
    ns = 2 if w3 else 3
    vq = LdsQ(a, 'vmcnt', 63)
    lq = LdsQ(a)
    WF = lambda ks, s: 12*ks + 4*s
    ACC = lambda s, rt: 128 + 32*s + 4*rt
    XF = lambda st, rt: 64 + 32*st + 4*rt
    def loads(ks):
        a('s_mov_b32 m0, s49\ns_add_u32 s55, s48, 0x3c00')
        vq.issue('buffer_load_dwordx4 v3, s[4:7], s48 offen lds')
        vq.issue('buffer_load_dwordx4 v3, s[4:7], s55 offen offset:1024 lds', ('D', ks))
        for s in range(ns):
            vq.issue('buffer_load_dwordx4 a[%d:%d], v7, s[4:7], s50 offen offset:%d' % (WF(ks, s), WF(ks, s)+3, 1024*s), ('W', ks))
        a('s_add_u32 s48, s48, 0x20000\ns_add_u32 s49, s49, 0x2000\ns_add_u32 s50, s50, 11264')
    def csb():
        for hf in range(2):
            for ty in range(2):
                for s in range(ns):
                    r = 16 + 24*hf + 12*ty + 4*s
                    vq.issue('buffer_load_dwordx4 v[%d:%d], v224, s[4:7], s%d offen offset:%d' % (r, r+3, 52+hf, 704*ty + 64*s), 'CSB')
    def trs(ks):
        L = []
        for rt in range(8):
            for h in range(2):
                r = XF(ks % 2, rt) + 2*h
                L.append(('ds_read_b64_tr_b16 v[%d:%d], v%d offset:%d' % (r, r+1, 8+rt, ((32*ks + 4*h)*256) % 65536), ('X', ks, rt)))
        return L
    for ks in range(AHEAD): loads(ks)
    a.stamp(2)
    vq.need(('D', 0))
    a('s_barrier')
    a.stamp(3)
    for t, tag in trs(0): lq.issue(t, tag)
    for ks in range(16):
        pend = []
        vq.need(('W', ks))
        n = 0
        for rt in range(8):
            for s in range(3):
                if n == 6 and ks < 15:
                    vq.need(('D', ks+1))
                    a('s_barrier')
                    if ks == 7:
                        for r in range(8): a('v_add_u32 v%d, 0x10000, v%d' % (8+r, 8+r))
                    pend = trs(ks+1)
                lq.need(('X', ks, rt))
                c = 'v[%d:%d]' % (ACC(s, rt), ACC(s, rt)+3)
                xf = 'v[%d:%d]' % (XF(ks % 2, rt), XF(ks % 2, rt)+3)
                A = xf if s >= ns else 'a[%d:%d]' % (WF(ks, s), WF(ks, s)+3)
                a('v_mfma_f32_16x16x32_bf16 %s, %s, %s, %s' % (c, A, xf, c if ks else '0'))
                if pend:
                    t, tag = pend.pop(0); lq.issue(t, tag)
                n += 1
        assert not pend
        if ks in (3, 7, 11, 15): a.stamp(4 + ks//4)
        if ks + AHEAD < 16: loads(ks + AHEAD)
        if ks + AHEAD == 16: csb()
    if w3:
        a('''
        v_lshlrev_b32 v228, 4, v225
        v_add_u32 v228, %d, v228
        s_mov_b32 exec_lo, 0
        s_mov_b32 exec_hi, 0xffff0000
        ''' % SCR)
        for rt in range(8): a('ds_write_b32 v227, v%d offset:%d' % (ACC(1, rt), 64*rt))
        a('s_mov_b32 exec_lo, 0x00f0000f\ns_mov_b32 exec_hi, 0xf0000f00')
        for rt in range(8): a('ds_write_b128 v228, v[%d:%d] offset:%d' % (ACC(2, rt), ACC(2, rt)+3, 256*rt))
        a('s_mov_b64 exec, -1')
    vq.need('CSB')
    for i in range(0, 12*2, 2):
        if (i % 12) // 4 < ns:
            a('v_pk_add_f32 v[%d:%d], v[%d:%d], v[%d:%d]' % (16+i, 17+i, 16+i, 17+i, 40+i, 41+i))
    a('s_waitcnt lgkmcnt(0)\ns_barrier')
    for rt in range(0, 8, 2):
        a('ds_read2_b32 v[%d:%d], v227 offset0:%d offset1:%d' % (64+rt, 65+rt, 16*rt, 16*rt+16))
        a('ds_read2st64_b32 v[%d:%d], v226 offset0:%d offset1:%d' % (72+rt, 73+rt, rt, rt+1))
    if w3:
        a('v_lshlrev_b32 v229, 4, v2\nv_add_u32 v229, 12, v229')
    else:
        a('''
        s_cmp_eq_u32 s3, 2
        s_cselect_b32 s58, 12, 16
        v_mul_u32_u24 v229, s58, v2
        s_lshl_b32 s58, s3, 10
        s_add_u32 s54, s54, s58
        ''')
    a('v_mov_b32 v230, 0x3b000000\nv_mov_b32 v231, 0x3727c5ac')
    ST = lambda rt: 80 + 2*rt
    for rt in range(0, 8, 2):
        a('s_waitcnt lgkmcnt(%d)' % (6 - rt))
        a('''
        v_pk_mul_f32 v[%d:%d], v[%d:%d], v[230:231] op_sel_hi:[1,0]
        v_pk_fma_f32 v[%d:%d], v[%d:%d], v[230:231], v[230:231] op_sel:[0,0,1] op_sel_hi:[1,0,1]
        v_pk_fma_f32 v[%d:%d], v[%d:%d], v[%d:%d], v[%d:%d] neg_lo:[1,0,0] neg_hi:[1,0,0]
        v_rsq_f32 v%d, v%d
        v_rsq_f32 v%d, v%d
        v_mul_f32 v%d, -v%d, v%d
        v_mul_f32 v%d, -v%d, v%d
        ''' % (64+rt, 65+rt, 64+rt, 65+rt,
               72+rt, 73+rt, 72+rt, 73+rt,
               72+rt, 73+rt, 64+rt, 65+rt, 64+rt, 65+rt, 72+rt, 73+rt,
               ST(rt), 72+rt, ST(rt+1), 73+rt,
               ST(rt)+1, 64+rt, ST(rt), ST(rt+1)+1, 65+rt, ST(rt+1)))
    a.stamp(8)
    P = lambda r: 'v[%d:%d]' % (r, r+1)
    for rt in range(8):
        st = P(ST(rt))
        T = lambda s, k: 96 + 8*s + 2*k
        O = 120 + 4*(rt % 2)
        for s in range(ns):
            a('v_pk_fma_f32 %s, %s, %s, %s op_sel:[0,1,0] op_sel_hi:[1,1,1]' % (P(T(s, 0)), P(16+4*s), st, P(28+4*s)))
            a('v_pk_fma_f32 %s, %s, %s, %s op_sel:[0,1,0] op_sel_hi:[1,1,1]' % (P(T(s, 1)), P(18+4*s), st, P(30+4*s)))
        for s in range(ns):
            a('v_pk_fma_f32 %s, %s, %s, %s op_sel_hi:[1,0,1]' % (P(T(s, 0)), P(ACC(s, rt)), st, P(T(s, 0))))
            a('v_pk_fma_f32 %s, %s, %s, %s op_sel_hi:[1,0,1]' % (P(T(s, 1)), P(ACC(s, rt)+2), st, P(T(s, 1))))
        for s in range(ns):
            a('v_pk_mul_f32 %s, %s, %s' % (P(T(s, 2)), P(T(s, 0)), P(T(s, 0))))
        for s in range(ns):
            a('v_pk_fma_f32 %s, %s, s[56:57], s[56:57] op_sel:[0,0,1] op_sel_hi:[1,0,1]' % (P(T(s, 2)), P(T(s, 2))))
        for s in range(ns):
            a('v_pk_mul_f32 %s, %s, %s' % (P(T(s, 2)), P(T(s, 2)), P(T(s, 0))))
        for s in range(ns):
            a('v_exp_f32 v%d, v%d\nv_exp_f32 v%d, v%d' % (T(s, 2), T(s, 2), T(s, 2)+1, T(s, 2)+1))
        for s in range(ns):
            a('v_pk_mul_f32 %s, %s, %s' % (P(T(s, 0)), P(T(s, 0)), P(T(s, 1))))
        for s in range(ns):
            a('v_pk_add_f32 %s, %s, 1.0 op_sel_hi:[1,0]' % (P(T(s, 2)), P(T(s, 2))))
        for s in range(ns):
            a('v_rcp_f32 v%d, v%d\nv_rcp_f32 v%d, v%d' % (T(s, 2), T(s, 2), T(s, 2)+1, T(s, 2)+1))
        if ns == 1: a('s_nop 0')
        for s in range(ns):
            a('v_pk_mul_f32 %s, %s, %s' % (P(T(s, 0)), P(T(s, 0)), P(T(s, 2))))
        for s in range(ns):
            a('v_cvt_pk_bf16_f32 v%d, v%d, v%d' % (O+s, T(s, 0), T(s, 0)+1))
        if w3:
            a('buffer_store_dword v%d, v229, s[4:7], s54 offen\nbuffer_store_dword v%d, v229, s[4:7], s54 offen offset:1024' % (O, O+1))
        else:
            a('buffer_store_dwordx3 v[%d:%d], v229, s[4:7], s54 offen' % (O, O+2))
        if rt < 7: a('s_add_u32 s54, s54, 45056')
    a.stamp_out(2, 8)
    if not w3: a('s_endpgm')
```

```python
from gen_common import *
from layout import *
from k1 import prologue, wait_args
from k2 import LdsQ
K4_GRID = 256
K4_LDS = 49152
K4_VGPR = 512

def gen_k4():
    a = Asm()
    prologue(a)
    a('''
    s_cmp_ge_u32 s2, %d
    s_cbranch_scc1 K4_end
    s_and_b32 s8, s2, 7
    s_lshr_b32 s9, s2, 3
    s_and_b32 s10, s9, 7                   ; Bd
    s_lshr_b32 s9, s9, 3
    s_lshl_b32 s8, s8, 2
    s_add_u32 s8, s8, s9                   ; rb
    v_lshlrev_b32 v3, 4, v2
    v_mul_u32_u24 v4, 12, v2
    s_lshl_b32 s48, s8, 6
    s_lshl_b32 s49, s3, 2
    s_add_u32 s48, s48, s49
    s_mul_i32 s48, s48, 2816
    s_add_u32 s48, s48, %d                 ; HF soffset  (rt=4rb, G=4w)
    s_add_u32 s49, s48, 45056
    s_add_u32 s50, s49, 45056
    s_add_u32 s51, s50, 45056
    s_lshl_b32 s52, s10, 4
    s_lshl_b32 s53, s3, 2
    s_add_u32 s52, s52, s53
    s_mul_i32 s52, s52, 11264
    s_add_u32 s52, s52, %d                 ; WD soffset
    ; residual: X1T[d][l] d = 64Bd + 4i + c ; l = 64rb + 16w + 4g
    v_and_b32 v5, 15, v2
    v_lshrrev_b32 v6, 4, v2
    v_lshlrev_b32 v7, 14, v5
    v_lshl_add_u32 v7, v6, 3, v7
    s_lshl_b32 s54, s10, 18
    s_lshl_b32 s55, s8, 7
    s_add_u32 s54, s54, s55
    s_lshl_b32 s55, s3, 5
    s_add_u32 s54, s54, s55
    s_add_u32 s54, s54, %d
    v_lshlrev_b32 v8, 4, v5                ; gb voffset
    s_lshl_b32 s55, s10, 8
    s_add_u32 s55, s55, %d
    ; out voffset: row (4g)*1024 + i*8 ; soffset (64rb+16w)*1024 + Bd*128
    v_lshlrev_b32 v9, 12, v6
    v_lshl_add_u32 v9, v5, 3, v9
    s_lshl_b32 s56, s8, 16
    s_lshl_b32 s57, s3, 14
    s_add_u32 s56, s56, s57
    s_lshl_b32 s57, s10, 7
    s_add_u32 s56, s56, s57
    s_mov_b32 s14, 0x200000
    s_mov_b32 s15, 0x20000
    ''' % (K4_GRID, HF_OFF, WD_OFF, X1T_OFF, MOD_OFF + 5*2048))
    def R(k, which, i):
        base = 32*k + 16*which + 4*i
        return ('a', base) if k < 8 else ('v', 128 + base - 256)
    def rs(k, which, i, n=4):
        t, b = R(k, which, i); return '%s[%d:%d]' % (t, b, b+n-1)
    for k in range(2, 12, 3):
        for which in range(2):
            for i in range(4):
                t, b = R(k, which, i)
                a(('v_accvgpr_write_b32 a%d, 0' if t == 'a' else 'v_mov_b32 v%d, 0') % (b+3))
    wait_args(a)
    a('s_mov_b32 s12, s42\ns_mov_b32 s13, s43')
    vq = LdsQ(a, 'vmcnt', 63)
    def loads(k):
        u = k % 3
        for i in range(4):
            if u < 2:
                vq.issue('buffer_load_dwordx4 %s, v3, s[4:7], s%d offen offset:%d' % (rs(k, 0, i), 48+i, 1024*u))
                vq.issue('buffer_load_dwordx4 %s, v3, s[4:7], s52 offen offset:%d' % (rs(k, 1, i), 1024*i), ('L', k))
            else:
                vq.issue('buffer_load_dwordx3 %s, v4, s[4:7], s%d offen offset:2048' % (rs(k, 0, i, 3), 48+i))
                vq.issue('buffer_load_dwordx3 %s, v4, s[4:7], s52 offen offset:%d' % (rs(k, 1, i, 3), 768*i), ('L', k))
        a('s_add_u32 s52, s52, %d' % (4096 if u < 2 else 3072))
        if u == 2:
            for i in range(4): a('s_add_u32 s%d, s%d, 2816' % (48+i, 48+i))
    AH = 7
    for k in range(AH): loads(k)
    a.stamp(2)
    ACC = lambda mt, c: 64 + 16*mt + 4*c
    for k in range(12):
        vq.need(('L', k))
        if k in (0, 4, 8, 11): a.stamp({0: 3, 4: 4, 8: 5, 11: 6}[k])
        for mt in range(4):
            for c in range(4):
                cc = 'v[%d:%d]' % (ACC(mt, c), ACC(mt, c)+3)
                a('v_mfma_f32_16x16x32_bf16 %s, %s, %s, %s' % (cc, rs(k, 0, mt), rs(k, 1, c), cc if k else '0'))
            if mt == 0:
                if k + AH < 12: loads(k + AH)
                if k + AH == 12:
                    for c in range(4):
                        vq.issue('buffer_load_dwordx2 v[%d:%d], v7, s[4:7], s54 offen' % (16+2*c, 17+2*c))
                        if c < 3: a('s_add_u32 s54, s54, 4096')
                    vq.issue('buffer_load_dwordx4 v[24:27], v8, s[4:7], s55 offen', 'RES')
    for w in range(4):
        if w < 3: a('s_cmp_eq_u32 s3, %d\ns_cbranch_scc0 K4_x%d' % (w, w+1))
        a('s_nop 5')
        for mt in range(4):
            if mt == w: continue
            for c in range(4):
                a('ds_write_b128 v3, v[%d:%d] offset:%d' % (ACC(mt, c), ACC(mt, c)+3, mt*12288 + ((w-mt-1) & 3)*4096 + c*1024))
        for i in range(0, 16, 2):
            a('v_mov_b64 v[%d:%d], v[%d:%d]' % (32+i, 33+i, ACC(w, 0)+i, ACC(w, 0)+i+1))
        if w < 3: a('s_branch K4_join\nK4_x%d:' % (w+1))
    a('''
K4_join:
    s_mul_i32 s58, s3, 12288
    v_add_u32 v10, s58, v3
    s_waitcnt lgkmcnt(0)
    s_barrier
    ''')
    a.stamp(7)
    for j in range(12):
        a('ds_read_b128 v[%d:%d], v10 offset:%d' % (64+4*j, 67+4*j, 1024*j))
    vq.need('RES')
    for c in range(4):
        for hlf in range(2):
            a('v_lshlrev_b32 v%d, 16, v%d\nv_and_b32 v%d, 0xffff0000, v%d' % (48+4*c+2*hlf, 16+2*c+hlf, 49+4*c+2*hlf, 16+2*c+hlf))
    for j in range(12):
        a('s_waitcnt lgkmcnt(%d)' % (11-j))
        c = j % 4
        for hlf in range(2):
            r = 32 + 4*c + 2*hlf
            a('v_pk_add_f32 v[%d:%d], v[%d:%d], v[%d:%d]' % (r, r+1, r, r+1, 64+4*j+2*hlf, 65+4*j+2*hlf))
    for c in range(4):
        for hlf in range(2):
            r = 32 + 4*c + 2*hlf
            a('v_pk_fma_f32 v[%d:%d], v[%d:%d], v[%d:%d], v[%d:%d] op_sel:[0,%d,0] op_sel_hi:[1,%d,1]' % (r, r+1, r, r+1, 24 + (c & 2), 25 + (c & 2), r+16, r+17, c & 1, c & 1))
    for reg in range(4):
        a('''
        v_cvt_pk_bf16_f32 v%d, v%d, v%d
        v_cvt_pk_bf16_f32 v%d, v%d, v%d
        buffer_store_dwordx2 v[%d:%d], v9, s[12:15], s56 offen offset:%d
        ''' % (16+2*reg, 32+reg, 36+reg, 17+2*reg, 40+reg, 44+reg, 16+2*reg, 17+2*reg, 1024*reg))
    a.stamp(8); a.stamp_out(3, 8)
    a('K4_end:\ns_endpgm')
    return a.text()
```

```python
class Asm:
    def __init__(self):
        self.lines = []
        self.lbl = 0
    def __call__(self, s):
        for l in s.strip('\n').split('\n'):
            self.lines.append('    ' + l.strip() if not l.strip().endswith(':') else l.strip())
    DIAG = False
    LAST = 3
    def stamp(self, i):
        if not Asm.DIAG: return
        if Asm.DIAG == 2 and i > 0: return
        if i == 0:
            self('s_memrealtime s[78:79]\ns_memtime s[80:81]')
        else:
            self('s_memtime s[%d:%d]' % (80+2*i, 81+2*i))
    def stamp_out(self, kidx, n):
        if not Asm.DIAG: return
        if Asm.DIAG == 2:
            lb = self.label('Ldg%d' % kidx)
            self('s_or_b32 s100, s2, s3\ns_cmp_lg_u32 s100, 0\ns_cbranch_scc1 %s' % lb)
            self('s_waitcnt vmcnt(0)\ns_memrealtime s[100:101]\ns_mov_b64 exec, 1\ns_waitcnt lgkmcnt(0)')
            self('v_mov_b32 v2, s78\nv_mov_b32 v3, s100\nv_mov_b32 v1, %d\nbuffer_store_dwordx2 v[2:3], v1, s[4:7], 0 offen\ns_waitcnt vmcnt(0)' % (0x1000000 + 8*kidx))
            if kidx == Asm.LAST:
                self('s_mov_b64 exec, 0xff\nv_mbcnt_lo_u32_b32 v2, -1, 0\nv_lshlrev_b32 v2, 2, v2\nv_add_u32 v1, 0x1000000, v2\nbuffer_load_dword v3, v1, s[4:7], 0 offen sc1\ns_waitcnt vmcnt(0)\nglobal_store_dword v2, v3, s[44:45]')
            self(lb + ':')
            return
        self('s_waitcnt vmcnt(0)\ns_memtime s[%d:%d]\ns_memrealtime s[100:101]\ns_mov_b64 exec, -1\ns_waitcnt lgkmcnt(0)' % (80+2*(n+1), 81+2*(n+1)))
        self('v_mov_b32 v1, 0\nv_writelane_b32 v1, s78, 0\nv_writelane_b32 v1, s100, 1')
        for i in range(1, n+2):
            self('s_sub_u32 s100, s%d, s80\nv_writelane_b32 v1, s100, %d' % (80+2*i, i+1))
        self('s_getreg_b32 s100, hwreg(HW_REG_XCC_ID)\nv_writelane_b32 v1, s100, 15')
        self('s_lshl_b32 s100, s2, 2\ns_add_u32 s100, s100, s3\ns_lshl_b32 s100, s100, 6\ns_add_u32 s100, s100, %d' % (0x1000000 + kidx*0x20000))
        self('v_mbcnt_lo_u32_b32 v2, -1, 0\nv_mbcnt_hi_u32_b32 v2, -1, v2\nv_lshlrev_b32 v2, 2, v2\ns_mov_b64 exec, 0xffff\nbuffer_store_dword v1, v2, s[4:7], s100 offen')
    def label(self, base='L'):
        self.lbl += 1
        return '%s_%d' % (base, self.lbl)
    def text(self):
        return '\n'.join(self.lines) + '\n'

def kernel_header(name):
    return '.globl %s\n.p2align 8\n.type %s,@function\n%s:\n' % (name, name, name)

def kernel_desc(name, vgpr, sgpr=102, accum=None, wgy=False):
    if accum is None:
        accum = min(256, (vgpr + 3) // 4 * 4)
    s = '.amdhsa_kernel %s\n' % name
    s += '  .amdhsa_next_free_vgpr %d\n  .amdhsa_next_free_sgpr %d\n  .amdhsa_accum_offset %d\n' % (vgpr, sgpr, accum)
    s += '  .amdhsa_group_segment_fixed_size 0\n  .amdhsa_kernarg_size 128\n  .amdhsa_user_sgpr_count 2\n'
    s += '  .amdhsa_user_sgpr_kernarg_segment_ptr 1\n  .amdhsa_system_sgpr_workgroup_id_x 1\n'
    s += '  .amdhsa_float_denorm_mode_32 3\n'
    s += '.end_amdhsa_kernel\n'
    return s

def build(launches, kernels, header=''):
    out = header
    for n, g, b, lds in launches:
        out += '; @launch kernel=%s grid=(%d,1,1) block=(%d,1,1) lds=%d\n' % (n, g, b, lds)
    out += '.amdgcn_target "amdgcn-amd-amdhsa--gfx950"\n.text\n'
    for n, body, vg, acc in kernels:
        out += kernel_header(n) + body
    out += '.section .rodata,"a"\n'
    for n, body, vg, acc in kernels:
        out += '.p2align 6\n' + kernel_desc(n, vg, 102, acc)
    return out
```

```python
class Asm:
    def __init__(self):
        self.lines = []
        self.lbl = 0
    def __call__(self, s):
        for l in s.strip('\n').split('\n'):
            self.lines.append('    ' + l.strip() if not l.strip().endswith(':') else l.strip())
    DIAG = False
    SKIP = False
    LAST = 3
    def stamp(self, i):
        if not Asm.DIAG: return
        if Asm.SKIP and i > 0: return
        if i == 0:
            self('s_memrealtime s[78:79]\ns_memtime s[80:81]')
        else:
            self('s_memtime s[%d:%d]' % (80+2*i, 81+2*i))
    def stamp_out(self, kidx, n):
        if not Asm.DIAG: return
        if Asm.DIAG == 2:
            lb = self.label('Ldg%d' % kidx)
            self('s_or_b32 s100, s2, s3\ns_cmp_lg_u32 s100, 0\ns_cbranch_scc1 %s' % lb)
            self('s_waitcnt vmcnt(0)\ns_memrealtime s[100:101]\ns_mov_b64 exec, 1\ns_waitcnt lgkmcnt(0)')
            self('v_mov_b32 v2, s78\nv_mov_b32 v3, s100\nv_mov_b32 v1, %d\nbuffer_store_dwordx2 v[2:3], v1, s[4:7], 0 offen\ns_waitcnt vmcnt(0)' % (0x1100000 + 8*kidx))
            if kidx == Asm.LAST:
                self('s_mov_b64 exec, 0xff\nv_mbcnt_lo_u32_b32 v2, -1, 0\nv_lshlrev_b32 v2, 2, v2\nv_add_u32 v1, 0x1100000, v2\nbuffer_load_dword v3, v1, s[4:7], 0 offen sc1\ns_waitcnt vmcnt(0)\nglobal_store_dword v2, v3, s[44:45]')
            self(lb + ':')
            return
        self('s_waitcnt vmcnt(0)\ns_memtime s[%d:%d]\ns_memrealtime s[100:101]\ns_mov_b64 exec, -1\ns_waitcnt lgkmcnt(0)' % (80+2*(n+1), 81+2*(n+1)))
        self('v_mov_b32 v1, 0\nv_writelane_b32 v1, s78, 0\nv_writelane_b32 v1, s100, 1')
        for i in range(1, n+2):
            self('s_sub_u32 s100, s%d, s80\nv_writelane_b32 v1, s100, %d' % (80+2*i, i+1))
        self('s_getreg_b32 s100, hwreg(HW_REG_XCC_ID)\nv_writelane_b32 v1, s100, 15')
        self('s_lshl_b32 s100, s2, 2\ns_add_u32 s100, s100, s3\ns_lshl_b32 s100, s100, 6\ns_add_u32 s100, s100, %d' % (0x1100000 + kidx*0x20000))
        self('v_mbcnt_lo_u32_b32 v2, -1, 0\nv_mbcnt_hi_u32_b32 v2, -1, v2\nv_lshlrev_b32 v2, 2, v2\ns_mov_b64 exec, 0xffff\nbuffer_store_dword v1, v2, s[4:7], s100 offen')
    def label(self, base='L'):
        self.lbl += 1
        return '%s_%d' % (base, self.lbl)
    def text(self):
        return '\n'.join(self.lines) + '\n'

def kernel_header(name):
    return '.globl %s\n.p2align 8\n.type %s,@function\n%s:\n' % (name, name, name)

def kernel_desc(name, vgpr, sgpr=102, accum=None, wgy=False):
    if accum is None:
        accum = min(256, (vgpr + 3) // 4 * 4)
    s = '.amdhsa_kernel %s\n' % name
    s += '  .amdhsa_next_free_vgpr %d\n  .amdhsa_next_free_sgpr %d\n  .amdhsa_accum_offset %d\n' % (vgpr, sgpr, accum)
    s += '  .amdhsa_group_segment_fixed_size 0\n  .amdhsa_kernarg_size 128\n  .amdhsa_user_sgpr_count 2\n'
    s += '  .amdhsa_user_sgpr_kernarg_segment_ptr 1\n  .amdhsa_system_sgpr_workgroup_id_x 1\n'
    s += '  .amdhsa_float_denorm_mode_32 3\n'
    s += '.end_amdhsa_kernel\n'
    return s

def build(launches, kernels, header=''):
    out = header
    for n, g, b, lds in launches:
        out += '; @launch kernel=%s grid=(%d,1,1) block=(%d,1,1) lds=%d\n' % (n, g, b, lds)
    out += '.amdgcn_target "amdgcn-amd-amdhsa--gfx950"\n.text\n'
    for n, body, vg, acc in kernels:
        out += kernel_header(n) + body
    out += 'CODE_END:\n.section .rodata,"a"\n'
    for n, body, vg, acc in kernels:
        out += '.p2align 6\n' + kernel_desc(n, vg, 102, acc)
    return out
```

```python
from gen_common import *
from layout import *
LOG2E = 0x3fb8aa3b
INV2PI = 0x3e22f983
def prologue(a):
    a.stamp(0)
    a('''
    s_load_dwordx16 s[16:31], s[0:1], 0
    s_load_dwordx16 s[32:47], s[0:1], 64
    v_lshrrev_b32 v1, 6, v0
    v_and_b32 v2, 63, v0
    v_readfirstlane_b32 s3, v1
    s_mov_b32 s6, 0x2000000
    s_mov_b32 s7, 0x20000
    s_mov_b32 s11, 0x20000
    ''')
def wait_args(a):
    a('''
    s_waitcnt lgkmcnt(0)
    s_mov_b32 s4, s46
    s_mov_b32 s5, s47
    ''')
    a.stamp(1)
def cmul(a, d, x, y, t):
    a('v_pk_mul_f32 v[%d:%d], v[%d:%d], v[%d:%d] op_sel:[0,0] op_sel_hi:[1,0]' % (t, t+1, x, x+1, y, y+1))
    a('v_pk_fma_f32 v[%d:%d], v[%d:%d], v[%d:%d], v[%d:%d] op_sel:[1,1,0] op_sel_hi:[0,1,1] neg_lo:[1,0,0]' % (d, d+1, x, x+1, y, y+1, t, t+1))

N_KG, N_LN, N_MOD, N_WD = 256, 64, 96, 32
K1_GRID = N_KG + N_LN + N_MOD + N_WD
PITCH = 544
CHB = 64*PITCH
K1_LDS = 2*CHB

def gen_k1():
    a = Asm()
    prologue(a)
    a('''
    s_cmp_ge_u32 s2, %d
    s_cbranch_scc1 K1_other
    ''' % N_KG)
    a('''
    s_and_b32 s8, s2, 7
    s_lshr_b32 s9, s2, 3
    s_and_b32 s10, s9, 7
    s_lshr_b32 s9, s9, 3
    s_lshl_b32 s12, s8, 2
    s_add_u32 s12, s12, s9
    s_lshl_b32 s12, s12, 4
    s_add_u32 s12, s12, s10               ; dA
    s_lshr_b32 s9, s3, 1
    s_and_b32 s10, s3, 1                  ; half
    s_lshl_b32 s13, s9, 3
    s_add_u32 s12, s12, s13               ; channel
    s_lshl_b32 s8, s12, 8
    s_lshl_b32 s13, s10, 7
    s_add_u32 s8, s8, s13
    v_lshl_add_u32 v3, v2, 1, s8
    s_lshl_b32 s13, s12, 1
    v_mov_b32 v4, s13
    v_mov_b32 v29, 0
    v_mov_b32 v8, 0
    v_mov_b32 v9, 0
    v_mov_b32 v10, 0
    v_mov_b32 v11, 0
    v_mov_b32 v12, 0
    ''')
    wait_args(a)
    a('''
    global_load_short_d16_hi v12, v4, s[26:27]
    global_load_short_d16_hi v8, v3, s[18:19]
    global_load_short_d16_hi v9, v3, s[20:21]
    global_load_short_d16_hi v10, v3, s[22:23]
    global_load_short_d16_hi v11, v3, s[24:25]
    global_load_short_d16_hi v29, v4, s[28:29]
    s_mul_i32 s14, s9, %d
    s_lshl_b32 s15, s10, 8
    s_add_u32 s15, s15, s14
    s_mov_b32 m0, s15
    ''' % CHB)
    a('''
    v_and_b32 v5, 15, v2                  ; m / n'
    v_lshrrev_b32 v6, 4, v2               ; g
    v_sub_u32 v7, 15, v5
    v_cvt_f32_u32 v7, v7                  ; beta
    v_lshl_add_u32 v13, v6, 4, s14        ; chbase + 16 g
    s_cmp_eq_u32 s10, 0
    ''')
    inv = {1: 0x3f800000, 2: 0x3f000000, 4: 0x3e800000, 8: 0x3e000000}
    for i, (s0, b0, b1) in enumerate([(1, 0, 35), (2, 16, 38), (4, 25, 41), (4, 30, 44)]):
        a('''
        s_mov_b32 s48, 0x%x
        s_cselect_b32 s48, s48, 0x%x
        s_cselect_b32 s49, %d, %d
        v_mul_f32 v14, s48, v7
        v_rndne_f32 v14, v14
        v_cvt_u32_f32 v14, v14
        v_add_u32 v14, s49, v14
        v_mul_u32_u24 v14, %d, v14
        v_add_u32 v%d, v14, v13
        ''' % (inv[s0], inv[8], b0, b1, PITCH, 20+i))
    a('''
    v_sub_u32 v14, 62, v5
    v_mul_u32_u24 v14, %d, v14
    v_add_u32 v24, v14, v13
    v_lshlrev_b32 v25, 5, v5
    v_lshl_add_u32 v25, v6, 3, v25
    s_mul_i32 s50, s12, %d
    s_add_u32 s51, s50, %d               ; pad word address
    s_lshl_b32 s52, s10, 11
    s_sub_u32 s50, s50, s52
    s_add_u32 s50, s50, %d
    v_mov_b32 v26, 0x3f80                 ; z^0 = (1, 0)
    ds_write_addtid_b32 v26 offset:0
    v_mov_b32 v27, 0
    v_lshlrev_b32 v28, 2, v5
    s_waitcnt vmcnt(4)
    v_mul_f32 v12, 0x%x, v12
    v_mul_f32 v8, 0x%x, v8
    v_exp_f32 v12, v12
    v_exp_f32 v8, v8
    s_nop 0
    v_cvt_pk_bf16_f32 v14, v12, v8
    v_lshlrev_b32 v12, 16, v14            ; dt
    v_and_b32 v8, 0xffff0000, v14         ; exp(logA)
    v_mul_f32 v8, v8, v12
    v_mul_f32 v8, 0x%x, v8                ; lr = -Ar dt log2e
    s_waitcnt vmcnt(3)
    v_mul_f32 v9, v9, v12
    v_mul_f32 v9, 0x%x, v9                ; th (revolutions/step)
    v_add_f32 v12, v12, v12
    ''' % (PITCH, KX_PITCH, KX_OFF + 4096, KX_OFF + 2048, LOG2E, LOG2E, LOG2E | 0x80000000, INV2PI))
    Z = lambda m: 32 + 2*m
    Q = lambda k: 68 + 2*k
    def direct(d, p, t):
        a('''
        v_mul_f32 v%d, 0x%x, v8
        v_mul_f32 v%d, 0x%x, v9
        v_exp_f32 v%d, v%d
        v_fract_f32 v%d, v%d
        v_cos_f32 v%d, v%d
        v_sin_f32 v%d, v%d
        ''' % (t, p, t+1, p, t, t, t+1, t+1, d, t+1, d+1, t+1))
    direct(Z(1), 0x3f800000, 88)
    direct(Z(16), 0x41800000, 90)
    direct(Q(1), 0x43800000, 92)
    for d, t in ((Z(1), 88), (Z(16), 90), (Q(1), 92)):
        a('v_pk_mul_f32 v[%d:%d], v[%d:%d], v[%d:%d] op_sel_hi:[1,0]' % (d, d+1, d, d+1, t, t+1))
    a('s_waitcnt vmcnt(0)')
    a.stamp(2)
    a('v_pk_mul_f32 v[84:85], v[10:11], v[12:13] op_sel_hi:[1,0]')
    a('v_and_b32 v30, 127, v0\nv_cmp_eq_u32 vcc, 63, v30\ns_nop 1\nv_cndmask_b32 v29, 0, v29, vcc')
    pk = [0]
    def emit(row, r, neg=False):
        t = 96 + pk[0] % 8; pk[0] += 1
        a('v_cvt_pk_bf16_f32 v%d, v%d, %sv%d' % (t, r, '-' if neg else '', r+1))
        a('ds_write_addtid_b32 v%d offset:%d' % (t, row*PITCH))
    emit(1, Z(1))
    emit(47, 84, True)
    emit(16, Q(1))
    ops = []
    zs = []
    for m in range(2, 16):
        h = m//2
        zs.append((Z(m), Z(h), Z(m-h), m, False))
    cs = []
    for n in range(1, 16):
        cs.append((84 + 2*(n % 2), 84 + 2*((n-1) % 2), Z(16), 47+n, True))
    qs = []
    rowbase = {1: 16, 2: 25, 3: 30, 4: 35, 5: 38, 6: 41, 7: 44}
    for k in range(2, 8):
        h = k//2
        qs.append((Q(k), Q(h), Q(k-h), rowbase[k], False))
    seq = []
    for i in range(15):
        if i < len(zs): seq.append(zs[i])
        seq.append(cs[i])
        if i < len(qs): seq.append(qs[i])
    tt = 0
    for d, x, y, row, neg in seq:
        cmul(a, d, x, y, 88 + 2*(tt % 2)); tt += 1
        emit(row, d, neg)
    for k in range(1, 8):
        step = 2 if k == 1 else (4 if k < 4 else 8)
        for r in range(1, 16//step + 1):
            d = 92 + 2*(tt % 2)
            cmul(a, d, Q(k), Z(step*r), 88 + 2*(tt % 2)); tt += 1
            emit(rowbase[k] + r, d)
    a.stamp(3)
    a('s_waitcnt lgkmcnt(0)\ns_barrier')
    a.stamp(4)
    TOUCH = '''
    buffer_store_dword v27, v28, s[4:7], s51 offen
    '''
    for s in range(8):
        a('ds_read_b128 v[%d:%d], v24 offset:%d' % (32+4*s, 35+4*s, 64*s))
        a('ds_read_b128 v[%d:%d], v20 offset:%d' % (64+4*s, 67+4*s, 64*s))
    a(TOUCH)
    for i in range(4):
        cur = 64 + 32*(i % 2); nxt = 64 + 32*((i+1) % 2)
        for s in range(8):
            if i == 0:
                a('s_waitcnt lgkmcnt(%d)' % (14 - 2*s + s))
            else:
                a('s_waitcnt lgkmcnt(%d)' % (7 if i < 3 else 7 - s))
            c = 'v[%d:%d]' % (128+4*i, 131+4*i)
            a('v_mfma_f32_16x16x32_bf16 %s, v[%d:%d], v[%d:%d], %s' % (c, cur+4*s, cur+4*s+3, 32+4*s, 35+4*s, c if s else '0'))
            if i < 3:
                a('ds_read_b128 v[%d:%d], v%d offset:%d' % (nxt+4*s, nxt+4*s+3, 21+i, 64*s))
        if i > 0:
            j = i-1
            if j == 0: a('v_add_f32 v131, v131, v29')
            a('''
            v_cvt_pk_bf16_f32 v%d, v%d, v%d
            v_cvt_pk_bf16_f32 v%d, v%d, v%d
            buffer_store_dwordx2 v[%d:%d], v25, s[4:7], s50 offen offset:%d
            ''' % (144+2*j, 128+4*j, 129+4*j, 145+2*j, 130+4*j, 131+4*j, 144+2*j, 145+2*j, 512*(3-j)))
    a('''
    s_nop 7
    v_cvt_pk_bf16_f32 v150, v140, v141
    v_cvt_pk_bf16_f32 v151, v142, v143
    buffer_store_dwordx2 v[150:151], v25, s[4:7], s50 offen
    ''')
    a.stamp(5); a.stamp_out(0, 5); a('s_endpgm')
    a('''
K1_other:
    s_setprio 3
    s_mov_b32 s60, 0x05040100
    s_mov_b32 s61, 0x07060302
    s_cmp_ge_u32 s2, %d
    s_cbranch_scc1 K1_notln
    ''' % (N_KG + N_LN))
    a('''
    s_sub_u32 s48, s2, %d
    s_lshl_b32 s8, s48, 2
    s_add_u32 s8, s8, s3                   ; lb
    s_lshl_b32 s9, s8, 13
    v_lshl_add_u32 v3, v2, 4, s9
    v_add_u32 v4, 0x1000, v3
    v_mov_b32 v5, 0x3f803f80
    s_lshl_b32 s49, s48, 15
    s_lshl_b32 s50, s3, 13
    s_add_u32 s49, s49, s50                ; XT2 soffset (wave covers 8 KB)
    s_add_u32 s51, s49, 4096
    v_lshlrev_b32 v96, 6, v2
    v_bfe_u32 v99, v2, 1, 2
    v_xor_b32 v99, s3, v99
    v_lshl_add_u32 v99, v99, 4, v96        ; LDS write addr (swizzled piece)
    v_bfe_u32 v100, v2, 3, 2
    v_xor_b32 v100, v100, v2
    v_lshl_add_u32 v100, v100, 4, s50      ; LDS read addr
    v_lshlrev_b32 v101, 4, v2
    s_lshr_b32 s50, s48, 3
    s_lshl_b32 s50, s50, 2
    s_add_u32 s50, s50, s3
    s_lshl_b32 s50, s50, 12
    v_add_u32 v97, s50, v96
    v_min_u32 v97, CODE_END-k2_kernel-4, v97
    s_getpc_b64 s[52:53]
K1_pc:
    s_add_u32 s52, s52, k2_kernel-K1_pc
    s_addc_u32 s53, s53, 0
    s_cmp_ge_u32 s50, CODE_END-k2_kernel
    s_cbranch_scc1 K1_nopf
    global_load_dword v98, v97, s[52:53]
K1_nopf:
    ''' % N_KG)
    wait_args(a)
    a('''
    s_cmp_gt_u32 s8, 7
    s_cbranch_scc1 K1_nofl
    v_mov_b32 v102, 0
    v_lshlrev_b32 v103, 7, v2
    s_lshl_b32 s54, s8, 13
    s_add_u32 s54, s54, %d
    buffer_store_dword v102, v103, s[4:7], s54 offen
K1_nofl:
    ''' % FLG_OFF)
    IN = lambda r, c: 16 + 4*r + c
    for r in range(8):
        a('global_load_dwordx4 v[%d:%d], v%d, s[16:17] offset:%d' % (IN(r, 0), IN(r, 3), 3 + r//4, 1024*(r % 4)))
    S = lambda r: 48 + r
    Qq = lambda r: 56 + r
    OUT = lambda j, p: 64 + 4*j + p
    def dots(r):
        for c in range(4):
            a('v_dot2_f32_bf16 v%d, v%d, v5, %s' % (S(r), IN(r, c), 'v%d' % S(r) if c else '0'))
            a('v_dot2_f32_bf16 v%d, v%d, v%d, %s' % (Qq(r), IN(r, c), IN(r, c), 'v%d' % Qq(r) if c else '0'))
    for p in range(4):
        a('s_waitcnt vmcnt(%d)' % (6-2*p))
        for j in range(8):
            a('v_perm_b32 v%d, v%d, v%d, s%d' % (OUT(j, p), IN(2*p+1, j//2), IN(2*p, j//2), 60 + j % 2))
            if p == 3: a('ds_write_b128 v99, v[%d:%d] offset:%d' % (OUT(j, 0), OUT(j, 3), 4096*j))
        if p < 2: dots(2*p); dots(2*p+1)
    a.stamp(2)
    dots(4); dots(5)
    a('s_waitcnt lgkmcnt(0)\ns_barrier')
    for j in range(8):
        a('ds_read_b128 v[%d:%d], v100 offset:%d' % (OUT(j, 0), OUT(j, 3), 1024*j))
    dots(6); dots(7)
    for j in range(8):
        a('s_waitcnt lgkmcnt(%d)' % (7-j))
        a('buffer_store_dwordx4 v[%d:%d], v101, s[4:7], s%d offen offset:%d' % (OUT(j, 0), OUT(j, 3), 49 + 2*(j//4), 1024*(j % 4)))
    for r in range(8):
        a('v_permlane32_swap_b32 v%d, v%d' % (S(r), Qq(r)))
    for r in range(8):
        a('v_add_f32 v%d, v%d, v%d' % (S(r), S(r), Qq(r)))
    for i in range(4):
        a('v_permlane16_swap_b32 v%d, v%d' % (S(i), S(i+4)))
    for i in range(4):
        a('v_add_f32 v%d, v%d, v%d' % (S(i), S(i), S(i+4)))
    for sh in (8, 4, 2, 1):
        for i in range(4):
            a('v_add_f32_dpp v%d, v%d, v%d row_ror:%d row_mask:0xf bank_mask:0xf' % (S(i), S(i), S(i), sh))
    for i in range(4):
        a('v_mov_b32 v%d, v%d' % (Qq(i), S(i)))
    a('s_nop 0')
    for i in range(4):
        a('v_permlane32_swap_b32 v%d, v%d' % (S(i), Qq(i)))
    a('v_mov_b32 v6, 0x3727c5ac')
    for i in range(4):
        a('v_mul_f32 v%d, 0x3b000000, v%d' % (S(i), S(i)))
    for i in range(4):
        a('v_fmamk_f32 v%d, v%d, 0x3b000000, v6' % (Qq(i), Qq(i)))
    for i in range(4):
        a('v_fma_f32 v%d, -v%d, v%d, v%d' % (Qq(i), S(i), S(i), Qq(i)))
    RR = lambda i: 8 + 4*(i//2) + i % 2
    for i in range(4):
        a('v_rsq_f32 v%d, v%d' % (RR(i), Qq(i)))
    a('s_nop 0')
    for i in range(4):
        a('v_mul_f32 v%d, -v%d, v%d' % (RR(i)+2, S(i), RR(i)))
    a('''
    v_lshlrev_b32 v7, 9, v2                ; lane 0 -> 0, lane 16 -> 8192
    s_lshl_b32 s9, s8, 4
    s_add_u32 s9, s9, %d
    s_add_u32 s10, s9, 4096
    s_mov_b64 exec, 0x10001
    buffer_store_dwordx4 v[8:11], v7, s[4:7], s9 offen
    buffer_store_dwordx4 v[12:15], v7, s[4:7], s10 offen
    ''' % ST1_OFF)
    a.stamp(3); a.stamp_out(0, 3); a('s_endpgm')
    a('''
K1_notln:
    s_cmp_ge_u32 s2, %d
    s_cbranch_scc1 K1_wd
    ''' % (N_KG + N_LN + N_MOD))
    a('''
    s_sub_u32 s8, s2, %d
    s_and_b32 s9, s8, 7
    s_lshr_b32 s8, s8, 3
    s_lshl_b32 s9, s9, 1
    s_and_b32 s10, s8, 1
    s_add_u32 s9, s9, s10
    s_lshr_b32 s8, s8, 1
    s_lshl_b32 s8, s8, 4
    s_add_u32 s8, s8, s9                   ; column block
    v_and_b32 v3, 3, v0                    ; cq
    v_lshrrev_b32 v4, 2, v0                ; rg
    v_lshlrev_b32 v5, 4, v4                ; c offset
    v_mul_u32_u24 v6, %d, v4
    v_lshl_add_u32 v6, v3, 4, v6
    s_lshl_b32 s9, s8, 6
    ''' % (N_KG + N_LN, 8*6144))
    wait_args(a)
    a('''
    s_mov_b32 s12, s40
    s_mov_b32 s13, s41
    s_mov_b32 s14, %d
    s_mov_b32 s15, 0x20000
    global_load_dwordx4 v[8:11], v5, s[38:39]
    ''' % (512*6144))
    for r in range(8):
        a('buffer_load_dwordx4 v[%d:%d], v6, s[12:15], s9 offen' % (IN(r, 0), IN(r, 3)))
        if r < 7: a('s_add_u32 s9, s9, 6144')
    a('s_waitcnt vmcnt(8)')
    for i in range(4):
        a('v_lshlrev_b32 v%d, 16, v%d\nv_and_b32 v%d, 0xffff0000, v%d' % (48+2*i, 8+i, 49+2*i, 8+i))
    for i in range(8): a('v_mul_f32 v%d, 0x%x, v%d' % (56+i, LOG2E | 0x80000000, 48+i))
    for i in range(8): a('v_exp_f32 v%d, v%d' % (56+i, 56+i))
    for i in range(8): a('v_add_f32 v%d, 1.0, v%d' % (56+i, 56+i))
    for i in range(8): a('v_rcp_f32 v%d, v%d' % (56+i, 56+i))
    for i in range(8): a('v_mul_f32 v%d, v%d, v%d' % (48+i, 48+i, 56+i))
    for p in range(4): a('v_cvt_pk_bf16_f32 v%d, v%d, v%d' % (8+p, 48+2*p, 49+2*p))
    for p in range(4):
        a('s_waitcnt vmcnt(%d)' % (6-2*p))
        for j in range(8):
            a('v_perm_b32 v%d, v%d, v%d, s%d' % (64+j, IN(2*p+1, j//2), IN(2*p, j//2), 60 + j % 2))
        for j in range(8):
            a('v_dot2_f32_bf16 v%d, v%d, v%d, %s' % (48+j, 64+j, 8+p, 'v%d' % (48+j) if p else '0'))
    a('s_nop 2')
    a.stamp(2)
    for j in range(4): a('v_permlane32_swap_b32 v%d, v%d' % (48+j, 52+j))
    for j in range(4): a('v_add_f32 v%d, v%d, v%d' % (48+j, 48+j, 52+j))
    a('s_nop 0')
    for j in range(2): a('v_permlane16_swap_b32 v%d, v%d' % (48+j, 50+j))
    for j in range(2): a('v_add_f32 v%d, v%d, v%d' % (48+j, 48+j, 50+j))
    a('s_nop 0')
    for sh in (8, 4):
        for j in range(2): a('v_add_f32_dpp v%d, v%d, v%d row_ror:%d row_mask:0xf bank_mask:0xf' % (48+j, 48+j, 48+j, sh))
        a('s_nop 0')
    a('''
    v_lshrrev_b32 v4, 4, v2
    v_lshlrev_b32 v4, 3, v4
    v_lshl_add_u32 v4, v3, 5, v4
    s_lshl_b32 s9, s3, 7
    v_add_u32 v4, s9, v4
    ds_write_b64 v4, v[48:49]
    s_waitcnt lgkmcnt(0)
    s_barrier
    s_cmp_lg_u32 s3, 0
    s_cbranch_scc1 K1_end
    v_and_b32 v4, 31, v2
    v_lshlrev_b32 v4, 2, v4
    ds_read2_b32 v[8:9], v4 offset0:0 offset1:32
    ds_read2_b32 v[10:11], v4 offset0:64 offset1:96
    s_lshr_b32 s9, s8, 4
    s_cmp_eq_u32 s9, 1
    s_cselect_b32 s10, 1.0, 0
    s_cmp_eq_u32 s9, 4
    s_cselect_b32 s10, 1.0, s10
    s_lshl_b32 s9, s8, 7
    s_add_u32 s9, s9, %d
    s_waitcnt lgkmcnt(0)
    v_add_f32 v8, v8, v9
    v_add_f32 v10, v10, v11
    v_add_f32 v8, v8, v10
    v_cvt_pk_bf16_f32 v8, v8, v8
    v_and_b32 v8, 0xffff0000, v8
    v_add_f32 v8, s10, v8
    v_cvt_pk_bf16_f32 v8, v8, v8
    v_and_b32 v8, 0xffff0000, v8
    buffer_store_dword v8, v4, s[4:7], s9 offen
    ''' % MOD_OFF)
    a.stamp(3); a.stamp_out(0, 3); a('K1_end:\ns_endpgm')
    a('''
K1_wd:
    s_cmp_ge_u32 s2, %d
    s_cbranch_scc1 K1_end
    s_sub_u32 s8, s2, %d
    s_lshl_b32 s8, s8, 2
    s_add_u32 s8, s8, s3
    s_and_b32 s9, s8, 7                    ; Bd
    s_lshr_b32 s10, s8, 3                  ; G
    v_and_b32 v3, 15, v2
    v_lshrrev_b32 v4, 4, v2                ; g
    v_lshlrev_b32 v3, 3, v3
    v_mul_u32_u24 v5, 6144, v4
    v_add_u32 v5, v5, v3                   ; voffA
    v_lshl_add_u32 v6, v4, 12, v3          ; voffB
    v_mov_b32 v8, 0x40000000
    v_cmp_eq_u32 vcc, 3, v4
    s_mul_i32 s48, s10, %d
    s_lshl_b32 s49, s9, 7
    v_cndmask_b32 v7, v6, v8, vcc          ; voffB for r=1
    s_add_u32 s48, s48, s49                ; base soffset
    s_add_u32 s52, s48, %d
    s_lshl_b32 s54, s9, 4
    s_add_u32 s54, s54, s10
    s_mul_i32 s54, s54, 11264
    s_add_u32 s54, s54, %d
    s_add_u32 s55, s54, 4096
    s_add_u32 s56, s54, 8192
    v_lshlrev_b32 v9, 4, v2
    v_mul_u32_u24 v10, 12, v2
    s_mov_b32 s14, %d
    s_mov_b32 s15, 0x20000
    ''' % (K1_GRID, N_KG + N_LN + N_MOD, 86*1024, 72*1024, WD_OFF, 1376*1024))
    wait_args(a)
    a('s_mov_b32 s12, s36\ns_mov_b32 s13, s37')
    Lr = lambda s, r: 16 + 4*s + 2*r
    for u, ch in enumerate(CHUNK):
        for r in range(2):
            a('s_add_u32 s49, s48, %d' % ((24*u + 3*r)*1024))
            for s in ch[:3]:
                a('buffer_load_dwordx2 v[%d:%d], v5, s[12:15], s49 offen offset:%d' % (Lr(s, r), Lr(s, r)+1, 1024*(s % 3)))
            if len(ch) == 4:
                s = ch[3]
                a('buffer_load_dwordx2 v[%d:%d], v%d, s[12:15], s52 offen offset:%d' % (Lr(s, r), Lr(s, r)+1, 6+r, 1024*(2*r + s - 9)))
    done = 0; nst = 0
    for u, ch in enumerate(CHUNK):
        done += 2*len(ch)
        a('s_waitcnt vmcnt(%d)' % (22 - done + nst))
        for c in range(4):
            o = 64 + 16*u + 4*c
            for j, s in enumerate(ch):
                a('v_perm_b32 v%d, v%d, v%d, s%d' % (o+j, Lr(s, 1) + c//2, Lr(s, 0) + c//2, 60 + c % 2))
            if u < 2:
                a('buffer_store_dwordx4 v[%d:%d], v9, s[4:7], s%d offen offset:%d' % (o, o+3, 54+u, 1024*c))
            else:
                a('buffer_store_dwordx3 v[%d:%d], v10, s[4:7], s56 offen offset:%d' % (o, o+2, 768*c))
            nst += 1
    a.stamp(2); a.stamp_out(0, 2)
    a('s_endpgm')
    return a.text()
```

```python
from gen_common import *
from layout import *
from k1 import prologue, wait_args

class LdsQ:
    def __init__(self, a, cnt='lgkmcnt', maxn=15):
        self.a = a; self.issued = 0; self.pos = {}; self.done = 0; self.cnt = cnt; self.maxn = maxn
    def issue(self, text, tag=None):
        self.a(text); self.issued += 1
        if tag is not None: self.pos[tag] = self.issued
    def need(self, *tags):
        p = max(self.pos[t] for t in tags)
        if p <= self.done: return
        n = min(self.issued - p, self.maxn)
        self.a('s_waitcnt %s(%d)' % (self.cnt, n))
        self.done = self.issued - n
    def drain(self):
        self.a('s_waitcnt %s(0)' % self.cnt); self.done = self.issued

N_CONV = 256
K2_GRID = N_CONV
HB = 0; HBP = 4608
KE = 9216
EX = KE + 4*4160
PX = EX + 16384
K2_LDS = PX + 4096
K2_VGPR = 256
SHADOW_START = 58

def gen_k2():
    a = Asm()
    prologue(a)
    a('''
    s_cmp_ge_u32 s2, %d
    s_cbranch_scc1 K2_end
    s_and_b32 s8, s2, 7                   ; m8
    s_lshr_b32 s9, s2, 3
    s_and_b32 s10, s9, 7                  ; j
    s_lshr_b32 s9, s9, 3                  ; i2
    s_lshl_b32 s12, s8, 2
    s_add_u32 s12, s12, s9                ; 4*m8 + i2
    s_lshl_b32 s13, s12, 4
    s_add_u32 s13, s13, s10               ; dA
    s_lshl_b32 s76, s12, 7
    s_lshl_b32 s15, s10, 12
    s_add_u32 s76, s76, s15               ; XT2 offset within lb32
    v_lshrrev_b32 v3, 2, v0
    v_lshlrev_b32 v3, 15, v3
    v_and_b32 v4, 3, v0
    v_lshl_add_u32 v3, v4, 4, v3
    v_lshlrev_b32 v4, 4, v0
    v_lshlrev_b32 v5, 4, v2               ; lane*16
    s_lshr_b32 s48, s3, 1                 ; k (channel sel of this wave)
    s_and_b32 s49, s3, 1                  ; hh / copy
    s_lshl_b32 s50, s48, 3
    s_add_u32 s50, s50, s13               ; this wave's channel d
    s_mul_i32 s51, s13, %d
    s_add_u32 s51, s51, %d                ; K source soffset (channel A)
    s_add_u32 s73, s51, 8*4224
    s_mul_i32 s52, s3, 4160
    s_add_u32 s52, s52, %d
    s_mov_b32 s53, %d
    s_add_u32 s54, s53, 4096
    s_add_u32 s55, s53, 8192
    s_add_u32 s56, s53, 12288
    s_lshl_b32 s57, s13, 2
    s_add_u32 s57, s57, %d
    ; ---- prep task decode: G = 2*m8 + (i&1), mat = (i>>1)&1, kp = i>>2
    s_lshr_b32 s58, s2, 3
    s_and_b32 s59, s58, 1
    s_lshl_b32 s60, s8, 1
    s_add_u32 s59, s59, s60               ; G
    s_bfe_u32 s60, s58, 0x10001           ; mat
    s_lshr_b32 s61, s58, 2                ; kp
    v_lshrrev_b32 v6, 5, v2               ; plb
    v_and_b32 v7, 7, v2                   ; cg
    v_bfe_u32 v15, v2, 3, 2               ; w'
    v_cmp_eq_u32 s[64:65], 3, v15
    v_mul_u32_u24 v250, 22016, v6
    v_mul_u32_u24 v9, 48, v15
    v_cndmask_b32 v8, 6, 4, s[64:65]
    v_add_u32 v250, v250, v9
    v_mul_u32_u24 v8, v8, v7
    v_and_b32 v9, 2, v8
    v_sub_u32 v8, v8, v9
    v_add_u32 v250, v250, v8
    v_mul_u32_u24 v9, 0x010100, v9
    v_lshlrev_b32 v9, 8, v9
    v_add_u32 v10, 0x01000c0c, v9
    v_add_u32 v11, 0x03020c0c, v9
    v_add_u32 v14, 0x05040c0c, v9
    v_and_b32 v9, 31, v2
    v_cmp_eq_u32 vcc, 31, v9
    v_mov_b32 v8, 0x40000000
    v_mul_u32_u24 v252, 3072, v15
    v_lshl_add_u32 v252, v6, 7, v252
    v_cndmask_b32 v250, v250, v8, vcc     ; W voffset
    v_lshl_add_u32 v252, v7, 4, v252      ; WP voffset
    v_cndmask_b32 v254, v252, v8, s[64:65] ; WP voffset for s=2
    v_mul_u32_u24 v253, 768, v6
    v_mul_u32_u24 v9, 192, v15
    v_add_u32 v253, v253, v9
    v_lshl_add_u32 v253, v7, 2, v253      ; PCS voffset
    s_lshl_b32 s64, s61, 2
    s_add_u32 s64, s64, s3                ; 16-row block index
    s_mul_i32 s77, s64, %d
    s_mul_i32 s65, s59, 172
    s_add_u32 s77, s77, s65               ; W soffset
    v_lshlrev_b32 v251, 5, v6             ; MOD voffset
    s_lshl_b32 s64, s64, 6
    s_add_u32 s64, s64, %d
    s_mov_b32 s71, s60
    s_mov_b32 s69, s64
    s_mov_b32 s68, s73
    s_cmp_eq_u32 s60, 0
    s_cselect_b64 s[74:75], vcc, 0        ; ones mask
    s_mov_b32 s14, %d
    s_mov_b32 s15, 0x20000
    ''' % (N_CONV, KX_PITCH, KX_OFF, KE, ST1_OFF, MOD_OFF, 16*2752, MOD_OFF + 3*2048, 512*2752))
    a('''
    s_lshl_b32 s64, s59, 4
    s_lshl_b32 s65, s61, 1
    s_add_u32 s64, s64, s65
    s_add_u32 s64, s64, s48
    s_mul_i32 s64, s64, 11264
    s_lshl_b32 s65, s60, 9
    s_add_u32 s64, s64, s65
    s_lshl_b32 s65, s49, 8
    s_add_u32 s64, s64, s65
    s_add_u32 s64, s64, %d                 ; WP soffset
    s_lshl_b32 s72, s61, 4
    s_add_u32 s72, s72, s59
    s_mul_i32 s72, s72, 1536
    s_lshl_b32 s73, s3, 6
    s_add_u32 s72, s72, s73
    s_lshl_b32 s73, s60, 5
    s_add_u32 s72, s72, s73
    s_add_u32 s72, s72, %d                 ; PCS soffset  (wave w stores s = w)
    s_cmp_eq_u32 s3, 3
    s_cselect_b32 s72, 0x40000000, s72
    ''' % (WP_OFF, PCS_OFF))
    a('''
    v_and_b32 v6, 15, v2                   ; n / b
    v_lshrrev_b32 v7, 4, v2                ; g
    v_lshrrev_b32 v8, 1, v6
    v_lshlrev_b32 v8, 15, v8
    v_and_b32 v9, 1, v6
    v_lshl_add_u32 v8, v9, 5, v8
    v_lshl_add_u32 v8, v7, 3, v8
    s_lshl_b32 s59, s49, 20
    s_add_u32 s59, s59, s76
    s_lshl_b32 s60, s48, 6
    s_add_u32 s59, s59, s60
    ''')
    a('''
    v_mov_b32 v255, 0
    s_mul_i32 s60, s48, %d
    s_lshl_b32 s61, s49, 8
    s_add_u32 s61, s61, s60
    v_lshl_add_u32 v9, v2, 2, s61
    ds_write_b32 v9, v255 offset:%d
    v_lshl_add_u32 v9, v6, 2, s52
    ds_write_b32 v9, v255 offset:4096
    v_lshlrev_b32 v12, 5, v6
    v_lshl_add_u32 v12, v7, 4, v12
    s_lshl_b32 s61, s49, 8
    s_sub_u32 s61, s60, s61
    s_add_u32 s61, s61, %d
    v_add_u32 v12, s61, v12                ; B address
    v_lshlrev_b32 v13, 5, v6
    v_lshl_add_u32 v13, v7, 3, v13         ; output voffset
    v_lshlrev_b32 v15, 3, v7
    v_sub_u32 v15, v15, v6
    v_add_u32 v15, 2031, v15
    v_and_b32 v9, 1, v15
    v_mul_u32_u24 v9, 4158, v9
    v_lshl_add_u32 v15, v15, 1, v9
    s_mul_i32 s61, s48, 8320
    s_lshl_b32 s73, s49, 8
    s_sub_u32 s61, s61, s73
    s_add_u32 s61, s61, %d
    v_add_u32 v40, s61, v15
    v_subrev_u32 v41, 1024, v40
    v_subrev_u32 v42, 2048, v40
    v_subrev_u32 v43, 3072, v40
    v_add_u32 v44, %d, v4                  ; h write address
    s_lshl_b32 s58, s50, 12
    s_lshl_b32 s73, s49, 11
    s_add_u32 s58, s58, s73
    s_add_u32 s58, s58, %d                 ; output soffset
    s_lshl_b32 s73, s3, 12
    v_add_u32 v45, s73, v5                 ; exchange write addr
    v_xor_b32 v46, 4096, v45
    v_mov_b32 v47, 0x3f803f80
    s_lshl_b32 s70, s50, 2
    s_add_u32 s70, s70, MODGA
    ''' % (HBP, HB, HB + 480 - 192, KE - 512 - 192, HB + 512, X1T_OFF))
    a('s_cmp_eq_u32 s71, 0')
    wait_args(a)
    vq = LdsQ(a, 'vmcnt', 63)
    vq.issue('buffer_load_dwordx4 v[16:19], v3, s[4:7], s76 offen')
    vq.issue('buffer_load_dwordx4 v[20:23], v3, s[4:7], s76 offen offset:64')
    vq.issue('buffer_load_dword v49, off, s[4:7], s57')
    vq.issue('buffer_load_dword v51, off, s[4:7], s57 offset:32')
    vq.issue('buffer_load_dword v48, off, s[4:7], s57 offset:2048')
    vq.issue('buffer_load_dword v50, off, s[4:7], s57 offset:2080')
    for q in range(4): vq.issue('buffer_load_dwordx4 v[%d:%d], v4, s[4:7], s%d offen' % (24+4*q, 27+4*q, 53+q), ('S', q))
    a('s_cselect_b32 s12, s32, s34\ns_cselect_b32 s13, s33, s35\ns_mov_b32 s57, s69')
    vq.issue('buffer_load_dwordx4 v[96:99], v4, s[4:7], s51 offen')
    vq.issue('buffer_load_dword v100, v4, s[4:7], s51 offen offset:16', 'K0')
    vq.issue('buffer_load_dwordx4 v[104:107], v4, s[4:7], s68 offen')
    vq.issue('buffer_load_dword v108, v4, s[4:7], s68 offen offset:16', 'K1')
    a.stamp(2)
    for q in range(4):
        vq.need(('S', q))
        for k in range(2):
            x = 16 + 4*k + q; t = 52 + 2*k
            a('''
            v_lshlrev_b32 v%d, 16, v%d
            v_and_b32 v%d, 0xffff0000, v%d
            v_pk_fma_f32 v[%d:%d], v[%d:%d], v[%d:%d], v[%d:%d]
            v_pk_fma_f32 v[%d:%d], v[%d:%d], v[%d:%d], v[%d:%d] op_sel:[0,0,1] op_sel_hi:[1,0,1]
            v_cvt_pk_bf16_f32 v%d, v%d, v%d
            ''' % (t, x, t+1, x, t, t+1, t, t+1, 24+4*q, 25+4*q, 26+4*q, 27+4*q,
                   t, t+1, t, t+1, 48+2*k, 49+2*k, 48+2*k, 49+2*k, 56+4*k+q, t, t+1))
    a('ds_write_b128 v44, v[56:59]\nds_write_b128 v44, v[60:63] offset:%d' % HBP)
    for k in range(2):
        vq.need('K%d' % k)
        b = 96 + 8*k
        a('ds_write_b128 v4, v[%d:%d] offset:%d' % (b, b+3, KE + 8320*k))
        for i in range(4): a('v_alignbit_b32 v%d, v%d, v%d, 16' % (112+4*k+i, b+i+1, b+i))
        a('ds_write_b128 v4, v[%d:%d] offset:%d' % (112+4*k, 115+4*k, KE + 8320*k + 4160))
    a.stamp(3)
    a('s_waitcnt lgkmcnt(0)')
    a.stamp(4)
    a('s_barrier')
    a.stamp(5)
    q_ = LdsQ(a)
    ACC = lambda t: 64 + 4*t
    AF = lambda q: 96 + 4*q
    BF = lambda st, d: 128 + 32*st + 4*d
    rend = [sum(8-i for i in range(q+1)) for q in range(8)]
    def ra(it, q):
        o = (1 - (q & 1))*128 + (3 - it)*16
        e = 36*(it-1) + rend[q] - 1
        return [('ds_read2_b32 v[%d:%d], v%d offset0:%d offset1:%d' % (AF(q), AF(q)+1, 40 + q//2, o, o+1), None, e),
                ('ds_read2_b32 v[%d:%d], v%d offset0:%d offset1:%d' % (AF(q)+2, AF(q)+3, 40 + q//2, o+2, o+3), ('A', it, q), e)]
    def rb(it, d):
        return [('ds_read_b128 v[%d:%d], v12 offset:%d' % (BF(it % 2, d), BF(it % 2, d)+3, 512*d + 64*(3-it)), ('B', it, d), 36*(it-1))]
    first = ra(0, 0) + sum((rb(0, d) for d in range(8)), []) + sum((ra(0, q) for q in range(1, 8)), [])
    for t, tag, _ in first[:12]: q_.issue(t, tag)
    pend = first[12:]
    for it in range(1, 4):
        pend += ra(it, 0) + sum((rb(it, d) for d in range(8)), []) + sum((ra(it, q) for q in range(1, 8)), [])
    sh = []
    OUT = lambda s, p: 232 + 4*s + p
    CS = lambda s: 244 + s
    BI = lambda s: 247 + s
    SX = lambda r, s: 56 + 3*r + s
    for p in range(4):
        for r in range(2):
            e = 2*p + r; d0 = 200 + 2*e
            for s, sel in enumerate((10, 11, 14)):
                sh.append(('v_perm_b32 v%d, v%d, v%d, v%d' % (52+s, d0+1, d0, sel), ('W', e)))
            for s in range(3): sh.append(('v_mul_f32 v%d, v%d, v%d' % (SX(r, s), 52+s, 216+e), None))
            for s in range(3): sh.append((('v_mul_f32 v%d, v%d, v%d' if e == 0 else 'v_fmac_f32 v%d, v%d, v%d') % (BI(s), 52+s, 224+e), None))
            if e == 1:
                for s in range(3): sh.append(('v_add_f32 v%d, v%d, v%d' % (CS(s), SX(0, s), SX(1, s)), None))
            elif e > 1:
                for s in range(3): sh.append(('v_add_f32 v%d, v%d, v%d' % (CS(s), CS(s), SX(r, s)), None))
        for s in range(3): sh.append(('v_cvt_pk_bf16_f32 v%d, v%d, v%d' % (OUT(s, p), SX(0, s), SX(1, s)), None))
        sh.append(('v_cndmask_b32 v%d, v%d, v47, s[74:75]' % (OUT(0, p), OUT(0, p)), None))
    ST = 'ST'
    for s in (1, 2, 0):
        sh.append(('buffer_store_dwordx4 v[%d:%d], v%d, s[4:7], s64 offen offset:%d' % (OUT(s, 0), OUT(s, 3), 254 if s == 2 else 252, 1024*s), ST))
    for s in range(3): sh.append(('v_permlane32_swap_b32 v%d, v%d' % (CS(s), BI(s)), None))
    for s in range(3): sh.append(('v_add_f32 v%d, v%d, v%d' % (CS(s), CS(s), BI(s)), None))
    for i in range(8):
        sh.append(('v_lshlrev_b32 v%d, 16, v%d' % (16+2*i, 192+i), 'XD')); sh.append(('v_and_b32 v%d, 0xffff0000, v%d' % (17+2*i, 192+i), None))
    WL = lambda e: ('buffer_load_dwordx2 v[%d:%d], v250, s[12:15], s77 offen\ns_add_u32 s77, s77, 2752' % (200+2*e, 201+2*e), ('W', e))
    early = [('buffer_load_dwordx4 v[224:227], v251, s[4:7], s57 offen', None),
             ('buffer_load_dwordx4 v[216:219], v251, s[4:7], s57 offen offset:2048', None)] + [WL(e) for e in range(4)] + [
             ('buffer_load_dwordx4 v[228:231], v251, s[4:7], s57 offen offset:16', None),
             ('buffer_load_dwordx4 v[220:223], v251, s[4:7], s57 offen offset:2064', None)] + [WL(e) for e in range(4, 8)]
    early.append(('buffer_load_dword v63, off, s[4:7], s70', None))
    for i in range(4):
        early.append(('buffer_load_dwordx2 v[%d:%d], v8, s[4:7], s59 offen\ns_add_u32 s59, s59, 0x40000' % (192+2*i, 193+2*i), 'XD'))
    g = 0
    for it in range(4):
        for q in range(8):
            for t in range(q, 8):
                q_.need(('A', it, q), ('B', it, t-q))
                c = 'v[%d:%d]' % (ACC(t), ACC(t)+3)
                a('v_mfma_f32_16x16x32_bf16 %s, v[%d:%d], v[%d:%d], %s' % (c, AF(q), AF(q)+3, BF(it % 2, t-q), BF(it % 2, t-q)+3, c if (it or q) else '0'))
                n = 0
                maxl = 2 if (g % 36) >= 30 or g < SHADOW_START else 1
                while n < maxl:
                    k = next((i for i, x in enumerate(pend[:12]) if x[2] <= g), None)
                    if k is None: break
                    tx, tag, _ = pend.pop(k); q_.issue(tx, tag); n += 1
                while n < 2 and sh and g >= SHADOW_START:
                    tx, tag = sh.pop(0)
                    if tag == ST: vq.issue(tx)
                    else:
                        if tag: vq.need(tag)
                        a(tx)
                    n += 1
                if early and g % 4 == 0:
                    tx, tag = early.pop(0); vq.issue(tx, tag)
                g += 1
    assert not pend, pend
    print('K2 shadow leftover', len(sh))
    for tx, tag in sh:
        if tag and tag != ST: vq.need(tag)
        a(tx)
    a.stamp(6)
    a('''
    s_cmp_eq_u32 s49, 0
    s_cbranch_scc0 K2_hi
    s_nop 6
    ''')
    def exch(send, keep):
        for i in range(4):
            a('ds_write_b128 v45, v[%d:%d] offset:%d' % (ACC(send+i), ACC(send+i)+3, EX + 1024*i))
        for i in range(16):
            a('v_fmac_f32 v%d, v63, v%d' % (16+i, ACC(keep)+i))
    exch(4, 0)
    a('s_branch K2_join\nK2_hi:')
    exch(0, 4)
    a('K2_join:')
    a('v_lshrrev_b32 v9, 2, v45\nv_lshlrev_b32 v62, 2, v0')
    for s in range(3): a('ds_write_b32 v9, v%d offset:%d' % (CS(s), PX + 256*s))
    a('s_waitcnt lgkmcnt(0)\ns_barrier')
    for i in range(4):
        a('ds_read_b128 v[%d:%d], v46 offset:%d' % (96+4*i, 99+4*i, EX + 1024*i))
    a('ds_read2st64_b32 v[56:57], v62 offset0:%d offset1:%d' % (PX//256, PX//256 + 4))
    a('ds_read2st64_b32 v[58:59], v62 offset0:%d offset1:%d' % (PX//256 + 8, PX//256 + 12))
    for i in range(4):
        a('s_waitcnt lgkmcnt(%d)' % (5-i))
        for e in range(4):
            a('v_fmac_f32 v%d, v63, v%d' % (16+4*i+e, 96+4*i+e))
        a('''
        v_cvt_pk_bf16_f32 v%d, v%d, v%d
        v_cvt_pk_bf16_f32 v%d, v%d, v%d
        buffer_store_dwordx2 v[%d:%d], v13, s[4:7], s58 offen offset:%d
        ''' % (32+2*i, 16+4*i, 17+4*i, 33+2*i, 18+4*i, 19+4*i, 32+2*i, 33+2*i, 512*i))
    a('s_waitcnt lgkmcnt(0)\nv_add_f32 v56, v56, v57\nv_add_f32 v58, v58, v59\nv_add_f32 v56, v56, v58\nbuffer_store_dword v56, v253, s[4:7], s72 offen')
    a.stamp(7); a.stamp_out(1, 7)
    a('K2_end:\ns_endpgm')
    return a.text().replace('MODGA', str(MOD_OFF + 4096))
```

```python
from gen_common import *
from layout import *
from k1 import prologue, wait_args
from k2 import LdsQ
import struct
def fhex(x): return '0x%08x' % struct.unpack('<I', struct.pack('<f', x))[0]
K3_GRID = 256
SCR = 131072
SCS = SCR + 8192
SCT = SCS + 2048
SCX = SCT + 1536
K3_LDS = SCX + 4096
GK0 = -2*0.7978845608028654*1.4426950408889634
GK1 = GK0*0.044715
AHEAD = 4
UNR = 6
FUSED = True
SC = ' sc1'
WD_TAIL = 16
WD_EPI = 18
LA = 20
NEARLY = 1
FLAG_POS = 8
POLL_LEAD = [4, 4]
WD_SCHED = [(1,1,0,1)]*2 + [(1,1,0,0)]*6
HOOK2_AT = 12
FLAGB_AFTER = 7

class FQ(LdsQ):
    force = False
    def need(self, *tags):
        if self.force: self.done = 0
        LdsQ.need(self, *tags)

def WFr(ks, s):
    st = ks % UNR
    return ('a', 192 + 12*st + 4*s) if st < 5 else ('v', 40 + 4*s)
def rr(t, n=4): return '%s[%d:%d]' % (t[0], t[1], t[1]+n-1)
WDr = lambda k, c: ('a', 16*k + 4*c)
HFr = lambda k, j: ('v', 64 + 16*k + 4*j)
AC4 = lambda j, c: ('a', 192 + 16*j + 4*c)

def wd_loads():
    L = []
    for k in range(12):
        u = k % 3
        for c in range(4):
            if u < 2: t = 'buffer_load_dwordx4 %s, v52, s[4:7], s60 offen offset:%d' % (rr(WDr(k, c)), 1024*c)
            else: t = 'buffer_load_dwordx3 %s, v53, s[4:7], s60 offen offset:%d' % (rr(WDr(k, c), 3), 768*c)
            if c == 3: t += '\ns_add_u32 s60, s60, %d' % (4096 if u < 2 else 3072)
            L.append((t, ('WD', k)))
    return L

def k4_setup(a):
    a('''
    v_lshlrev_b32 v52, 4, v2
    v_mul_u32_u24 v53, 12, v2
    s_lshl_b32 s60, s62, 4
    s_lshl_b32 s63, s3, 2
    s_add_u32 s60, s60, s63
    s_mul_i32 s60, s60, 11264
    s_add_u32 s60, s60, %d                 ; WD soffset
    ''' % WD_OFF)
    for k in range(2, 12, 3):
        for c in range(4): a('v_accvgpr_write_b32 a%d, 0' % (WDr(k, c)[1]+3))

def k4_setup2(a):
    a('''
    s_lshr_b32 s63, s61, 1
    s_lshl_b32 s63, s63, 3
    s_and_b32 s64, s61, 1
    s_add_u32 s63, s63, s64                ; rt of q=0
    s_lshl_b32 s64, s63, 4
    s_lshl_b32 s65, s3, 2
    s_add_u32 s64, s64, s65
    s_mul_i32 s64, s64, 3072
    s_add_u32 s64, s64, %d                 ; HF soffset (q=0, G=4w)
    s_lshl_b32 s65, s3, 1
    s_add_u32 s63, s63, s65                ; own rt
    v_and_b32 v57, 15, v2
    v_lshrrev_b32 v58, 4, v2
    v_lshlrev_b32 v59, 14, v57
    v_lshl_add_u32 v59, v58, 3, v59        ; residual voffset
    s_lshl_b32 s70, s62, 18
    s_lshl_b32 s71, s63, 5
    s_add_u32 s70, s70, s71
    s_add_u32 s70, s70, %d
    v_lshlrev_b32 v60, 4, v57              ; gb voffset
    s_lshl_b32 s71, s62, 8
    s_add_u32 s71, s71, %d
    v_lshlrev_b32 v61, 12, v58
    v_lshl_add_u32 v61, v57, 3, v61        ; out voffset
    s_lshl_b32 s72, s63, 14
    s_lshl_b32 s73, s62, 7
    s_add_u32 s72, s72, s73
    s_lshl_b32 s73, s3, 12
    v_add_u32 v54, s73, v52                ; exchange write addr
    s_lshl_b32 s73, s3, 14
    v_add_u32 v55, s73, v52                ; exchange read addr
    s_mov_b32 s14, 0x200000
    s_mov_b32 s15, 0x20000
    ''' % (HF_OFF, X1T_OFF, MOD_OFF + 5*2048))

def k4_main(a, vq, wd_rest, sc, kidx, st0, hooks={}):
    a('s_mov_b32 s12, s42\ns_mov_b32 s13, s43')
    HR = lambda q, k: ('v', 64 + 4*(12*q + k))
    def hl(q, k):
        t = 'buffer_load_dwordx4 %s, v52, s[4:7], s64 offen offset:%d%s' % (rr(HR(q, k)), 1024*(k % 4), sc)
        if k % 4 == 3: t += '\ns_add_u32 s64, s64, %d' % (4096 + (0 if k < 11 else 2*49152 - 12288))
        return (t, ('H', q, k))
    if hooks: Q = list(wd_rest) + [hl(q, k) for q in range(4) for k in range(12)]
    else:
        Q = []
        for k in range(12): Q += [x for x in wd_rest if x[1] == ('WD', k)] + [hl(0, k)]
        Q += [hl(q, k) for q in range(1, 4) for k in range(12)]
    for c in range(4):
        Q.append(('buffer_load_dwordx2 v[%d:%d], v59, s[4:7], s70 offen\ns_add_u32 s70, s70, 4096' % (16+2*c, 17+2*c), None))
    Q.append(('buffer_load_dwordx4 v[24:27], v60, s[4:7], s71 offen', 'RES'))
    for pos in sorted(hooks, reverse=True):
        Q[pos:pos] = [('HOOK', f) for f in hooks[pos]]
    def pop():
        t, tag = Q.pop(0)
        if t == 'HOOK': tag(vq)
        else: vq.issue(t, tag)
    def pump(cur):
        while Q and vq.issued - vq.done < LA:
            if Q[0][0] == 'HOOK' and getattr(Q[0][1], 'wait', None) and cur >= 0 and vq.pos[Q[0][1].wait] > vq.done: break
            pop()
    sends = []
    pump(-1)
    a.stamp(st0)
    for q in range(4):
        for k in range(12):
            while ('H', q, k) not in vq.pos: pop()
            pump(12*q + k)
            vq.need(('H', q, k), ('WD', k))
            if (q, k) == (0, 0): a.stamp(st0+1)
            for c in range(4):
                cc = rr(AC4(q, c))
                a('v_mfma_f32_16x16x32_bf16 %s, %s, %s, %s' % (cc, rr(HR(q, k)), rr(WDr(k, c)), cc if k else '0'))
                if c == 0: pump(12*q + k)
                if c == 2 and sends and k >= 2: a(sends.pop(0))
        sends = ['ds_write_b128 v54, %s offset:%d' % (rr(AC4(q, c)), 16384*q + 1024*c) for c in range(4)]
    assert not Q
    a.stamp(st0+2)
    vq.need('RES')
    for c in range(4):
        for hlf in range(2):
            a('v_lshlrev_b32 v%d, 16, v%d\nv_and_b32 v%d, 0xffff0000, v%d' % (32+4*c+2*hlf, 16+2*c+hlf, 33+4*c+2*hlf, 16+2*c+hlf))
        if c == 1:
            for x in sends: a(x)
    a('s_waitcnt lgkmcnt(0)\ns_barrier')
    for j in range(16):
        a('ds_read_b128 v[%d:%d], v55 offset:%d' % (64+4*j, 67+4*j, 1024*((j % 4)*4 + j//4)))
    for c in range(4):
        a('s_waitcnt lgkmcnt(%d)' % (12-4*c))
        b = 64 + 16*c
        for hlf in range(2):
            r = b + 2*hlf
            a('v_pk_add_f32 v[%d:%d], v[%d:%d], v[%d:%d]' % (r, r+1, r, r+1, r+4, r+5))
            a('v_pk_add_f32 v[%d:%d], v[%d:%d], v[%d:%d]' % (r+8, r+9, r+8, r+9, r+12, r+13))
        for hlf in range(2):
            r = b + 2*hlf
            a('v_pk_add_f32 v[%d:%d], v[%d:%d], v[%d:%d]' % (r, r+1, r, r+1, r+8, r+9))
        for hlf in range(2):
            r = b + 2*hlf; d = 32 + 4*c + 2*hlf
            a('v_pk_fma_f32 v[%d:%d], v[%d:%d], v[%d:%d], v[%d:%d] op_sel:[0,%d,0] op_sel_hi:[1,%d,1]' % (d, d+1, r, r+1, 24 + (c & 2), 25 + (c & 2), d, d+1, c & 1, c & 1))
    for reg in range(4):
        a('''
        v_cvt_pk_bf16_f32 v%d, v%d, v%d
        v_cvt_pk_bf16_f32 v%d, v%d, v%d
        buffer_store_dwordx2 v[%d:%d], v61, s[12:15], s72 offen offset:%d
        ''' % (16+2*reg, 32+reg, 36+reg, 17+2*reg, 40+reg, 44+reg, 16+2*reg, 17+2*reg, 1024*reg))
    a.stamp_out(kidx, st0+2)

def gen_k4():
    a = Asm()
    prologue(a)
    a('''
    s_cmp_ge_u32 s2, 256
    s_cbranch_scc1 K4_end
    s_and_b32 s8, s2, 7
    s_lshr_b32 s9, s2, 3
    s_and_b32 s62, s9, 7
    s_lshr_b32 s9, s9, 3
    s_lshl_b32 s8, s8, 2
    s_add_u32 s61, s8, s9
    ''')
    k4_setup(a); k4_setup2(a)
    wait_args(a)
    k4_main(a, LdsQ(a, 'vmcnt', 63), wd_loads(), '', 3, 2)
    a('K4_end:\ns_endpgm')
    return a.text()

def gen_k3():
    a = Asm()
    prologue(a)
    a('''
    s_cmp_ge_u32 s2, %d
    s_cbranch_scc1 K3_end
    s_and_b32 s8, s2, 7
    s_lshr_b32 s9, s2, 3
    s_and_b32 s62, s9, 7                   ; Bd (phase 2)
    s_and_b32 s61, s8, 1
    s_lshl_b32 s12, s61, 3
    s_add_u32 s10, s62, s12                ; G
    s_lshr_b32 s9, s9, 3
    s_lshr_b32 s8, s8, 1
    s_lshl_b32 s8, s8, 2
    s_add_u32 s8, s8, s9                   ; mt
    s_lshl_b32 s12, s8, 1
    s_add_u32 s61, s61, s12                ; rb (phase 2)
    v_lshrrev_b32 v4, 4, v2                ; g
    v_bfe_u32 v5, v2, 1, 3                 ; p
    s_and_b32 s12, s3, 1
    s_lshl_b32 s12, s12, 2
    v_or_b32 v6, s12, v4                   ; f(ch)
    v_xor_b32 v5, v5, v6                   ; logical slot
    v_lshlrev_b32 v5, 5, v5
    v_and_b32 v6, 1, v2
    v_lshl_add_u32 v5, v6, 4, v5
    v_lshl_add_u32 v3, v4, 12, v5          ; DMA voffset
    s_lshl_b32 s48, s3, 15
    s_lshl_b32 s49, s8, 8
    s_add_u32 s48, s48, s49
    s_add_u32 s48, s48, %d                 ; DMA soffset
    s_add_u32 s55, s48, 0x3c00
    s_lshl_b32 s49, s3, 11                 ; LDS dest
    v_bfe_u32 v5, v2, 1, 1
    v_lshlrev_b32 v7, 9, v5
    v_lshl_add_u32 v7, v4, 7, v7
    v_bfe_u32 v5, v2, 2, 2
    v_lshl_add_u32 v7, v5, 5, v7
    v_lshl_add_u32 v7, v6, 4, v7           ; W' voffset
    s_mul_i32 s50, s10, %d
    s_mul_i32 s51, s3, 3072
    s_add_u32 s50, s50, s51
    s_add_u32 s50, s50, %d                 ; W' soffset
    s_mov_b32 m0, s49
    v_and_b32 v6, 1, v4
    v_lshl_or_b32 v6, v6, 2, v5            ; F = r | (g&1)<<2
    v_lshl_add_u32 v16, v4, 3, v5          ; 8g + r
    v_lshlrev_b32 v16, 8, v16
    v_and_b32 v17, 3, v2
    v_lshl_add_u32 v16, v17, 3, v16
    ''' % (K3_GRID, X1T_OFF, 16*11264, WP_OFF))
    for rt in range(8):
        a('v_xor_b32 v17, %d, v6\nv_lshl_add_u32 v%d, v17, 5, v16' % (rt, 8+rt))
    a('s_cmp_eq_u32 s3, 3\ns_cbranch_scc1 K3_w3')
    path(a, False)
    a('K3_w3:')
    path(a, True)
    if FUSED:
        a('K3_p2:')
        phase2(a)
    a('K3_end:\ns_endpgm')
    return a.text()

def setup2(a):
    a('''
    v_lshlrev_b32 v224, 3, v0              ; PCS voffset
    s_mul_i32 s52, s10, 1536
    s_add_u32 s52, s52, %d
    s_lshl_b32 s54, s8, 7
    s_add_u32 s54, s54, s10
    s_mul_i32 s54, s54, 3072
    s_add_u32 s54, s54, %d                 ; HF soffset
    s_mov_b32 s56, %s
    s_mov_b32 s57, %s
    v_and_b32 v225, 15, v2                 ; n
    v_lshl_add_u32 v226, v5, 4, v225
    v_lshlrev_b32 v226, 4, v226
    v_and_b32 v227, 3, v2
    v_lshl_add_u32 v226, v227, 2, v226
    v_add_u32 v226, %d, v226               ; sumsq read addr
    v_lshlrev_b32 v227, 2, v225
    v_add_u32 v227, %d, v227               ; sum read addr
    v_lshrrev_b32 v228, 3, v0
    v_lshlrev_b32 v228, 6, v228
    v_and_b32 v229, 3, v0
    v_lshl_add_u32 v228, v229, 4, v228
    v_bfe_u32 v229, v0, 2, 1
    v_lshl_add_u32 v228, v229, 3, v228
    v_add_u32 v228, %d, v228               ; table write addr
    s_mul_i32 s53, s3, 192
    s_add_u32 s53, s53, %d
    v_lshl_add_u32 v232, v4, 4, s53        ; table read addr
    v_mov_b32 v230, 0x3b000000
    v_mov_b32 v231, 0x3727c5ac
    s_mov_b32 s59, 0
    ''' % (PCS_OFF, HF_OFF, fhex(GK1), fhex(GK0), SCR, SCS + 192, SCT, SCT))

NWD_DONE = WD_TAIL + WD_EPI
def FLAG(i): return 's_mov_b64 exec, s[76:77]\nbuffer_store_dword v56, v11, s[4:7], s66 offen offset:%d sc1\ns_mov_b64 exec, -1' % (128*i)
def poll_check(a, vq, q):
    lb = 'K3_poll%d' % q
    vq.need(('P', q))
    a('''
    v_cmp_ne_u32 vcc, 1, v62
    s_cbranch_vccz %s_x
    s_mov_b32 s75, 0
%s:
    buffer_load_dword v62, v63, s[4:7], s74 offen offset:%d sc1
    s_add_u32 s75, s75, 1
    s_cmp_gt_u32 s75, 0x40000
    s_cbranch_scc1 %s_y
    s_waitcnt vmcnt(0)
    v_cmp_ne_u32 vcc, 1, v62
    s_cbranch_vccnz %s
%s_y:
    s_waitcnt vmcnt(0)
%s_x:
    ''' % (lb, lb, 128*q, lb, lb, lb, lb))

ENTRY = {}
def phase2(a):
    vq = LdsQ(a, 'vmcnt', 63)
    W = wd_loads()
    vq.issued = ENTRY['issued']; vq.done = ENTRY['done']; vq.pos = dict(ENTRY['pos'])
    nw = 48 - NWD_DONE
    hooks = {}
    def add(pos, f): hooks.setdefault(max(pos, 0), []).append(f)
    def fl(vq):
        vq.need(('S', 7)); a('s_barrier'); vq.issue(FLAG(1))
    add(FLAG_POS, fl)
    for q in range(2):
        def pi(vq, q=q): vq.issue('buffer_load_dword v62, v63, s[4:7], s74 offen offset:%d sc1' % (128*q), ('P', q))
        def pc(vq, q=q): poll_check(a, vq, q)
        pc.wait = ('P', q)
        add(nw + 12*q*NEARLY - POLL_LEAD[q], pi)
        add(nw + 12*q*NEARLY, pc)
    k4_main(a, vq, W[NWD_DONE:], SC, 2, 6, hooks)

def path(a0, w3):
    ns = 2 if w3 else 3
    a = a0
    vq = FQ(a, 'vmcnt', 63)
    lq = FQ(a)
    ACC = lambda s, rt: 128 + 32*s + 4*rt
    XF = lambda st, rt: 64 + 32*st + 4*rt
    sc = SC if FUSED else ''
    def loads(ks):
        L = [('buffer_load_dwordx4 v3, s[4:7], s48 offen lds\ns_add_u32 s48, s48, 0x20000', None),
             ('buffer_load_dwordx4 v3, s[4:7], s55 offen offset:1024 lds\ns_add_u32 s55, s55, 0x20000\ns_add_u32 s49, s49, 0x2000', ('D', ks))]
        for s in range(ns):
            t = 'buffer_load_dwordx4 %s, v7, s[4:7], s50 offen offset:%d' % (rr(WFr(ks, s)), 1024*s)
            if s == 0: t += '\ns_mov_b32 m0, s49'
            if s == ns-1: t += '\ns_add_u32 s50, s50, 11264'
            L.append((t, ('W', ks)))
        return L
    def trs(ks, base):
        L = []
        for rt in range(8):
            for h in range(2):
                r = XF(ks % 2, rt) + 2*h
                L.append(('ds_read_b64_tr_b16 v[%d:%d], v%d offset:%d' % (r, r+1, 8+rt, (32*(ks-base) + 4*h)*256), ('X', ks, rt)))
        return L
    for r in range(128, 224, 2): a('v_mov_b64 v[%d:%d], 0' % (r, r+1))
    wait_args(a)
    for ks in range(2):
        for t, tag in loads(ks): vq.issue(t, tag)
    setup2(a)
    if w3:
        a('v_lshlrev_b32 v233, 4, v2\nv_add_u32 v233, %d, v233\nv_lshlrev_b32 v234, 2, v2\nv_add_u32 v234, %d, v234' % (SCR, SCS))
    else:
        a('''
        v_lshlrev_b32 v229, 4, v2
        s_lshl_b32 s58, s3, 10
        s_add_u32 s54, s54, s58
        s_and_b32 s58, s3, 1
        s_lshl_b32 s58, s58, 11
        s_add_u32 s58, s58, %d
        v_lshl_add_u32 v234, v2, 2, s58
        ''' % SCX)
    for ks in range(2, AHEAD):
        for t, tag in loads(ks): vq.issue(t, tag)
    late = []
    if FUSED:
        lt = Asm(); k4_setup(lt); k4_setup2(lt)
        lt('''
        s_lshl_b32 s74, s8, 12
        s_add_u32 s74, s74, %d
        s_lshl_b32 s66, s10, 8
        s_add_u32 s66, s66, s74                ; own flag lines
        s_lshl_b32 s75, s3, 10
        s_add_u32 s74, s74, s75                ; flags to poll
        v_and_b32 v63, 3, v2
        v_lshlrev_b32 v63, 8, v63
        v_mov_b32 v56, 1
        s_mov_b32 s76, 1
        s_mov_b32 s77, 0
        ''' % FLG_OFF)
        late = [l for l in lt.lines if l.strip()]
    vq.need(('D', 0))
    a('s_barrier')
    a.stamp(2)
    for t, tag in trs(0, 0): lq.issue(t, tag)
    LPOS = (1, 4, 9, 14, 19)
    def step(b, ks, extra_vm=(), valu=()):
        vq.a = b; lq.a = b
        base = ks - ks % UNR
        pend = []; valu = list(valu)
        ld = loads(ks + AHEAD) if ks + AHEAD < 16 else list(extra_vm)
        vq.need(('W', ks))
        order = [(rt, s) for rt in range(8) for s in range(3)]
        if w3 and ks == 15: order = [(rt, s) for s in (2, 0, 1) for rt in range(8)]
        last_rt = -1
        for n, (rt, s) in enumerate(order):
            if n == 6 and ks < 15:
                vq.need(('D', ks+1))
                b('s_barrier')
                pend = trs(ks+1, base)
            if rt > last_rt:
                lq.need(('X', ks, rt)); last_rt = rt
            c = 'v[%d:%d]' % (ACC(s, rt), ACC(s, rt)+3)
            xf = 'v[%d:%d]' % (XF(ks % 2, rt), XF(ks % 2, rt)+3)
            A = xf if s >= ns else rr(WFr(ks, s))
            b('v_mfma_f32_16x16x32_bf16 %s, %s, %s, %s' % (c, A, xf, c))
            if pend:
                t, tag = pend.pop(0); lq.issue(t, tag)
            if ks % UNR == UNR-1 and n >= 8 and n % 2 == 0:
                r = 8 + (n-8)//2
                b('v_add_u32 v%d, %d, v%d' % (r, 8192*UNR, r))
            if ld and (n in LPOS if ks + AHEAD < 16 else n % (3 if len(extra_vm) > 6 else (4 if len(extra_vm) > 4 else 6)) == 1):
                t, tag = ld.pop(0); vq.issue(t, tag)
            if ks >= 12 and late:
                b(late.pop(0))
                while late and late[0].strip().startswith('s_') and (len(late) % 3): b(late.pop(0))
            if valu and n >= valu[0][0]:
                _, t, tag, q = valu.pop(0)
                if tag: vq.need(tag)
                if q: lq.issue(t)
                else: b(t)
        assert not pend and not ld and not valu, (ks, pend, ld, valu)
    vq.force = lq.force = True
    bodies = []
    for i in range(12//UNR):
        b = Asm()
        for ks in range(UNR*i, UNR*i+UNR): step(b, ks)
        bodies.append(b.text())
    assert all(x == bodies[0] for x in bodies)
    vq.force = lq.force = False
    lb = 'K3_loop%d' % w3
    a(lb + ':')
    a.lines += bodies[0].rstrip('\n').split('\n')
    a('s_add_u32 s59, s59, 1\ns_cmp_lt_u32 s59, %d\ns_cbranch_scc1 %s' % (12//UNR, lb))
    a.stamp(3)
    pcs = [] if w3 else [('buffer_load_dwordx2 v[%d:%d], v224, s[4:7], s52 offen\ns_add_u32 s52, s52, 24576' % (16+2*k, 17+2*k), 'PCS') for k in range(8)]
    W = wd_loads() if FUSED else []
    wt = W[:WD_TAIL]; we = W[WD_TAIL:NWD_DONE]
    n3 = (len(wt) + 2)//3
    step(a, 12, pcs)
    step(a, 13, wt[:n3])
    step(a, 14, wt[n3:2*n3])
    if w3:
        va = [(9+rt, 'ds_write_b128 v233, v[%d:%d] offset:%d' % (ACC(2, rt), ACC(2, rt)+3, 1024*rt), None, True) for rt in range(7)]
        va += [(16+k, 'ds_write_b128 v233, v[%d:%d] offset:7168' % (ACC(2, 7), ACC(2, 7)+3) if k == 0 else 'ds_write_b32 v234, v%d offset:%d' % (ACC(0, k-1)+1, 256*(k-1)), None, True) for k in range(8)]
        step(a, 15, wt[2*n3:], va)
        a('ds_write_b32 v234, v%d offset:%d' % (ACC(0, 7)+1, 256*7))
    else:
        va = []
        for k, (d, x) in enumerate([(16, 18), (20, 22), (24, 26), (28, 30), (16, 20), (24, 28), (16, 24)]):
            va.append((4+2*k, 'v_add_f32 v%d, v%d, v%d' % (d, d, x), 'PCS', False)); va.append((5+2*k, 'v_add_f32 v%d, v%d, v%d' % (d+1, d+1, x+1), None, False))
        va.append((19, 'ds_write_b64 v228, v[16:17]', None, True))
        step(a, 15, wt[2*n3:], va)
    assert not late, len(late)
    a.stamp(4)
    a('s_waitcnt lgkmcnt(0)\ns_barrier')
    for rt in range(0, 8, 2):
        a('ds_read2st64_b32 v[%d:%d], v227 offset0:%d offset1:%d' % (64+rt, 65+rt, rt, rt+1))
        a('ds_read2st64_b32 v[%d:%d], v226 offset0:%d offset1:%d' % (72+rt, 73+rt, 4*rt, 4*rt+4))
    for ty in range(2):
        for s in range(ns):
            a('ds_read_b128 v[%d:%d], v232 offset:%d' % (16+12*ty+4*s, 19+12*ty+4*s, 768*ty + 64*s))
    ST = lambda rt: 80 + 2*rt
    for rt in range(0, 8, 2):
        a('s_waitcnt lgkmcnt(%d)' % (6 - rt + 2*ns))
        a('''
        v_pk_mul_f32 v[%d:%d], v[%d:%d], v[230:231] op_sel_hi:[1,0]
        v_pk_fma_f32 v[%d:%d], v[%d:%d], v[230:231], v[230:231] op_sel:[0,0,1] op_sel_hi:[1,0,1]
        v_pk_fma_f32 v[%d:%d], v[%d:%d], v[%d:%d], v[%d:%d] neg_lo:[1,0,0] neg_hi:[1,0,0]
        v_rsq_f32 v%d, v%d
        v_rsq_f32 v%d, v%d
        v_mul_f32 v%d, -v%d, v%d
        v_mul_f32 v%d, -v%d, v%d
        ''' % (64+rt, 65+rt, 64+rt, 65+rt,
               72+rt, 73+rt, 72+rt, 73+rt,
               72+rt, 73+rt, 64+rt, 65+rt, 64+rt, 65+rt, 72+rt, 73+rt,
               ST(rt), 72+rt, ST(rt+1), 73+rt,
               ST(rt)+1, 64+rt, ST(rt), ST(rt+1)+1, 65+rt, ST(rt+1)))
    a('s_waitcnt lgkmcnt(0)')
    P = lambda r: 'v[%d:%d]' % (r, r+1)
    O = lambda rt: (64 + 4*rt) if rt < 4 else (236 + 4*(rt % 4))
    vq.a = a
    a('v_mov_b32 v11, %s' % ('0' if w3 else '0x40000000'))
    def wdl(n=1):
        for _ in range(n):
            if we: vq.issue(*we.pop(0))
    def store(rt):
        if w3:
            vq.pos[('S', rt)] = 0; return
        vq.issue('buffer_store_dwordx4 v[%d:%d], v229, s[4:7], s54 offen%s\ns_add_u32 s54, s54, 49152' % (O(rt), O(rt)+3, sc), ('S', rt))
    SA = {2: 0}; SB = {2: 1, 3: 2, 4: 3, 5: 4, 6: 5, 7: 6}
    XR = {2: (0, 1, 2), 4: (3, 4, 5), 6: (6, 7)}
    for rt in range(8):
        st = P(ST(rt))
        T = lambda s, k: 96 + 8*s + 2*k
        if not w3 and rt in XR:
            if FUSED and rt == 6: vq.need(('S', 2*NEARLY-1))
            a('s_barrier')
            for i in XR[rt]: a('ds_read_b32 v%d, v234 offset:%d' % (O(i)+3, 256*i))
        for s in range(ns):
            a('v_pk_fma_f32 %s, %s, %s, %s op_sel:[0,1,0] op_sel_hi:[1,1,1]' % (P(T(s, 0)), P(16+4*s), st, P(28+4*s)))
            a('v_pk_fma_f32 %s, %s, %s, %s op_sel:[0,1,0] op_sel_hi:[1,1,1]' % (P(T(s, 1)), P(18+4*s), st, P(30+4*s)))
        wdl(WD_SCHED[rt][0])
        for s in range(ns):
            a('v_pk_fma_f32 %s, %s, %s, %s op_sel_hi:[1,0,1]' % (P(T(s, 0)), P(ACC(s, rt)), st, P(T(s, 0))))
            a('v_pk_fma_f32 %s, %s, %s, %s op_sel_hi:[1,0,1]' % (P(T(s, 1)), P(ACC(s, rt)+2), st, P(T(s, 1))))
        wdl(WD_SCHED[rt][1])
        for s in range(ns):
            a('v_pk_mul_f32 %s, %s, %s' % (P(T(s, 2)), P(T(s, 0)), P(T(s, 0))))
        for s in range(ns):
            a('v_pk_fma_f32 %s, %s, s[56:57], s[56:57] op_sel:[0,0,1] op_sel_hi:[1,0,1]' % (P(T(s, 2)), P(T(s, 2))))
        for s in range(ns):
            a('v_pk_mul_f32 %s, %s, %s' % (P(T(s, 2)), P(T(s, 2)), P(T(s, 0))))
        if not w3 and rt in XR: a('s_waitcnt lgkmcnt(0)')
        if rt in SA: store(SA[rt])
        wdl(WD_SCHED[rt][2])
        for s in range(ns):
            a('v_exp_f32 v%d, v%d\nv_exp_f32 v%d, v%d' % (T(s, 2), T(s, 2), T(s, 2)+1, T(s, 2)+1))
        for s in range(ns):
            a('v_pk_mul_f32 %s, %s, %s' % (P(T(s, 0)), P(T(s, 0)), P(T(s, 1))))
        for s in range(ns):
            a('v_pk_add_f32 %s, %s, 1.0 op_sel_hi:[1,0]' % (P(T(s, 2)), P(T(s, 2))))
        if rt in SB: store(SB[rt])
        wdl(WD_SCHED[rt][3])
        for s in range(ns):
            a('v_rcp_f32 v%d, v%d\nv_rcp_f32 v%d, v%d' % (T(s, 2), T(s, 2), T(s, 2)+1, T(s, 2)+1))
        for s in range(ns):
            a('v_pk_mul_f32 %s, %s, %s' % (P(T(s, 0)), P(T(s, 0)), P(T(s, 2))))
        for s in range(ns):
            a('v_cvt_pk_bf16_f32 v%d, v%d, v%d' % (O(rt)+s, T(s, 0), T(s, 0)+1))
        if w3:
            a('ds_write2st64_b32 v234, v%d, v%d offset0:%d offset1:%d' % (O(rt), O(rt)+1, (SCX-SCS)//256 + rt, (SCX-SCS)//256 + 8 + rt))
            if rt in (2, 5, 7): a('s_waitcnt lgkmcnt(0)\ns_barrier')
    assert not we, len(we)
    store(7)
    if FUSED and w3: a(FLAG(0))
    if not w3: ENTRY.update(issued=vq.issued, done=vq.done, pos=dict(vq.pos))
    a.stamp(5)
    if FUSED:
        if not w3: a('s_branch K3_p2')
    else:
        a.stamp_out(2, 5)
        if not w3: a('s_endpgm')
```

```python
XT_OFF   = 0
ST1_OFF  = 0x200000
MOD_OFF  = 0x204000
FLG_OFF  = 0x208000
PCS_OFF  = 0x1C00000
KX_OFF   = 0x220000
KX_PITCH = 4224
WD_OFF   = 0x430000
WP_OFF   = 0x5A0000
X1T_OFF  = 0x860000
HF_OFF   = 0xA60000
WS_END   = HF_OFF + 128*16*3072
assert KX_OFF + 512*KX_PITCH <= WD_OFF
assert WD_OFF + 8*16*11264 <= WP_OFF
assert WP_OFF + 16*16*11264 <= X1T_OFF
assert WS_END <= 0x1060000
DIAG_OFF = 0x1000000

PCS_OFF = 0x1060000
DIAG_OFF = 0x1100000
def fmap(G, slot, cg):
    if slot < 9: return 86*G + 24*(slot//3) + 3*cg + slot % 3
    return 86*G + 72 + 2*cg + (slot-9) if cg < 7 else -1
CHUNK = [[0,1,2,9],[3,4,5,10],[6,7,8]]

FL2_OFF = 0x220000
EPOCH_OFF = 0x228000
```

```python
import sys
from gen_common import *
Asm.DIAG = 2 if 'diag2' in sys.argv else ('diag' in sys.argv)
import k1, k2, k34
for kv in sys.argv[1:]:
    if '=' in kv:
        k, v = kv.split('='); m, n = k.split('.'); setattr(globals()[m], n, eval(v))
k34.NWD_DONE = k34.WD_TAIL + k34.WD_EPI
L = [('k1_kernel', k1.K1_GRID, 256, k1.K1_LDS), ('k3_kernel', 256, 256, k34.K3_LDS)]
K = [('k1_kernel', k1.gen_k1(), 256, 256), ('k3_kernel', k34.gen_k3(), 512, 256)]
if not k34.FUSED:
    L.append(('k4_kernel', 256, 256, 65536)); K.append(('k4_kernel', k34.gen_k4(), 512, 256))
hdr = ''.join(l for l in open('adaLN_cond__ssm_conv_s4d__glu_gated_geglu__prompt.s.ref').readlines()[:17])
out = [x for x in sys.argv[1:] if x.endswith('.s')]
open(out[0] if out else ('diag.s' if Asm.DIAG else 'all.s'), 'w').write(build(L, K, hdr))
```

```python
from gen_common import *
from layout import *
LOG2E = 0x3fb8aa3b
INV2PI = 0x3e22f983
def prologue(a):
    a.stamp(0)
    a('''
    s_load_dwordx16 s[16:31], s[0:1], 0
    s_load_dwordx16 s[32:47], s[0:1], 64
    v_lshrrev_b32 v1, 6, v0
    v_and_b32 v2, 63, v0
    v_readfirstlane_b32 s3, v1
    s_mov_b32 s6, 0x2000000
    s_mov_b32 s7, 0x20000
    s_mov_b32 s11, 0x20000
    ''')
def wait_args(a):
    a('''
    s_waitcnt lgkmcnt(0)
    s_mov_b32 s4, s46
    s_mov_b32 s5, s47
    ''')
    a.stamp(1)
def cmul(a, d, x, y, t):
    a('v_pk_mul_f32 v[%d:%d], v[%d:%d], v[%d:%d] op_sel:[0,0] op_sel_hi:[1,0]' % (t, t+1, x, x+1, y, y+1))
    a('v_pk_fma_f32 v[%d:%d], v[%d:%d], v[%d:%d], v[%d:%d] op_sel:[1,1,0] op_sel_hi:[0,1,1] neg_lo:[1,0,0]' % (d, d+1, x, x+1, y, y+1, t, t+1))

N_KG, N_LN, N_MOD = 256, 128, 96
K1_GRID = N_KG + N_LN + N_MOD
PITCH = 544
CHB = 64*PITCH
K1_LDS = 2*CHB

import re
KSH = 96
class ShAsm:
    def __init__(self, a): self.a = a
    def __call__(self, s):
        s = re.sub(r'\bv\[(\d+):(\d+)\]', lambda m: 'v[%d:%d]' % (int(m.group(1))+KSH, int(m.group(2))+KSH), s)
        s = re.sub(r'\bv(\d+)\b', lambda m: 'v%d' % (int(m.group(1)) + (KSH if int(m.group(1)) >= 3 else 0)), s)
        self.a(s)
    def stamp(self, i): self.a.stamp(i)
NFLAG = 128 + 80
def nonce_load(a, r=20): a('global_load_dwordx2 v[%d:%d], v%d, s[44:45] offset:128 sc1' % (r, r+1, r+2))
def nonce_wait(a, lb, r=20):
    a('''
    v_cmp_ne_u32 vcc, 1, v%d
    s_cbranch_vccz %s_x
    s_mov_b32 s73, 0
%s:
    global_load_dwordx2 v[%d:%d], v%d, s[44:45] offset:128 sc1
    s_add_u32 s73, s73, 1
    s_waitcnt vmcnt(0)
    v_cmp_ne_u32 vcc, 1, v%d
    s_cmp_gt_u32 s73, 0x40000
    s_cbranch_scc1 %s_x
    s_cbranch_vccnz %s
%s_x:
    ''' % (r+1, lb, lb, r, r+1, r+2, r+1, lb, lb, lb))
def flag_store(a, soff, r=20, wide=False):
    if wide: a('v_mov_b32 v%d, v%d\nv_mov_b32 v%d, v%d\nv_mov_b32 v%d, v%d' % (r+1, r, r+2, r, r+3, r))
    a('s_mov_b64 exec, 1\nbuffer_store_dword%s, off, s[4:7], %s sc1\ns_mov_b64 exec, -1' % ('x4 v[%d:%d]' % (r, r+3) if wide else ' v%d' % r, soff))
ROT = 384
FPOLL = (2, 4)
POLL_AT = 12
def gen_k1():
    import k2
    a0 = Asm()
    prologue(a0)
    a0('''
    s_cmp_ge_u32 s2, %d
    s_cbranch_scc1 K1_end
    s_add_u32 s8, s2, %d
    s_sub_u32 s2, s2, %d
    s_cselect_b32 s2, s8, s2
    s_mov_b32 s60, 0x05040100
    s_mov_b32 s61, 0x07060302
    s_cmp_ge_u32 s2, %d
    s_cbranch_scc1 K1_notln
    s_cmp_ge_u32 s2, %d
    s_cbranch_scc1 K1_other
    ''' % (K1_GRID, ROT, K1_GRID - ROT, N_KG + N_LN, N_KG))
    a = ShAsm(a0)
    a('''
    s_and_b32 s8, s2, 7
    s_lshr_b32 s9, s2, 3
    s_and_b32 s10, s9, 7
    s_lshr_b32 s9, s9, 3
    s_lshl_b32 s12, s8, 2
    s_add_u32 s12, s12, s9
    s_lshl_b32 s12, s12, 4
    s_add_u32 s12, s12, s10               ; dA
    s_lshr_b32 s9, s3, 1
    s_and_b32 s10, s3, 1                  ; half
    s_lshl_b32 s13, s9, 3
    s_add_u32 s12, s12, s13               ; channel
    s_lshl_b32 s8, s12, 8
    s_lshl_b32 s13, s10, 7
    s_add_u32 s8, s8, s13
    v_lshl_add_u32 v3, v2, 1, s8
    s_lshl_b32 s13, s12, 1
    v_mov_b32 v4, s13
    v_mov_b32 v29, 0
    v_mov_b32 v8, 0
    v_mov_b32 v9, 0
    v_mov_b32 v10, 0
    v_mov_b32 v11, 0
    v_mov_b32 v12, 0
    s_or_b32 s63, s2, s3
    s_cmp_lg_u32 s63, 0
    s_mov_b32 s63, EPOCH
    ''')
    wait_args(a)
    a('''
    s_cbranch_scc1 K1_nl0
    s_load_dword s62, s[46:47], s63
K1_nl0:
    global_load_short_d16_hi v12, v4, s[26:27]
    global_load_short_d16_hi v8, v3, s[18:19]
    global_load_short_d16_hi v9, v3, s[20:21]
    global_load_short_d16_hi v10, v3, s[22:23]
    global_load_short_d16_hi v11, v3, s[24:25]
    global_load_short_d16_hi v29, v4, s[28:29]
    s_mul_i32 s14, s9, %d
    s_lshl_b32 s15, s10, 8
    s_add_u32 s15, s15, s14
    s_mov_b32 m0, s15
    ''' % CHB)
    a('''
    v_and_b32 v5, 15, v2                  ; m / n'
    v_lshrrev_b32 v6, 4, v2               ; g
    v_sub_u32 v7, 15, v5
    v_cvt_f32_u32 v7, v7                  ; beta
    v_lshl_add_u32 v13, v6, 4, s14        ; chbase + 16 g
    s_cmp_eq_u32 s10, 0
    ''')
    inv = {1: 0x3f800000, 2: 0x3f000000, 4: 0x3e800000, 8: 0x3e000000}
    for i, (s0, b0, b1) in enumerate([(1, 0, 35), (2, 16, 38), (4, 25, 41), (4, 30, 44)]):
        a('''
        s_mov_b32 s48, 0x%x
        s_cselect_b32 s48, s48, 0x%x
        s_cselect_b32 s49, %d, %d
        v_mul_f32 v14, s48, v7
        v_rndne_f32 v14, v14
        v_cvt_u32_f32 v14, v14
        v_add_u32 v14, s49, v14
        v_mul_u32_u24 v14, %d, v14
        v_add_u32 v%d, v14, v13
        ''' % (inv[s0], inv[8], b0, b1, PITCH, 20+i))
    a('''
    v_sub_u32 v14, 62, v5
    v_mul_u32_u24 v14, %d, v14
    v_add_u32 v24, v14, v13
    v_lshlrev_b32 v25, 5, v5
    v_lshl_add_u32 v25, v6, 3, v25
    s_mul_i32 s50, s9, 8320
    s_lshl_b32 s52, s10, 11
    s_sub_u32 s50, s50, s52
    s_add_u32 s50, s50, %d
    v_add_u32 v25, s50, v25               ; K LDS write address
    v_mov_b32 v26, 0x3f80                 ; z^0 = (1, 0)
    ds_write_addtid_b32 v26 offset:0
    ''' % (PITCH, k2.KE + 2048))
    k2.setup(a0)
    a0('''
    v_cmp_gt_u32 vcc, 32, v2
    v_cndmask_b32 v58, 0, v2, vcc
    s_lshr_b32 s51, s50, 5
    s_add_u32 s51, s51, 32
    v_writelane_b32 v58, s51, 32
    s_add_u32 s51, s51, 16
    v_writelane_b32 v58, s51, 33
    s_add_u32 s51, s51, 16
    v_writelane_b32 v58, s51, 34
    s_lshr_b32 s51, s2, 5
    s_lshl_b32 s51, s51, 1
    s_add_u32 s51, s51, 80
    v_writelane_b32 v58, s51, 35
    s_add_u32 s51, s51, 1
    v_writelane_b32 v58, s51, 36
    s_add_u32 s51, s51, 15
    v_writelane_b32 v58, s51, 37
    s_add_u32 s51, s51, 1
    v_writelane_b32 v58, s51, 38
    v_lshlrev_b32 v58, 7, v58
    v_mov_b32 v54, 0
    s_mov_b32 s51, %d
    s_or_b32 s63, s2, s3
    s_cmp_lg_u32 s63, 0
    s_cbranch_scc1 K1_nolead
    s_waitcnt lgkmcnt(0)
    s_add_u32 s62, s62, 1
    v_mov_b32 v52, s62
    v_mov_b32 v53, 1
    s_mov_b32 s63, EPOCH
    s_mov_b64 exec, 1
    global_store_dwordx2 v54, v[52:53], s[44:45] offset:128 sc1
    buffer_store_dword v52, off, s[4:7], s63 sc1
    s_mov_b64 exec, -1
    s_waitcnt vmcnt(2)
K1_nolead:
    ''' % FL2_OFF)
    a('''
    s_waitcnt vmcnt(4)
    v_mul_f32 v12, 0x%x, v12
    v_mul_f32 v8, 0x%x, v8
    v_exp_f32 v12, v12
    v_exp_f32 v8, v8
    s_nop 0
    v_cvt_pk_bf16_f32 v14, v12, v8
    v_lshlrev_b32 v12, 16, v14            ; dt
    v_and_b32 v8, 0xffff0000, v14         ; exp(logA)
    v_mul_f32 v8, v8, v12
    v_mul_f32 v8, 0x%x, v8                ; lr = -Ar dt log2e
    s_waitcnt vmcnt(3)
    v_mul_f32 v9, v9, v12
    v_mul_f32 v9, 0x%x, v9                ; th (revolutions/step)
    v_add_f32 v12, v12, v12
    ''' % (LOG2E, LOG2E, LOG2E | 0x80000000, INV2PI))
    Z = lambda m: 32 + 2*m
    Q = lambda k: 68 + 2*k
    def direct(d, p, t):
        a('''
        v_mul_f32 v%d, 0x%x, v8
        v_mul_f32 v%d, 0x%x, v9
        v_exp_f32 v%d, v%d
        v_fract_f32 v%d, v%d
        v_cos_f32 v%d, v%d
        v_sin_f32 v%d, v%d
        ''' % (t, p, t+1, p, t, t, t+1, t+1, d, t+1, d+1, t+1))
    direct(Z(1), 0x3f800000, 88)
    direct(Z(16), 0x41800000, 90)
    direct(Q(1), 0x43800000, 92)
    for d, t in ((Z(1), 88), (Z(16), 90), (Q(1), 92)):
        a('v_pk_mul_f32 v[%d:%d], v[%d:%d], v[%d:%d] op_sel_hi:[1,0]' % (d, d+1, d, d+1, t, t+1))
    a('s_cbranch_scc0 K1_lead2\ns_waitcnt vmcnt(0)\nK1_lead2:')
    a.stamp(2)
    a('v_pk_mul_f32 v[84:85], v[10:11], v[12:13] op_sel_hi:[1,0]')
    a('v_and_b32 v30, 127, v0\nv_cmp_eq_u32 vcc, 63, v30\ns_cmp_eq_u32 s3, PW\ns_nop 0\nv_cndmask_b32 v29, 0, v29, vcc')
    pk = [0]
    def emit(row, r, neg=False):
        t = 96 + pk[0] % 8; pk[0] += 1
        a('v_cvt_pk_bf16_f32 v%d, v%d, %sv%d' % (t, r, '-' if neg else '', r+1))
        a('ds_write_addtid_b32 v%d offset:%d' % (t, row*PITCH))
    emit(1, Z(1))
    emit(47, 84, True)
    emit(16, Q(1))
    ops = []
    zs = []
    for m in range(2, 16):
        h = m//2
        zs.append((Z(m), Z(h), Z(m-h), m, False))
    cs = []
    for n in range(1, 16):
        cs.append((84 + 2*(n % 2), 84 + 2*((n-1) % 2), Z(16), 47+n, True))
    qs = []
    rowbase = {1: 16, 2: 25, 3: 30, 4: 35, 5: 38, 6: 41, 7: 44}
    for k in range(2, 8):
        h = k//2
        qs.append((Q(k), Q(h), Q(k-h), rowbase[k], False))
    seq = []
    for i in range(15):
        if i < len(zs): seq.append(zs[i])
        seq.append(cs[i])
        if i < len(qs): seq.append(qs[i])
    tt = 0
    for d, x, y, row, neg in seq:
        cmul(a, d, x, y, 88 + 2*(tt % 2)); tt += 1
        emit(row, d, neg)
    rest = [(k, r) for k in range(1, 8) for r in range(1, 16//(2 if k == 1 else (4 if k < 4 else 8)) + 1)]
    for n, (k, r) in enumerate(rest):
        step = 2 if k == 1 else (4 if k < 4 else 8)
        if n == len(rest) - POLL_AT:
            a0('s_cbranch_scc0 K1_np1'); nonce_load(a0, 52); a0('K1_np1:')
        d = 92 + 2*(tt % 2)
        cmul(a, d, Q(k), Z(step*r), 88 + 2*(tt % 2)); tt += 1
        emit(rowbase[k] + r, d)
    a.stamp(3)
    a('s_waitcnt lgkmcnt(0)\ns_barrier')
    a.stamp(4)
    for s in range(8):
        a('ds_read_b128 v[%d:%d], v24 offset:%d' % (32+4*s, 35+4*s, 64*s))
        a('ds_read_b128 v[%d:%d], v20 offset:%d' % (64+4*s, 67+4*s, 64*s))
    def cv(j):
        a('''
        v_cvt_pk_bf16_f32 v%d, v%d, v%d
        v_cvt_pk_bf16_f32 v%d, v%d, v%d
        v_cvt_pk_bf16_f32 v%d, v%d, v%d
        ''' % (144+2*j, 128+4*j, 129+4*j, 145+2*j, 130+4*j, 131+4*j, 16+j, 129+4*j, 130+4*j))
    def kw(j):
        o = 512*(3-j)
        a('''
        ds_write_b64 v25, v[%d:%d] offset:%d
        ds_write_b32 v25, v%d offset:%d
        ds_write_b16 v25, v%d offset:%d
        ds_write_b16_d16_hi v25, v%d offset:%d
        ''' % (144+2*j, 145+2*j, o, 16+j, o+4160, 144+2*j, o+4158, 145+2*j, o+4164))
    for i in range(4):
        cur = 64 + 32*(i % 2); nxt = 64 + 32*((i+1) % 2)
        for s in range(8):
            if i == 0:
                a('s_waitcnt lgkmcnt(%d)' % (14 - 2*s + s))
            elif i < 3:
                a('s_waitcnt lgkmcnt(7)')
            elif s < 3:
                a('s_waitcnt lgkmcnt(%d)' % (7 - s))
            elif s == 3:
                a('s_waitcnt lgkmcnt(0)\ns_barrier')
            c = 'v[%d:%d]' % (128+4*i, 131+4*i)
            a('v_mfma_f32_16x16x32_bf16 %s, v[%d:%d], v[%d:%d], %s' % (c, cur+4*s, cur+4*s+3, 32+4*s, 35+4*s, c if s else '0'))
            if i < 3:
                a('ds_read_b128 v[%d:%d], v%d offset:%d' % (nxt+4*s, nxt+4*s+3, 21+i, 64*s))
            if i > 0 and s == 2:
                if i == 1: a('v_add_f32 v131, v131, v29')
                cv(i-1)
            if i == 3 and s in (3, 4, 5): kw(s-3)
            if i == 3 and s == 6: k2.pads(a0)
            if (i, s) == FPOLL: a0('s_cbranch_scc0 K1_np2\nbuffer_load_dwordx4 v[16:19], v58, s[4:7], s51 offen sc1\nK1_np2:')
    a('s_nop 7')
    cv(3); kw(3)
    a.stamp(5)
    a = a0
    a('K2_code:\ns_cbranch_scc0 K1_poll_x\ns_waitcnt vmcnt(0)')
    nonce_wait(a, 'K1_nw0', 52)
    a('''
    s_mov_b32 s73, 0
    s_branch K1_poll_c
K1_poll:
    buffer_load_dwordx4 v[16:19], v58, s[4:7], s51 offen sc1
    s_add_u32 s73, s73, 1
    s_waitcnt vmcnt(0)
K1_poll_c:
    v_xor_b32 v16, v52, v16
    v_xor_b32 v17, v52, v17
    v_xor_b32 v18, v52, v18
    v_xor_b32 v19, v52, v19
    v_or3_b32 v16, v16, v17, v18
    v_or_b32 v16, v16, v19
    v_cmpx_ne_u32 vcc, 0, v16
    s_cmp_gt_u32 s73, 0x40000
    s_cbranch_scc1 K1_poll_y
    s_cbranch_execnz K1_poll
K1_poll_y:
    s_mov_b64 exec, -1
K1_poll_x:
    s_barrier
    ''')
    a.stamp(6)
    vq = k2.loads(a)
    k2.conv(a, vq)
    a('''
K1_other:
    s_setprio 3
    ''')
    a('''
    s_sub_u32 s66, s2, %d                  ; flag index
    s_and_b32 s48, s66, 63
    s_lshl_b32 s8, s48, 2
    s_add_u32 s8, s8, s3                   ; lb
    s_lshl_b32 s9, s8, 13
    v_lshl_add_u32 v3, v2, 4, s9
    v_add_u32 v4, 0x1000, v3
    v_mov_b32 v5, 0x3f803f80
    v_mov_b32 v106, 0
    s_lshl_b32 s49, s48, 15
    s_lshl_b32 s50, s3, 13
    s_add_u32 s49, s49, s50                ; XT2 soffset (wave covers 8 KB)
    s_add_u32 s51, s49, 4096
    v_lshlrev_b32 v96, 6, v2
    v_bfe_u32 v99, v2, 1, 2
    v_xor_b32 v99, s3, v99
    v_lshl_add_u32 v99, v99, 4, v96        ; LDS write addr (swizzled piece)
    v_bfe_u32 v100, v2, 3, 2
    v_xor_b32 v100, v100, v2
    v_lshl_add_u32 v100, v100, 4, s50      ; LDS read addr
    v_lshlrev_b32 v101, 4, v2
    s_lshr_b32 s67, s48, 1
    s_lshl_b32 s67, s67, 5
    s_and_b32 s68, s48, 1
    s_add_u32 s67, s67, s68
    s_lshr_b32 s68, s66, 6
    s_lshl_b32 s68, s68, 1
    s_add_u32 s67, s67, s68
    s_lshl_b32 s67, s67, 2
    s_add_u32 s67, s67, %d
    s_cmp_ge_u32 s66, 64
    ''' % (N_KG, FL2_OFF))
    wait_args(a)
    IN = lambda r, c: 16 + 4*r + c
    for r in range(8):
        a('global_load_dwordx4 v[%d:%d], v%d, s[16:17] offset:%d' % (IN(r, 0), IN(r, 3), 3 + r//4, 1024*(r % 4)))
    a('s_cbranch_scc1 K1_st')
    S = lambda r: 48 + r
    Qq = lambda r: 56 + r
    OUT = lambda j, p: 64 + 4*j + p
    def dots(r):
        for c in range(4):
            a('v_dot2_f32_bf16 v%d, v%d, v5, %s' % (S(r), IN(r, c), 'v%d' % S(r) if c else '0'))
            a('v_dot2_f32_bf16 v%d, v%d, v%d, %s' % (Qq(r), IN(r, c), IN(r, c), 'v%d' % Qq(r) if c else '0'))
    for p in range(4):
        a('s_waitcnt vmcnt(%d)' % (6-2*p))
        for j in range(8):
            a('v_perm_b32 v%d, v%d, v%d, s%d' % (OUT(j, p), IN(2*p+1, j//2), IN(2*p, j//2), 60 + j % 2))
            if p == 3: a('ds_write_b128 v99, v[%d:%d] offset:%d' % (OUT(j, 0), OUT(j, 3), 4096*j))
    a.stamp(2)
    a('s_waitcnt lgkmcnt(0)\ns_barrier')
    for j in range(8):
        a('ds_read_b128 v[%d:%d], v100 offset:%d' % (OUT(j, 0), OUT(j, 3), 1024*j))
    for j in range(8):
        a('s_waitcnt lgkmcnt(%d)' % (7-j))
        a('buffer_store_dwordx4 v[%d:%d], v101, s[4:7], s%d offen offset:%d sc1' % (OUT(j, 0), OUT(j, 3), 49 + 2*(j//4), 1024*(j % 4)))
    a.stamp(3)
    def publish(lb):
        a('s_cmp_lg_u32 s3, 0\ns_cbranch_scc1 %s_a' % lb)
        nonce_load(a, 104)
        a('%s_a:\ns_waitcnt vmcnt(0)\ns_barrier\ns_cbranch_scc1 %s_b' % (lb, lb))
        nonce_wait(a, lb + '_n', 104)
        flag_store(a, 's67', 104)
        a(lb + '_b:')
    publish('K1_pt')
    a.stamp(4)
    a('''
    s_lshr_b32 s50, s48, 3
    s_lshl_b32 s50, s50, 2
    s_add_u32 s50, s50, s3
    s_lshl_b32 s50, s50, 12
    v_add_u32 v97, s50, v96
    v_min_u32 v97, CODE_END-K2_code-4, v97
    s_getpc_b64 s[52:53]
K1_pc:
    s_sub_u32 s52, s52, K1_pc-K2_code
    s_subb_u32 s53, s53, 0
    s_cmp_ge_u32 s50, CODE_END-K2_code
    s_cbranch_scc1 K1_nopf
    global_load_dword v98, v97, s[52:53]
K1_nopf:
    s_cmp_gt_u32 s8, 7
    s_cbranch_scc1 K1_nofl
    v_lshlrev_b32 v103, 7, v2
    s_lshl_b32 s54, s8, 13
    s_add_u32 s54, s54, %d
    buffer_store_dword v106, v103, s[4:7], s54 offen
K1_nofl:
    ''' % FLG_OFF)
    a.stamp_out(0, 4); a('s_endpgm\nK1_st:')
    for r in range(8):
        a('s_waitcnt vmcnt(%d)' % (7-r))
        dots(r)
    a.stamp(2)
    a('s_nop 1')
    for r in range(8):
        a('v_permlane32_swap_b32 v%d, v%d' % (S(r), Qq(r)))
    for r in range(8):
        a('v_add_f32 v%d, v%d, v%d' % (S(r), S(r), Qq(r)))
    for i in range(4):
        a('v_permlane16_swap_b32 v%d, v%d' % (S(i), S(i+4)))
    for i in range(4):
        a('v_add_f32 v%d, v%d, v%d' % (S(i), S(i), S(i+4)))
    for sh in (8, 4, 2, 1):
        for i in range(4):
            a('v_add_f32_dpp v%d, v%d, v%d row_ror:%d row_mask:0xf bank_mask:0xf' % (S(i), S(i), S(i), sh))
    for i in range(4):
        a('v_mov_b32 v%d, v%d' % (Qq(i), S(i)))
    a('s_nop 0')
    for i in range(4):
        a('v_permlane32_swap_b32 v%d, v%d' % (S(i), Qq(i)))
    a('v_mov_b32 v6, 0x3727c5ac')
    for i in range(4):
        a('v_mul_f32 v%d, 0x3b000000, v%d' % (S(i), S(i)))
    for i in range(4):
        a('v_fmamk_f32 v%d, v%d, 0x3b000000, v6' % (Qq(i), Qq(i)))
    for i in range(4):
        a('v_fma_f32 v%d, -v%d, v%d, v%d' % (Qq(i), S(i), S(i), Qq(i)))
    RR = lambda i: 8 + 4*(i//2) + i % 2
    for i in range(4):
        a('v_rsq_f32 v%d, v%d' % (RR(i), Qq(i)))
    a('s_nop 0')
    for i in range(4):
        a('v_mul_f32 v%d, -v%d, v%d' % (RR(i)+2, S(i), RR(i)))
    a('''
    v_lshlrev_b32 v7, 9, v2                ; lane 0 -> 0, lane 16 -> 8192
    s_lshl_b32 s9, s8, 4
    s_add_u32 s9, s9, %d
    s_add_u32 s10, s9, 4096
    s_mov_b64 exec, 0x10001
    buffer_store_dwordx4 v[8:11], v7, s[4:7], s9 offen sc1
    buffer_store_dwordx4 v[12:15], v7, s[4:7], s10 offen sc1
    s_mov_b64 exec, -1
    ''' % ST1_OFF)
    a.stamp(3)
    publish('K1_ps')
    a.stamp(4)
    a('s_cmp_lt_u32 s48, 32\ns_cbranch_scc1 K1_wd')
    a.stamp_out(0, 4); a('s_endpgm')
    a('''
K1_notln:
    s_setprio 3
    v_mov_b32 v106, 0
    ''')
    a('''
    s_sub_u32 s8, s2, %d
    s_and_b32 s9, s8, 7
    s_lshr_b32 s8, s8, 3
    s_lshl_b32 s9, s9, 1
    s_and_b32 s10, s8, 1
    s_add_u32 s9, s9, s10
    s_lshr_b32 s8, s8, 1
    s_lshl_b32 s8, s8, 4
    s_add_u32 s8, s8, s9                   ; column block
    v_and_b32 v3, 3, v0                    ; cq
    v_lshrrev_b32 v4, 2, v0                ; rg
    v_lshlrev_b32 v5, 4, v4                ; c offset
    v_mul_u32_u24 v6, %d, v4
    v_lshl_add_u32 v6, v3, 4, v6
    s_lshl_b32 s9, s8, 6
    ''' % (N_KG + N_LN, 8*6144))
    wait_args(a)
    a('''
    s_mov_b32 s12, s40
    s_mov_b32 s13, s41
    s_mov_b32 s14, %d
    s_mov_b32 s15, 0x20000
    global_load_dwordx4 v[8:11], v5, s[38:39]
    ''' % (512*6144))
    for r in range(8):
        a('buffer_load_dwordx4 v[%d:%d], v6, s[12:15], s9 offen' % (IN(r, 0), IN(r, 3)))
        if r < 7: a('s_add_u32 s9, s9, 6144')
    a('s_waitcnt vmcnt(8)')
    for i in range(4):
        a('v_lshlrev_b32 v%d, 16, v%d\nv_and_b32 v%d, 0xffff0000, v%d' % (48+2*i, 8+i, 49+2*i, 8+i))
    for i in range(8): a('v_mul_f32 v%d, 0x%x, v%d' % (56+i, LOG2E | 0x80000000, 48+i))
    for i in range(8): a('v_exp_f32 v%d, v%d' % (56+i, 56+i))
    for i in range(8): a('v_add_f32 v%d, 1.0, v%d' % (56+i, 56+i))
    for i in range(8): a('v_rcp_f32 v%d, v%d' % (56+i, 56+i))
    for i in range(8): a('v_mul_f32 v%d, v%d, v%d' % (48+i, 48+i, 56+i))
    for p in range(4): a('v_cvt_pk_bf16_f32 v%d, v%d, v%d' % (8+p, 48+2*p, 49+2*p))
    for p in range(4):
        a('s_waitcnt vmcnt(%d)' % (6-2*p))
        for j in range(8):
            a('v_perm_b32 v%d, v%d, v%d, s%d' % (64+j, IN(2*p+1, j//2), IN(2*p, j//2), 60 + j % 2))
        for j in range(8):
            a('v_dot2_f32_bf16 v%d, v%d, v%d, %s' % (48+j, 64+j, 8+p, 'v%d' % (48+j) if p else '0'))
    a('s_nop 2')
    a.stamp(2)
    for j in range(4): a('v_permlane32_swap_b32 v%d, v%d' % (48+j, 52+j))
    for j in range(4): a('v_add_f32 v%d, v%d, v%d' % (48+j, 48+j, 52+j))
    a('s_nop 0')
    for j in range(2): a('v_permlane16_swap_b32 v%d, v%d' % (48+j, 50+j))
    for j in range(2): a('v_add_f32 v%d, v%d, v%d' % (48+j, 48+j, 50+j))
    a('s_nop 0')
    for sh in (8, 4):
        for j in range(2): a('v_add_f32_dpp v%d, v%d, v%d row_ror:%d row_mask:0xf bank_mask:0xf' % (48+j, 48+j, 48+j, sh))
        a('s_nop 0')
    a('''
    v_lshrrev_b32 v4, 4, v2
    v_lshlrev_b32 v4, 3, v4
    v_lshl_add_u32 v4, v3, 5, v4
    s_lshl_b32 s9, s3, 7
    v_add_u32 v4, s9, v4
    ds_write_b64 v4, v[48:49]
    s_waitcnt lgkmcnt(0)
    s_barrier
    s_cmp_lg_u32 s3, 0
    s_cbranch_scc1 K1_end
    global_load_dwordx2 v[104:105], v106, s[44:45] offset:128 sc1
    v_and_b32 v4, 31, v2
    v_lshlrev_b32 v4, 2, v4
    ds_read2_b32 v[8:9], v4 offset0:0 offset1:32
    ds_read2_b32 v[10:11], v4 offset0:64 offset1:96
    s_lshr_b32 s9, s8, 4
    s_cmp_eq_u32 s9, 1
    s_cselect_b32 s10, 1.0, 0
    s_cmp_eq_u32 s9, 4
    s_cselect_b32 s10, 1.0, s10
    s_lshl_b32 s9, s8, 7
    s_add_u32 s9, s9, %d
    s_waitcnt lgkmcnt(0)
    v_add_f32 v8, v8, v9
    v_add_f32 v10, v10, v11
    v_add_f32 v8, v8, v10
    v_cvt_pk_bf16_f32 v8, v8, v8
    v_and_b32 v8, 0xffff0000, v8
    v_add_f32 v8, s10, v8
    v_cvt_pk_bf16_f32 v8, v8, v8
    v_and_b32 v8, 0xffff0000, v8
    buffer_store_dword v8, v4, s[4:7], s9 offen sc1
    s_lshl_b32 s66, s8, 7
    s_add_u32 s66, s66, %d
    ''' % (MOD_OFF, FL2_OFF + 4096))
    a.stamp(3)
    a('s_waitcnt vmcnt(0)')
    nonce_wait(a, 'K1_nm', 104)
    flag_store(a, 's66', 104, True)
    a.stamp(4); a.stamp_out(0, 4); a('K1_end:\ns_endpgm')
    a('''
K1_wd:
    s_setprio 0
    s_and_b32 s9, s8, 7                    ; Bd
    s_lshr_b32 s10, s8, 3                  ; G
    v_and_b32 v3, 15, v2
    v_lshrrev_b32 v4, 4, v2                ; g
    v_lshlrev_b32 v3, 3, v3
    v_mul_u32_u24 v5, 6144, v4
    v_add_u32 v5, v5, v3                   ; voffA
    v_lshl_add_u32 v6, v4, 12, v3          ; voffB
    v_mov_b32 v8, 0x40000000
    v_cmp_eq_u32 vcc, 3, v4
    s_mul_i32 s48, s10, %d
    s_lshl_b32 s49, s9, 7
    v_cndmask_b32 v7, v6, v8, vcc          ; voffB for r=1
    s_add_u32 s48, s48, s49                ; base soffset
    s_add_u32 s52, s48, %d
    s_lshl_b32 s54, s9, 4
    s_add_u32 s54, s54, s10
    s_mul_i32 s54, s54, 11264
    s_add_u32 s54, s54, %d
    s_add_u32 s55, s54, 4096
    s_add_u32 s56, s54, 8192
    v_lshlrev_b32 v9, 4, v2
    v_mul_u32_u24 v10, 12, v2
    s_mov_b32 s14, %d
    s_mov_b32 s15, 0x20000
    ''' % (86*1024, 72*1024, WD_OFF, 1376*1024))
    a('s_waitcnt vmcnt(0)')
    a('s_mov_b32 s12, s36\ns_mov_b32 s13, s37')
    Lr = lambda s, r: 16 + 4*s + 2*r
    for u, ch in enumerate(CHUNK):
        for r in range(2):
            a('s_add_u32 s49, s48, %d' % ((24*u + 3*r)*1024))
            for s in ch[:3]:
                a('buffer_load_dwordx2 v[%d:%d], v5, s[12:15], s49 offen offset:%d' % (Lr(s, r), Lr(s, r)+1, 1024*(s % 3)))
            if len(ch) == 4:
                s = ch[3]
                a('buffer_load_dwordx2 v[%d:%d], v%d, s[12:15], s52 offen offset:%d' % (Lr(s, r), Lr(s, r)+1, 6+r, 1024*(2*r + s - 9)))
    done = 0; nst = 0
    for u, ch in enumerate(CHUNK):
        done += 2*len(ch)
        a('s_waitcnt vmcnt(%d)' % (22 - done + nst))
        for c in range(4):
            o = 64 + 16*u + 4*c
            for j, s in enumerate(ch):
                a('v_perm_b32 v%d, v%d, v%d, s%d' % (o+j, Lr(s, 1) + c//2, Lr(s, 0) + c//2, 60 + c % 2))
            if u < 2:
                a('buffer_store_dwordx4 v[%d:%d], v9, s[4:7], s%d offen offset:%d' % (o, o+3, 54+u, 1024*c))
            else:
                a('buffer_store_dwordx3 v[%d:%d], v10, s[4:7], s56 offen offset:%d' % (o, o+2, 768*c))
            nst += 1
    a.stamp_out(0, 4)
    a('s_endpgm')
    return a.text().replace('MODGA', str(MOD_OFF + 4096)).replace('EPOCH', str(EPOCH_OFF)).replace('PW', '1')
```

```python
from gen_common import *
from layout import *
from k1 import prologue, wait_args

class LdsQ:
    def __init__(self, a, cnt='lgkmcnt', maxn=15):
        self.a = a; self.issued = 0; self.pos = {}; self.done = 0; self.cnt = cnt; self.maxn = maxn
    def issue(self, text, tag=None):
        self.a(text); self.issued += 1
        if tag is not None: self.pos[tag] = self.issued
    def need(self, *tags):
        p = max(self.pos[t] for t in tags)
        if p <= self.done: return
        n = min(self.issued - p, self.maxn)
        self.a('s_waitcnt %s(%d)' % (self.cnt, n))
        self.done = self.issued - n
    def drain(self):
        self.a('s_waitcnt %s(0)' % self.cnt); self.done = self.issued

N_CONV = 256
K2_GRID = N_CONV
HB = 0; HBP = 4608
KE = 9216
EX = KE + 4*4160
PX = EX + 16384
K2_LDS = PX + 4096
K2_VGPR = 256
SHADOW_START = 58

SC = ' sc1'
def setup(a):
    a('''
    s_and_b32 s8, s2, 7                   ; m8
    s_lshr_b32 s9, s2, 3
    s_and_b32 s10, s9, 7                  ; j
    s_lshr_b32 s9, s9, 3                  ; i2
    s_lshl_b32 s12, s8, 2
    s_add_u32 s12, s12, s9                ; 4*m8 + i2
    s_lshl_b32 s13, s12, 4
    s_add_u32 s13, s13, s10               ; dA
    s_lshl_b32 s76, s12, 7
    s_lshl_b32 s15, s10, 12
    s_add_u32 s76, s76, s15               ; XT2 offset within lb32
    v_lshrrev_b32 v3, 2, v0
    v_lshlrev_b32 v3, 15, v3
    v_and_b32 v4, 3, v0
    v_lshl_add_u32 v3, v4, 4, v3
    v_lshlrev_b32 v4, 4, v0
    v_lshlrev_b32 v5, 4, v2               ; lane*16
    s_lshr_b32 s48, s3, 1                 ; k (channel sel of this wave)
    s_and_b32 s49, s3, 1                  ; hh / copy
    s_lshl_b32 s50, s48, 3
    s_add_u32 s50, s50, s13               ; this wave's channel d
    s_mul_i32 s52, s3, 4160
    s_add_u32 s52, s52, %d
    s_mov_b32 s53, %d
    s_add_u32 s54, s53, 4096
    s_add_u32 s55, s53, 8192
    s_add_u32 s56, s53, 12288
    s_lshl_b32 s57, s13, 2
    s_add_u32 s57, s57, %d
    ; ---- prep task decode: G = 2*m8 + (i&1), mat = (i>>1)&1, kp = i>>2
    s_lshr_b32 s58, s2, 3
    s_and_b32 s59, s58, 1
    s_lshl_b32 s60, s8, 1
    s_add_u32 s59, s59, s60               ; G
    s_bfe_u32 s60, s58, 0x10001           ; mat
    s_lshr_b32 s61, s58, 2                ; kp
    v_lshrrev_b32 v6, 5, v2               ; plb
    v_and_b32 v7, 7, v2                   ; cg
    v_bfe_u32 v15, v2, 3, 2               ; w'
    v_cmp_eq_u32 s[64:65], 3, v15
    v_mul_u32_u24 v250, 22016, v6
    v_mul_u32_u24 v9, 48, v15
    v_cndmask_b32 v8, 6, 4, s[64:65]
    v_add_u32 v250, v250, v9
    v_mul_u32_u24 v8, v8, v7
    v_and_b32 v9, 2, v8
    v_sub_u32 v8, v8, v9
    v_add_u32 v250, v250, v8
    v_mul_u32_u24 v9, 0x010100, v9
    v_lshlrev_b32 v9, 8, v9
    v_add_u32 v10, 0x01000c0c, v9
    v_add_u32 v11, 0x03020c0c, v9
    v_add_u32 v14, 0x05040c0c, v9
    v_and_b32 v9, 31, v2
    v_cmp_eq_u32 vcc, 31, v9
    v_mov_b32 v8, 0x40000000
    v_mul_u32_u24 v252, 3072, v15
    v_lshl_add_u32 v252, v6, 7, v252
    v_cndmask_b32 v250, v250, v8, vcc     ; W voffset
    v_lshl_add_u32 v252, v7, 4, v252      ; WP voffset
    v_cndmask_b32 v254, v252, v8, s[64:65] ; WP voffset for s=2
    v_mul_u32_u24 v253, 768, v6
    v_mul_u32_u24 v9, 192, v15
    v_add_u32 v253, v253, v9
    v_lshl_add_u32 v253, v7, 2, v253      ; PCS voffset
    s_lshl_b32 s64, s61, 2
    s_add_u32 s64, s64, s3                ; 16-row block index
    s_mul_i32 s77, s64, %d
    s_mul_i32 s65, s59, 172
    s_add_u32 s77, s77, s65               ; W soffset
    v_lshlrev_b32 v251, 5, v6             ; MOD voffset
    s_lshl_b32 s64, s64, 6
    s_add_u32 s64, s64, %d
    s_mov_b32 s71, s60
    s_mov_b32 s69, s64
    s_cmp_eq_u32 s60, 0
    s_cselect_b64 s[74:75], vcc, 0        ; ones mask
    s_mov_b32 s14, %d
    s_mov_b32 s15, 0x20000
    ''' % (KE, ST1_OFF, MOD_OFF, 16*2752, MOD_OFF + 3*2048, 512*2752))
    a('''
    s_lshl_b32 s64, s59, 4
    s_lshl_b32 s65, s61, 1
    s_add_u32 s64, s64, s65
    s_add_u32 s64, s64, s48
    s_mul_i32 s64, s64, 11264
    s_lshl_b32 s65, s60, 9
    s_add_u32 s64, s64, s65
    s_lshl_b32 s65, s49, 8
    s_add_u32 s64, s64, s65
    s_add_u32 s64, s64, %d                 ; WP soffset
    s_lshl_b32 s72, s61, 4
    s_add_u32 s72, s72, s59
    s_mul_i32 s72, s72, 1536
    s_lshl_b32 s73, s3, 6
    s_add_u32 s72, s72, s73
    s_lshl_b32 s73, s60, 5
    s_add_u32 s72, s72, s73
    s_add_u32 s72, s72, %d                 ; PCS soffset  (wave w stores s = w)
    s_cmp_eq_u32 s3, 3
    s_cselect_b32 s72, 0x40000000, s72
    ''' % (WP_OFF, PCS_OFF))
    a('''
    v_and_b32 v6, 15, v2                   ; n / b
    v_lshrrev_b32 v7, 4, v2                ; g
    v_lshrrev_b32 v8, 1, v6
    v_lshlrev_b32 v8, 15, v8
    v_and_b32 v9, 1, v6
    v_lshl_add_u32 v8, v9, 5, v8
    v_lshl_add_u32 v8, v7, 3, v8
    s_lshl_b32 s59, s49, 20
    s_add_u32 s59, s59, s76
    s_lshl_b32 s60, s48, 6
    s_add_u32 s59, s59, s60
    ''')
    a('''
    v_mov_b32 v255, 0
    s_mul_i32 s60, s48, %d
    s_lshl_b32 s61, s49, 8
    s_add_u32 s61, s61, s60
    v_lshl_add_u32 v60, v2, 2, s61
    v_lshl_add_u32 v61, v6, 2, s52
    s_lshl_b32 s61, s49, 1
    s_sub_u32 s61, s52, s61
    v_mov_b32 v59, s61
    v_lshlrev_b32 v12, 5, v6
    v_lshl_add_u32 v12, v7, 4, v12
    s_lshl_b32 s61, s49, 8
    s_sub_u32 s61, s60, s61
    s_add_u32 s61, s61, %d
    v_add_u32 v12, s61, v12                ; B address
    v_lshlrev_b32 v13, 5, v6
    v_lshl_add_u32 v13, v7, 3, v13         ; output voffset
    v_lshlrev_b32 v15, 3, v7
    v_sub_u32 v15, v15, v6
    v_add_u32 v15, 2031, v15
    v_and_b32 v9, 1, v15
    v_mul_u32_u24 v9, 4158, v9
    v_lshl_add_u32 v15, v15, 1, v9
    s_mul_i32 s61, s48, 8320
    s_lshl_b32 s73, s49, 8
    s_sub_u32 s61, s61, s73
    s_add_u32 s61, s61, %d
    v_add_u32 v40, s61, v15
    v_subrev_u32 v41, 1024, v40
    v_subrev_u32 v42, 2048, v40
    v_subrev_u32 v43, 3072, v40
    v_add_u32 v44, %d, v4                  ; h write address
    s_lshl_b32 s58, s50, 12
    s_lshl_b32 s73, s49, 11
    s_add_u32 s58, s58, s73
    s_add_u32 s58, s58, %d                 ; output soffset
    s_lshl_b32 s73, s3, 12
    v_add_u32 v45, s73, v5                 ; exchange write addr
    v_xor_b32 v46, 4096, v45
    v_mov_b32 v47, 0x3f803f80
    s_lshl_b32 s70, s50, 2
    s_add_u32 s70, s70, MODGA
    ''' % (HBP, HB + 480 - 192, KE - 512 - 192, HB + 512, X1T_OFF))
    a('s_cmp_eq_u32 s71, 0\ns_cselect_b32 s12, s32, s34\ns_cselect_b32 s13, s33, s35')

def pads(a):
    a('ds_write_b32 v60, v255 offset:%d\nds_write_b32 v61, v255 offset:4096\nds_write_b16 v59, v255 offset:4096' % HB)

def loads(a):
    vq = LdsQ(a, 'vmcnt', 63)
    vq.issue('buffer_load_dwordx4 v[16:19], v3, s[4:7], s76 offen' + SC)
    vq.issue('buffer_load_dwordx4 v[20:23], v3, s[4:7], s76 offen offset:64' + SC)
    vq.issue('buffer_load_dword v49, off, s[4:7], s57' + SC)
    vq.issue('buffer_load_dword v51, off, s[4:7], s57 offset:32' + SC)
    vq.issue('buffer_load_dword v48, off, s[4:7], s57 offset:2048' + SC)
    vq.issue('buffer_load_dword v50, off, s[4:7], s57 offset:2080' + SC)
    for q in range(4): vq.issue('buffer_load_dwordx4 v[%d:%d], v4, s[4:7], s%d offen' % (24+4*q, 27+4*q, 53+q) + SC, ('S', q))
    a('s_mov_b32 s57, s69')
    return vq

def conv(a, vq):
    for q in range(4):
        vq.need(('S', q))
        for k in range(2):
            x = 16 + 4*k + q; t = 52 + 2*k
            a('''
            v_lshlrev_b32 v%d, 16, v%d
            v_and_b32 v%d, 0xffff0000, v%d
            v_pk_fma_f32 v[%d:%d], v[%d:%d], v[%d:%d], v[%d:%d]
            v_pk_fma_f32 v[%d:%d], v[%d:%d], v[%d:%d], v[%d:%d] op_sel:[0,0,1] op_sel_hi:[1,0,1]
            v_cvt_pk_bf16_f32 v%d, v%d, v%d
            ''' % (t, x, t+1, x, t, t+1, t, t+1, 24+4*q, 25+4*q, 26+4*q, 27+4*q,
                   t, t+1, t, t+1, 48+2*k, 49+2*k, 48+2*k, 49+2*k, 56+4*k+q, t, t+1))
    a('ds_write_b128 v44, v[56:59]\nds_write_b128 v44, v[60:63] offset:%d' % HBP)
    a('s_waitcnt lgkmcnt(0)')
    a('s_barrier')
    a.stamp(7)
    q_ = LdsQ(a)
    ACC = lambda t: 64 + 4*t
    AF = lambda q: 96 + 4*q
    BF = lambda st, d: 128 + 32*st + 4*d
    rend = [sum(8-i for i in range(q+1)) for q in range(8)]
    def ra(it, q):
        o = (1 - (q & 1))*128 + (3 - it)*16
        e = 36*(it-1) + rend[q] - 1
        return [('ds_read2_b32 v[%d:%d], v%d offset0:%d offset1:%d' % (AF(q), AF(q)+1, 40 + q//2, o, o+1), None, e),
                ('ds_read2_b32 v[%d:%d], v%d offset0:%d offset1:%d' % (AF(q)+2, AF(q)+3, 40 + q//2, o+2, o+3), ('A', it, q), e)]
    def rb(it, d):
        return [('ds_read_b128 v[%d:%d], v12 offset:%d' % (BF(it % 2, d), BF(it % 2, d)+3, 512*d + 64*(3-it)), ('B', it, d), 36*(it-1))]
    first = ra(0, 0) + sum((rb(0, d) for d in range(8)), []) + sum((ra(0, q) for q in range(1, 8)), [])
    for t, tag, _ in first[:12]: q_.issue(t, tag)
    pend = first[12:]
    for it in range(1, 4):
        pend += ra(it, 0) + sum((rb(it, d) for d in range(8)), []) + sum((ra(it, q) for q in range(1, 8)), [])
    sh = []
    OUT = lambda s, p: 232 + 4*s + p
    CS = lambda s: 244 + s
    BI = lambda s: 247 + s
    SX = lambda r, s: 56 + 3*r + s
    for p in range(4):
        for r in range(2):
            e = 2*p + r; d0 = 200 + 2*e
            for s, sel in enumerate((10, 11, 14)):
                sh.append(('v_perm_b32 v%d, v%d, v%d, v%d' % (52+s, d0+1, d0, sel), ('W', e)))
            for s in range(3): sh.append(('v_mul_f32 v%d, v%d, v%d' % (SX(r, s), 52+s, 216+e), None))
            for s in range(3): sh.append((('v_mul_f32 v%d, v%d, v%d' if e == 0 else 'v_fmac_f32 v%d, v%d, v%d') % (BI(s), 52+s, 224+e), None))
            if e == 1:
                for s in range(3): sh.append(('v_add_f32 v%d, v%d, v%d' % (CS(s), SX(0, s), SX(1, s)), None))
            elif e > 1:
                for s in range(3): sh.append(('v_add_f32 v%d, v%d, v%d' % (CS(s), CS(s), SX(r, s)), None))
        for s in range(3): sh.append(('v_cvt_pk_bf16_f32 v%d, v%d, v%d' % (OUT(s, p), SX(0, s), SX(1, s)), None))
        sh.append(('v_cndmask_b32 v%d, v%d, v47, s[74:75]' % (OUT(0, p), OUT(0, p)), None))
    ST = 'ST'
    for s in (1, 2, 0):
        sh.append(('buffer_store_dwordx4 v[%d:%d], v%d, s[4:7], s64 offen offset:%d' % (OUT(s, 0), OUT(s, 3), 254 if s == 2 else 252, 1024*s), ST))
    for s in range(3): sh.append(('v_permlane32_swap_b32 v%d, v%d' % (CS(s), BI(s)), None))
    for s in range(3): sh.append(('v_add_f32 v%d, v%d, v%d' % (CS(s), CS(s), BI(s)), None))
    for i in range(8):
        sh.append(('v_lshlrev_b32 v%d, 16, v%d' % (16+2*i, 192+i), 'XD')); sh.append(('v_and_b32 v%d, 0xffff0000, v%d' % (17+2*i, 192+i), None))
    WL = lambda e: ('buffer_load_dwordx2 v[%d:%d], v250, s[12:15], s77 offen\ns_add_u32 s77, s77, 2752' % (200+2*e, 201+2*e), ('W', e))
    early = [('buffer_load_dwordx4 v[224:227], v251, s[4:7], s57 offen' + SC, None),
             ('buffer_load_dwordx4 v[216:219], v251, s[4:7], s57 offen offset:2048' + SC, None)] + [WL(e) for e in range(4)] + [
             ('buffer_load_dwordx4 v[228:231], v251, s[4:7], s57 offen offset:16' + SC, None),
             ('buffer_load_dwordx4 v[220:223], v251, s[4:7], s57 offen offset:2064' + SC, None)] + [WL(e) for e in range(4, 8)]
    early.append(('buffer_load_dword v63, off, s[4:7], s70' + SC, None))
    for i in range(4):
        early.append(('buffer_load_dwordx2 v[%d:%d], v8, s[4:7], s59 offen%s\ns_add_u32 s59, s59, 0x40000' % (192+2*i, 193+2*i, SC), 'XD'))
    g = 0
    for it in range(4):
        for q in range(8):
            for t in range(q, 8):
                q_.need(('A', it, q), ('B', it, t-q))
                c = 'v[%d:%d]' % (ACC(t), ACC(t)+3)
                a('v_mfma_f32_16x16x32_bf16 %s, v[%d:%d], v[%d:%d], %s' % (c, AF(q), AF(q)+3, BF(it % 2, t-q), BF(it % 2, t-q)+3, c if (it or q) else '0'))
                n = 0
                maxl = 2 if (g % 36) >= 30 or g < SHADOW_START else 1
                while n < maxl:
                    k = next((i for i, x in enumerate(pend[:12]) if x[2] <= g), None)
                    if k is None: break
                    tx, tag, _ = pend.pop(k); q_.issue(tx, tag); n += 1
                while n < 2 and sh and g >= SHADOW_START:
                    tx, tag = sh.pop(0)
                    if tag == ST: vq.issue(tx)
                    else:
                        if tag: vq.need(tag)
                        a(tx)
                    n += 1
                if early and g % 4 == 0:
                    tx, tag = early.pop(0); vq.issue(tx, tag)
                g += 1
    assert not pend, pend
    print('K2 shadow leftover', len(sh))
    for tx, tag in sh:
        if tag and tag != ST: vq.need(tag)
        a(tx)
    a.stamp(8)
    a('''
    s_cmp_eq_u32 s49, 0
    s_cbranch_scc0 K2_hi
    s_nop 6
    ''')
    def exch(send, keep):
        for i in range(4):
            a('ds_write_b128 v45, v[%d:%d] offset:%d' % (ACC(send+i), ACC(send+i)+3, EX + 1024*i))
        for i in range(16):
            a('v_fmac_f32 v%d, v63, v%d' % (16+i, ACC(keep)+i))
    exch(4, 0)
    a('s_branch K2_join\nK2_hi:')
    exch(0, 4)
    a('K2_join:')
    a('v_lshrrev_b32 v9, 2, v45\nv_lshlrev_b32 v62, 2, v0')
    for s in range(3): a('ds_write_b32 v9, v%d offset:%d' % (CS(s), PX + 256*s))
    a('s_waitcnt lgkmcnt(0)\ns_barrier')
    for i in range(4):
        a('ds_read_b128 v[%d:%d], v46 offset:%d' % (96+4*i, 99+4*i, EX + 1024*i))
    a('ds_read2st64_b32 v[56:57], v62 offset0:%d offset1:%d' % (PX//256, PX//256 + 4))
    a('ds_read2st64_b32 v[58:59], v62 offset0:%d offset1:%d' % (PX//256 + 8, PX//256 + 12))
    for i in range(4):
        a('s_waitcnt lgkmcnt(%d)' % (5-i))
        for e in range(4):
            a('v_fmac_f32 v%d, v63, v%d' % (16+4*i+e, 96+4*i+e))
        a('''
        v_cvt_pk_bf16_f32 v%d, v%d, v%d
        v_cvt_pk_bf16_f32 v%d, v%d, v%d
        buffer_store_dwordx2 v[%d:%d], v13, s[4:7], s58 offen offset:%d
        ''' % (32+2*i, 16+4*i, 17+4*i, 33+2*i, 18+4*i, 19+4*i, 32+2*i, 33+2*i, 512*i))
    a('s_waitcnt lgkmcnt(0)\nv_add_f32 v56, v56, v57\nv_add_f32 v58, v58, v59\nv_add_f32 v56, v56, v58\nbuffer_store_dword v56, v253, s[4:7], s72 offen')
    a.stamp_out(0, 8)
    a('s_endpgm')
```

```python
from gen_common import *
from layout import *
LOG2E = 0x3fb8aa3b
INV2PI = 0x3e22f983
def prologue(a):
    a.stamp(0)
    a('''
    s_load_dwordx16 s[16:31], s[0:1], 0
    s_load_dwordx16 s[32:47], s[0:1], 64
    v_lshrrev_b32 v1, 6, v0
    v_and_b32 v2, 63, v0
    v_readfirstlane_b32 s3, v1
    s_mov_b32 s6, 0x2000000
    s_mov_b32 s7, 0x20000
    s_mov_b32 s11, 0x20000
    ''')
def wait_args(a):
    a('''
    s_waitcnt lgkmcnt(0)
    s_mov_b32 s4, s46
    s_mov_b32 s5, s47
    ''')
    a.stamp(1)
def cmul(a, d, x, y, t):
    a('v_pk_mul_f32 v[%d:%d], v[%d:%d], v[%d:%d] op_sel:[0,0] op_sel_hi:[1,0]' % (t, t+1, x, x+1, y, y+1))
    a('v_pk_fma_f32 v[%d:%d], v[%d:%d], v[%d:%d], v[%d:%d] op_sel:[1,1,0] op_sel_hi:[0,1,1] neg_lo:[1,0,0]' % (d, d+1, x, x+1, y, y+1, t, t+1))

HLD = 98304
PITCH = 544
CHB = 64*PITCH
K1_LDS = 2*CHB

import re
KSH = 96
class ShAsm:
    def __init__(self, a, sh=96): self.a = a; self.sh = sh
    def __call__(self, s):
        KSH = self.sh
        s = re.sub(r'\bv\[(\d+):(\d+)\]', lambda m: 'v[%d:%d]' % (int(m.group(1))+KSH, int(m.group(2))+KSH), s)
        s = re.sub(r'\bv(\d+)\b', lambda m: 'v%d' % (int(m.group(1)) + (KSH if 3 <= int(m.group(1)) < 250 else 0)), s)
        self.a(s)
    def stamp(self, i): self.a.stamp(i)
NFLAG = 128 + 80
def nonce_load(a, r=20): a('global_load_dwordx2 v[%d:%d], v%d, s[44:45] offset:128 sc1' % (r, r+1, r+2))
def nonce_wait(a, lb, r=20):
    a('''
    v_cmp_ne_u32 vcc, 1, v%d
    s_cbranch_vccz %s_x
    s_mov_b32 s73, 0
%s:
    global_load_dwordx2 v[%d:%d], v%d, s[44:45] offset:128 sc1
    s_add_u32 s73, s73, 1
    s_waitcnt vmcnt(0)
    v_cmp_ne_u32 vcc, 1, v%d
    s_cmp_gt_u32 s73, 0x40000
    s_cbranch_scc1 %s_x
    s_cbranch_vccnz %s
%s_x:
    ''' % (r+1, lb, lb, r, r+1, r+2, r+1, lb, lb, lb))
PUB_AT = 22
TLO, THI = 0, 32
NONCE_AT = 6
FPOLL = (3, 2)
STASH = [3, 4, 8, 10, 11, 12, 13, 14, 40, 41, 42, 43, 44, 45, 46, 47, 58, 59, 60, 61]
PARAMS = """
    global_load_short_d16_hi v12, v4, s[26:27]
    global_load_short_d16_hi v8, v3, s[18:19]
    global_load_short_d16_hi v9, v3, s[20:21]
    global_load_short_d16_hi v10, v3, s[22:23]
    global_load_short_d16_hi v11, v3, s[24:25]
    global_load_short_d16_hi v29, v4, s[28:29]
"""
def poll4(a, lb, r, va, so):
    a("""
    s_mov_b32 s73, 0
    s_branch LB_c
LB:
    buffer_load_dwordx4 v[%d:%d], %s, s[4:7], %s offen sc1
    s_add_u32 s73, s73, 1
    s_waitcnt vmcnt(0)
LB_c:
    v_xor_b32 v%d, s30, v%d
    v_xor_b32 v%d, s30, v%d
    v_xor_b32 v%d, s30, v%d
    v_xor_b32 v%d, s30, v%d
    v_or3_b32 v%d, v%d, v%d, v%d
    v_or_b32 v%d, v%d, v%d
    v_cmpx_ne_u32 vcc, 0, v%d
    s_cmp_gt_u32 s73, 0x40000
    s_cbranch_scc1 LB_y
    s_cbranch_execnz LB
LB_y:
    s_mov_b64 exec, -1
    """.replace('LB', lb) % (r, r+3, va, so, r, r, r+1, r+1, r+2, r+2, r+3, r+3, r, r, r+1, r+2, r, r, r+3, r))
def gen_k1():
    import k2, k34
    a0 = Asm()
    prologue(a0)
    a0('''
    s_cmp_ge_u32 s2, 256
    s_cbranch_scc1 K3_end
    s_cmp_ge_u32 s2, TLO
    s_cselect_b32 s8, 1, 0
    s_cmp_lt_u32 s2, THI
    s_cselect_b32 s8, s8, 0
    s_cmp_eq_u32 s8, 0
    s_cbranch_scc1 K1_nt
    s_bfe_u32 s8, s2, 0x20003
    s_lshl_b32 s8, s8, 14
    v_lshl_add_u32 v11, v0, 6, s8
    v_min_u32 v11, CODE_END-K1_pc-4, v11
    s_getpc_b64 s[64:65]
K1_pc:
    global_load_dword v12, v11, s[64:65]
K1_nt:
    s_mov_b32 s60, 0x05040100
    s_mov_b32 s61, 0x07060302
    s_mov_b32 s51, 0
    s_mov_b32 s49, 0
    v_mov_b32 v9, 0
    v_mov_b32 v10, 0
    v_mov_b32 v11, 0
    ''')
    a = ash = ShAsm(a0)
    a('''
    s_and_b32 s8, s2, 7
    s_lshr_b32 s9, s2, 3
    s_and_b32 s10, s9, 7
    s_lshr_b32 s9, s9, 3
    s_lshl_b32 s12, s8, 2
    s_add_u32 s12, s12, s9
    s_lshl_b32 s12, s12, 4
    s_add_u32 s12, s12, s10               ; dA
    s_lshr_b32 s9, s3, 1
    s_and_b32 s10, s3, 1                  ; half
    s_lshl_b32 s13, s9, 3
    s_add_u32 s12, s12, s13               ; channel
    s_lshl_b32 s8, s12, 8
    s_lshl_b32 s13, s10, 7
    s_add_u32 s8, s8, s13
    v_lshl_add_u32 v3, v2, 1, s8
    s_lshl_b32 s13, s12, 1
    v_mov_b32 v4, s13
    v_mov_b32 v29, 0
    v_mov_b32 v8, 0
    v_mov_b32 v9, 0
    v_mov_b32 v10, 0
    v_mov_b32 v11, 0
    v_mov_b32 v12, 0
    s_mov_b32 s62, s12
    ''')
    a = a0
    a('''
    s_cmp_ge_u32 s2, 224
    s_cbranch_scc1 K1_wd
    s_cmp_lt_u32 s2, 128
    s_cbranch_scc1 K1_ln
    ''')
    IN = lambda r, c: 16 + 4*r + c
    a('''
    s_sub_u32 s8, s2, %d
    s_and_b32 s9, s8, 7
    s_lshr_b32 s8, s8, 3
    s_lshl_b32 s9, s9, 1
    s_and_b32 s10, s8, 1
    s_add_u32 s9, s9, s10
    s_lshr_b32 s8, s8, 1
    s_lshl_b32 s8, s8, 4
    s_add_u32 s8, s8, s9                   ; column block
    v_and_b32 v3, 3, v0                    ; cq
    v_lshrrev_b32 v4, 2, v0                ; rg
    v_lshlrev_b32 v5, 4, v4                ; c offset
    v_mul_u32_u24 v6, %d, v4
    v_lshl_add_u32 v6, v3, 4, v6
    s_lshl_b32 s9, s8, 6
    s_lshl_b32 s67, s8, 7
    s_add_u32 s67, s67, FL2M
    s_mov_b32 s68, 15
    ''' % (128, 8*6144))
    wait_args(a)
    a('''
    s_mov_b32 s12, s40
    s_mov_b32 s13, s41
    s_mov_b32 s14, %d
    s_mov_b32 s15, 0x20000
    global_load_dwordx4 v[8:11], v5, s[38:39]
    ''' % (512*6144))
    for r in range(8):
        a('buffer_load_dwordx4 v[%d:%d], v6, s[12:15], s9 offen' % (IN(r, 0), IN(r, 3)))
        if r < 7: a('s_add_u32 s9, s9, 6144')
    ash(PARAMS)
    a('s_branch K1_mid')
    a('''
K1_wd:
    s_sub_u32 s8, s2, 224
    s_lshl_b32 s8, s8, 2
    s_add_u32 s8, s8, s3
    s_mov_b32 s63, EPOCH
    s_mov_b32 s67, EPOCH+128
    s_mov_b32 s68, 1
    ''')
    wait_args(a)
    a('''
    s_load_dword s31, s[46:47], s63
    ''')
    ash(PARAMS)
    a('s_branch K1_mid\nK1_ln:')
    a('''
    s_mov_b32 s66, s2
    s_and_b32 s48, s66, 63
    s_lshl_b32 s8, s48, 2
    s_add_u32 s8, s8, s3                   ; lb
    s_lshl_b32 s9, s8, 13
    v_lshl_add_u32 v3, v2, 4, s9
    v_add_u32 v4, 0x1000, v3
    v_mov_b32 v5, 0x3f803f80
    s_lshl_b32 s49, s48, 15
    s_lshl_b32 s50, s3, 13
    s_add_u32 s49, s49, s50                ; XT2 soffset (wave covers 8 KB)
    s_add_u32 s51, s49, 4096
    v_lshlrev_b32 v6, 6, v2
    v_bfe_u32 v9, v2, 1, 2
    v_xor_b32 v9, s3, v9
    v_lshl_add_u32 v9, v9, 4, v6        ; LDS write addr (swizzled piece)
    v_bfe_u32 v10, v2, 3, 2
    v_xor_b32 v10, v10, v2
    v_lshl_add_u32 v10, v10, 4, s50      ; LDS read addr
    v_lshlrev_b32 v11, 4, v2
    v_add_u32 v9, HLDV, v9
    v_add_u32 v10, HLDV, v10
    s_lshr_b32 s67, s48, 1
    s_lshl_b32 s67, s67, 5
    s_and_b32 s68, s48, 1
    s_add_u32 s67, s67, s68
    s_lshr_b32 s68, s66, 6
    s_lshl_b32 s68, s68, 1
    s_add_u32 s67, s67, s68
    s_lshl_b32 s67, s67, 2
    s_add_u32 s67, s67, %d
    s_mov_b32 s68, 1
    ''' % FL2_OFF)
    wait_args(a)
    IN = lambda r, c: 16 + 4*r + c
    for r in range(8):
        a('global_load_dwordx4 v[%d:%d], v%d, s[16:17] offset:%d' % (IN(r, 0), IN(r, 3), 3 + r//4, 1024*(r % 4)))
    ash(PARAMS)
    a('''
K1_mid:
    s_mov_b32 s16, s8
    s_mov_b32 s17, s49
    s_mov_b32 s18, s51
    s_mov_b32 s19, s67
    s_mov_b64 s[20:21], s[60:61]
    s_mov_b32 s26, s68
    s_mov_b32 s27, 0
    ''')
    a = ash
    a('''
    s_lshr_b32 s9, s3, 1
    s_and_b32 s10, s3, 1
    s_mul_i32 s14, s9, %d
    s_lshl_b32 s15, s10, 8
    s_add_u32 s15, s15, s14
    s_mov_b32 m0, s15
    ''' % CHB)
    a('''
    v_and_b32 v5, 15, v2                  ; m / n'
    v_lshrrev_b32 v6, 4, v2               ; g
    v_sub_u32 v7, 15, v5
    v_cvt_f32_u32 v7, v7                  ; beta
    v_lshl_add_u32 v13, v6, 4, s14        ; chbase + 16 g
    s_cmp_eq_u32 s10, 0
    ''')
    inv = {1: 0x3f800000, 2: 0x3f000000, 4: 0x3e800000, 8: 0x3e000000}
    for i, (s0, b0, b1) in enumerate([(1, 0, 35), (2, 16, 38), (4, 25, 41), (4, 30, 44)]):
        a('''
        s_mov_b32 s48, 0x%x
        s_cselect_b32 s48, s48, 0x%x
        s_cselect_b32 s49, %d, %d
        v_mul_f32 v14, s48, v7
        v_rndne_f32 v14, v14
        v_cvt_u32_f32 v14, v14
        v_add_u32 v14, s49, v14
        v_mul_u32_u24 v14, %d, v14
        v_add_u32 v%d, v14, v13
        ''' % (inv[s0], inv[8], b0, b1, PITCH, 20+i))
    a('''
    v_sub_u32 v14, 62, v5
    v_mul_u32_u24 v14, %d, v14
    v_add_u32 v24, v14, v13
    v_lshlrev_b32 v25, 5, v5
    v_lshl_add_u32 v25, v6, 3, v25
    s_mul_i32 s50, s9, 8320
    s_lshl_b32 s52, s10, 11
    s_sub_u32 s50, s50, s52
    s_add_u32 s50, s50, %d
    v_add_u32 v25, s50, v25               ; K LDS write address
    v_mov_b32 v26, 0x3f80                 ; z^0 = (1, 0)
    ds_write_addtid_b32 v26 offset:0
    ''' % (PITCH, k2.KE + 2048))
    a = a0
    a2 = ShAsm(a0, 140)
    k2.setup(a2)
    a2('''
    v_cmp_gt_u32 vcc, 32, v2
    v_cndmask_b32 v58, 0, v2, vcc
    s_lshr_b32 s51, s62, 5
    s_add_u32 s51, s51, 32
    v_writelane_b32 v58, s51, 32
    s_add_u32 s51, s51, 16
    v_writelane_b32 v58, s51, 33
    s_add_u32 s51, s51, 16
    v_writelane_b32 v58, s51, 34
    s_lshr_b32 s51, s2, 4
    s_add_u32 s51, s51, 80
    v_writelane_b32 v58, s51, 35
    s_add_u32 s51, s51, 16
    v_writelane_b32 v58, s51, 36
    v_lshlrev_b32 v58, 7, v58
    s_mov_b32 s51, %d
    ''' % FL2_OFF)
    for n, r in enumerate(STASH): a('v_accvgpr_write_b32 a%d, v%d' % (n, r+140))
    a('''
    s_cmp_lt_u32 s2, 64
    s_cbranch_scc1 K1_tp
    s_cmp_lt_u32 s2, 128
    s_cbranch_scc1 K1_st
    s_cmp_lt_u32 s2, 224
    s_cbranch_scc1 K1_mp
    ''')
    a('''
    s_cmp_lg_u32 s16, 0
    s_cbranch_scc1 K1_nolead
    s_mov_b32 s63, EPOCH
    s_waitcnt lgkmcnt(0)
    s_add_u32 s31, s31, 1
    v_mov_b32 v14, s31
    v_mov_b32 v15, 1
    v_mov_b32 v13, 0
    s_mov_b64 exec, 1
    global_store_dwordx2 v13, v[14:15], s[44:45] offset:128 sc1
    buffer_store_dword v14, off, s[4:7], s63 sc1
    s_mov_b64 exec, -1
K1_nolead:
    ''')
    a('''
    s_and_b32 s28, s16, 7                    ; Bd
    s_lshr_b32 s29, s16, 3                  ; G
    v_and_b32 v3, 15, v2
    v_lshrrev_b32 v4, 4, v2                ; g
    v_lshlrev_b32 v3, 3, v3
    v_mul_u32_u24 v5, 6144, v4
    v_add_u32 v5, v5, v3                   ; voffA
    v_lshl_add_u32 v6, v4, 12, v3          ; voffB
    v_mov_b32 v8, 0x40000000
    v_cmp_eq_u32 vcc, 3, v4
    s_mul_i32 s17, s29, %d
    s_lshl_b32 s18, s28, 7
    v_cndmask_b32 v7, v6, v8, vcc          ; voffB for r=1
    s_add_u32 s17, s17, s18                ; base soffset
    s_add_u32 s25, s17, %d
    s_lshl_b32 s22, s28, 4
    s_add_u32 s22, s22, s29
    s_mul_i32 s22, s22, 11264
    s_add_u32 s22, s22, %d
    s_add_u32 s23, s22, 4096
    s_add_u32 s24, s22, 8192
    v_lshlrev_b32 v9, 4, v2
    v_mul_u32_u24 v10, 12, v2
    s_mov_b32 s10, %d
    ''' % (86*1024, 72*1024, WD_OFF, 1376*1024))
    a('s_mov_b32 s8, s36\ns_mov_b32 s9, s37')
    Lr = lambda s, r: 16 + 4*s + 2*r
    for u, ch in enumerate(CHUNK):
        for r in range(2):
            a('s_add_u32 s18, s17, %d' % ((24*u + 3*r)*1024))
            for s in ch[:3]:
                a('buffer_load_dwordx2 v[%d:%d], v5, s[8:11], s18 offen offset:%d' % (Lr(s, r), Lr(s, r)+1, 1024*(s % 3)))
            if len(ch) == 4:
                s = ch[3]
                a('buffer_load_dwordx2 v[%d:%d], v%d, s[8:11], s25 offen offset:%d' % (Lr(s, r), Lr(s, r)+1, 6+r, 1024*(2*r + s - 9)))
    a('s_waitcnt vmcnt(22)\ns_branch K1_join\nK1_wdp:\ns_waitcnt vmcnt(16)')
    nonce_wait(a, 'K1_nw2', 96)
    a('v_readfirstlane_b32 s30, v96')
    for u, ch in enumerate(CHUNK):
        for c in range(4):
            o = 80 + 4*c
            for j, s in enumerate(ch):
                a('v_perm_b32 v%d, v%d, v%d, s%d' % (o+j, Lr(s, 1) + c//2, Lr(s, 0) + c//2, 20 + c % 2))
            if u < 2:
                a('buffer_store_dwordx4 v[%d:%d], v9, s[4:7], s%d offen offset:%d sc1' % (o, o+3, 22+u, 1024*c))
            else:
                a('buffer_store_dwordx3 v[%d:%d], v10, s[4:7], s24 offen offset:%d sc1' % (o, o+2, 768*c))
    a('s_branch K1_wdr\nK1_mp:')
    a('s_waitcnt vmcnt(14)')
    for i in range(4):
        a('v_lshlrev_b32 v%d, 16, v%d\nv_and_b32 v%d, 0xffff0000, v%d' % (48+2*i, 8+i, 49+2*i, 8+i))
    for i in range(8): a('v_mul_f32 v%d, 0x%x, v%d' % (56+i, LOG2E | 0x80000000, 48+i))
    for i in range(8): a('v_exp_f32 v%d, v%d' % (56+i, 56+i))
    for i in range(8): a('v_add_f32 v%d, 1.0, v%d' % (56+i, 56+i))
    for i in range(8): a('v_rcp_f32 v%d, v%d' % (56+i, 56+i))
    for i in range(8): a('v_mul_f32 v%d, v%d, v%d' % (48+i, 48+i, 56+i))
    for p in range(4): a('v_cvt_pk_bf16_f32 v%d, v%d, v%d' % (8+p, 48+2*p, 49+2*p))
    for p in range(4):
        a('s_waitcnt vmcnt(%d)' % (12-2*p))
        for j in range(8):
            a('v_perm_b32 v%d, v%d, v%d, s%d' % (64+j, IN(2*p+1, j//2), IN(2*p, j//2), 20 + j % 2))
        for j in range(8):
            a('v_dot2_f32_bf16 v%d, v%d, v%d, %s' % (48+j, 64+j, 8+p, 'v%d' % (48+j) if p else '0'))
    a('s_nop 2')
    for j in range(4): a('v_permlane32_swap_b32 v%d, v%d' % (48+j, 52+j))
    for j in range(4): a('v_add_f32 v%d, v%d, v%d' % (48+j, 48+j, 52+j))
    a('s_nop 0')
    for j in range(2): a('v_permlane16_swap_b32 v%d, v%d' % (48+j, 50+j))
    for j in range(2): a('v_add_f32 v%d, v%d, v%d' % (48+j, 48+j, 50+j))
    a('s_nop 0')
    for sh in (8, 4):
        for j in range(2): a('v_add_f32_dpp v%d, v%d, v%d row_ror:%d row_mask:0xf bank_mask:0xf' % (48+j, 48+j, 48+j, sh))
        a('s_nop 0')
    a('''
    v_lshrrev_b32 v4, 4, v2
    v_lshlrev_b32 v4, 3, v4
    v_lshl_add_u32 v4, v3, 5, v4
    s_lshl_b32 s9, s3, 7
    s_add_u32 s9, s9, HLDV
    v_add_u32 v4, s9, v4
    ds_write_b64 v4, v[48:49]
    s_waitcnt vmcnt(0) lgkmcnt(0)
    s_barrier
    s_cmp_lg_u32 s3, 0
    s_cbranch_scc1 K1_join
    v_and_b32 v4, 31, v2
    v_lshlrev_b32 v4, 2, v4
    v_add_u32 v5, HLDV, v4
    ds_read2_b32 v[8:9], v5 offset0:0 offset1:32
    ds_read2_b32 v[10:11], v5 offset0:64 offset1:96
    s_lshr_b32 s9, s16, 4
    s_cmp_eq_u32 s9, 1
    s_cselect_b32 s10, 1.0, 0
    s_cmp_eq_u32 s9, 4
    s_cselect_b32 s10, 1.0, s10
    s_lshl_b32 s9, s16, 7
    s_add_u32 s9, s9, %d
    s_waitcnt lgkmcnt(0)
    v_add_f32 v8, v8, v9
    v_add_f32 v10, v10, v11
    v_add_f32 v8, v8, v10
    v_cvt_pk_bf16_f32 v8, v8, v8
    v_and_b32 v8, 0xffff0000, v8
    v_add_f32 v8, s10, v8
    v_cvt_pk_bf16_f32 v8, v8, v8
    v_and_b32 v8, 0xffff0000, v8
    buffer_store_dword v8, v4, s[4:7], s9 offen sc1
    s_branch K1_join
    ''' % MOD_OFF)
    a('K1_tp:')
    S = lambda r: 48 + r
    Qq = lambda r: 56 + r
    OUT = lambda j, p: 64 + 4*j + p
    def dots(r):
        for c in range(4):
            a('v_dot2_f32_bf16 v%d, v%d, v5, %s' % (S(r), IN(r, c), 'v%d' % S(r) if c else '0'))
            a('v_dot2_f32_bf16 v%d, v%d, v%d, %s' % (Qq(r), IN(r, c), IN(r, c), 'v%d' % Qq(r) if c else '0'))
    for p in range(4):
        a('s_waitcnt vmcnt(%d)' % (12-2*p))
        for j in range(8):
            a('v_perm_b32 v%d, v%d, v%d, s%d' % (OUT(j, p), IN(2*p+1, j//2), IN(2*p, j//2), 20 + j % 2))
            if p == 3: a('ds_write_b128 v9, v[%d:%d] offset:%d' % (OUT(j, 0), OUT(j, 3), 4096*j))
    a('s_waitcnt lgkmcnt(0)\ns_barrier')
    for j in range(8):
        a('ds_read_b128 v[%d:%d], v10 offset:%d' % (OUT(j, 0), OUT(j, 3), 1024*j))
    for j in range(8):
        a('s_waitcnt lgkmcnt(%d)' % (7-j))
        a('buffer_store_dwordx4 v[%d:%d], v11, s[4:7], s%d offen offset:%d sc1' % (OUT(j, 0), OUT(j, 3), 17 + j//4, 1024*(j % 4)))
    a('s_waitcnt vmcnt(8)\ns_branch K1_join\nK1_st:')
    for r in range(8):
        a('s_waitcnt vmcnt(%d)' % (13-r))
        dots(r)
    a('s_nop 1')
    for r in range(8):
        a('v_permlane32_swap_b32 v%d, v%d' % (S(r), Qq(r)))
    for r in range(8):
        a('v_add_f32 v%d, v%d, v%d' % (S(r), S(r), Qq(r)))
    for i in range(4):
        a('v_permlane16_swap_b32 v%d, v%d' % (S(i), S(i+4)))
    for i in range(4):
        a('v_add_f32 v%d, v%d, v%d' % (S(i), S(i), S(i+4)))
    for sh in (8, 4, 2, 1):
        for i in range(4):
            a('v_add_f32_dpp v%d, v%d, v%d row_ror:%d row_mask:0xf bank_mask:0xf' % (S(i), S(i), S(i), sh))
    for i in range(4):
        a('v_mov_b32 v%d, v%d' % (Qq(i), S(i)))
    a('s_nop 0')
    for i in range(4):
        a('v_permlane32_swap_b32 v%d, v%d' % (S(i), Qq(i)))
    a('v_mov_b32 v6, 0x3727c5ac')
    for i in range(4):
        a('v_mul_f32 v%d, 0x3b000000, v%d' % (S(i), S(i)))
    for i in range(4):
        a('v_fmamk_f32 v%d, v%d, 0x3b000000, v6' % (Qq(i), Qq(i)))
    for i in range(4):
        a('v_fma_f32 v%d, -v%d, v%d, v%d' % (Qq(i), S(i), S(i), Qq(i)))
    RR = lambda i: 8 + 4*(i//2) + i % 2
    for i in range(4):
        a('v_rsq_f32 v%d, v%d' % (RR(i), Qq(i)))
    a('s_nop 0')
    for i in range(4):
        a('v_mul_f32 v%d, -v%d, v%d' % (RR(i)+2, S(i), RR(i)))
    a('''
    v_lshlrev_b32 v7, 9, v2                ; lane 0 -> 0, lane 16 -> 8192
    s_lshl_b32 s9, s16, 4
    s_add_u32 s9, s9, %d
    s_add_u32 s10, s9, 4096
    s_mov_b64 exec, 0x10001
    buffer_store_dwordx4 v[8:11], v7, s[4:7], s9 offen sc1
    buffer_store_dwordx4 v[12:15], v7, s[4:7], s10 offen sc1
    s_mov_b64 exec, -1
    ''' % ST1_OFF)
    a('''
    s_waitcnt vmcnt(2)
K1_join:
    v_mov_b32 v98, 0
    ''')
    a.stamp(2)
    def publish():
        a0('s_cmp_ge_u32 s2, 224\ns_cbranch_scc1 K1_npub\ns_waitcnt vmcnt(0)')
        nonce_wait(a0, 'K1_nw', 96)
        a0('''
        s_barrier
        v_readfirstlane_b32 s30, v96
        v_lshlrev_b32 v97, 2, v2
        s_cmp_eq_u32 s3, 1
        s_cbranch_scc0 K1_npub
        s_mov_b64 exec, s[26:27]
        buffer_store_dword v96, v97, s[4:7], s19 offen sc1
        s_mov_b64 exec, -1
K1_npub:
        ''')
        a0.stamp(3)
    def hook(tt):
        if tt == NONCE_AT: nonce_load(a0, 96)
        if tt == PUB_AT: publish()
        if tt > PUB_AT and (tt - PUB_AT) % 4 == 2 and (tt - PUB_AT)//4 < 8: k2.wloads(a0, (tt - PUB_AT)//4)
    a = ash
    a('''
    v_mul_f32 v12, 0x%x, v12
    v_mul_f32 v8, 0x%x, v8
    v_exp_f32 v12, v12
    v_exp_f32 v8, v8
    s_nop 0
    v_cvt_pk_bf16_f32 v14, v12, v8
    v_lshlrev_b32 v12, 16, v14            ; dt
    v_and_b32 v8, 0xffff0000, v14         ; exp(logA)
    v_mul_f32 v8, v8, v12
    v_mul_f32 v8, 0x%x, v8                ; lr = -Ar dt log2e
    v_mul_f32 v9, v9, v12
    v_mul_f32 v9, 0x%x, v9                ; th (revolutions/step)
    v_add_f32 v12, v12, v12
    ''' % (LOG2E, LOG2E, LOG2E | 0x80000000, INV2PI))
    Z = lambda m: 32 + 2*m
    Q = lambda k: 68 + 2*k
    def direct(d, p, t):
        a('''
        v_mul_f32 v%d, 0x%x, v8
        v_mul_f32 v%d, 0x%x, v9
        v_exp_f32 v%d, v%d
        v_fract_f32 v%d, v%d
        v_cos_f32 v%d, v%d
        v_sin_f32 v%d, v%d
        ''' % (t, p, t+1, p, t, t, t+1, t+1, d, t+1, d+1, t+1))
    direct(Z(1), 0x3f800000, 88)
    direct(Z(16), 0x41800000, 90)
    direct(Q(1), 0x43800000, 92)
    for d, t in ((Z(1), 88), (Z(16), 90), (Q(1), 92)):
        a('v_pk_mul_f32 v[%d:%d], v[%d:%d], v[%d:%d] op_sel_hi:[1,0]' % (d, d+1, d, d+1, t, t+1))
    a('v_pk_mul_f32 v[84:85], v[10:11], v[12:13] op_sel_hi:[1,0]')
    a('v_and_b32 v30, 127, v0\nv_cmp_eq_u32 vcc, 63, v30\ns_nop 1\nv_cndmask_b32 v29, 0, v29, vcc')
    pk = [0]
    def emit(row, r, neg=False):
        t = 96 + pk[0] % 8; pk[0] += 1
        a('v_cvt_pk_bf16_f32 v%d, v%d, %sv%d' % (t, r, '-' if neg else '', r+1))
        a('ds_write_addtid_b32 v%d offset:%d' % (t, row*PITCH))
    emit(1, Z(1))
    emit(47, 84, True)
    emit(16, Q(1))
    ops = []
    zs = []
    for m in range(2, 16):
        h = m//2
        zs.append((Z(m), Z(h), Z(m-h), m, False))
    cs = []
    for n in range(1, 16):
        cs.append((84 + 2*(n % 2), 84 + 2*((n-1) % 2), Z(16), 47+n, True))
    qs = []
    rowbase = {1: 16, 2: 25, 3: 30, 4: 35, 5: 38, 6: 41, 7: 44}
    for k in range(2, 8):
        h = k//2
        qs.append((Q(k), Q(h), Q(k-h), rowbase[k], False))
    seq = []
    for i in range(15):
        if i < len(zs): seq.append(zs[i])
        seq.append(cs[i])
        if i < len(qs): seq.append(qs[i])
    tt = 0
    for d, x, y, row, neg in seq:
        hook(tt)
        cmul(a, d, x, y, 88 + 2*(tt % 2)); tt += 1
        emit(row, d, neg)
    rest = [(k, r) for k in range(1, 8) for r in range(1, 16//(2 if k == 1 else (4 if k < 4 else 8)) + 1)]
    for n, (k, r) in enumerate(rest):
        step = 2 if k == 1 else (4 if k < 4 else 8)
        hook(tt)
        d = 92 + 2*(tt % 2)
        cmul(a, d, Q(k), Z(step*r), 88 + 2*(tt % 2)); tt += 1
        emit(rowbase[k] + r, d)
    a0('s_cmp_ge_u32 s2, 224\ns_cbranch_scc1 K1_wdp\nK1_wdr:')
    a0('s_cmp_eq_u32 s3, 1')
    for n, r in enumerate(STASH): a0('v_accvgpr_read_b32 v%d, a%d' % (r, n))
    a('s_waitcnt lgkmcnt(0)\ns_barrier')
    a.stamp(4)
    for s in range(8):
        a('ds_read_b128 v[%d:%d], v24 offset:%d' % (32+4*s, 35+4*s, 64*s))
        a('ds_read_b128 v[%d:%d], v20 offset:%d' % (64+4*s, 67+4*s, 64*s))
    def cv(j):
        a('''
        v_cvt_pk_bf16_f32 v%d, v%d, v%d
        v_cvt_pk_bf16_f32 v%d, v%d, v%d
        v_cvt_pk_bf16_f32 v%d, v%d, v%d
        ''' % (144+2*j, 128+4*j, 129+4*j, 145+2*j, 130+4*j, 131+4*j, 16+j, 129+4*j, 130+4*j))
    def kw(j):
        o = 512*(3-j)
        a('''
        ds_write_b64 v25, v[%d:%d] offset:%d
        ds_write_b32 v25, v%d offset:%d
        ds_write_b16 v25, v%d offset:%d
        ds_write_b16_d16_hi v25, v%d offset:%d
        ''' % (144+2*j, 145+2*j, o, 16+j, o+4160, 144+2*j, o+4158, 145+2*j, o+4164))
    for i in range(4):
        cur = 64 + 32*(i % 2); nxt = 64 + 32*((i+1) % 2)
        for s in range(8):
            if i == 0:
                a('s_waitcnt lgkmcnt(%d)' % (14 - 2*s + s))
            elif i < 3:
                a('s_waitcnt lgkmcnt(7)')
            elif s < 3:
                a('s_waitcnt lgkmcnt(%d)' % (7 - s))
            elif s == 3:
                a0('s_cbranch_scc0 K1_poll_x\ns_waitcnt vmcnt(0)')
                poll4(a0, 'K1_poll', 16, 'v58', 's51')
                a('K1_poll_x:\ns_waitcnt lgkmcnt(0)\ns_barrier')
                a.stamp(5)
                vq = k2.loads(a0)
            c = 'v[%d:%d]' % (128+4*i, 131+4*i)
            a('v_mfma_f32_16x16x32_bf16 %s, v[%d:%d], v[%d:%d], %s' % (c, cur+4*s, cur+4*s+3, 32+4*s, 35+4*s, c if s else '0'))
            if i < 3:
                a('ds_read_b128 v[%d:%d], v%d offset:%d' % (nxt+4*s, nxt+4*s+3, 21+i, 64*s))
            if i > 0 and s == 2:
                if i == 1: a('v_add_f32 v131, v131, v29')
                cv(i-1)
            if i == 3 and s in (3, 4, 5): kw(s-3)
            if i == 3 and s == 6: k2.pads(a0)
            if (i, s) == FPOLL: a0('s_cbranch_scc0 K1_np2\nbuffer_load_dwordx4 v[16:19], v58, s[4:7], s51 offen sc1\nK1_np2:')
    a('s_nop 7')
    cv(3); kw(3)
    a.stamp(6)
    a = a0
    k2.conv(a, vq)
    Asm.SKIP = not Asm.SKIP
    k34.gen_k3(a)
    return a.text().replace('MODGA', str(MOD_OFF + 4096)).replace('EPOCH', str(EPOCH_OFF)).replace('HLDV', str(HLD)).replace('XPITCH', str(XP)).replace('TLO', str(TLO)).replace('THI', str(THI)).replace('FL2M', str(FL2_OFF + 4096))
```

```python
from gen_common import *
from layout import *
from k1 import prologue, wait_args

class LdsQ:
    def __init__(self, a, cnt='lgkmcnt', maxn=15):
        self.a = a; self.issued = 0; self.pos = {}; self.done = 0; self.cnt = cnt; self.maxn = maxn
    def issue(self, text, tag=None):
        self.a(text); self.issued += 1
        if tag is not None: self.pos[tag] = self.issued
    def need(self, *tags):
        p = max(self.pos[t] for t in tags)
        if p <= self.done: return
        n = min(self.issued - p, self.maxn)
        self.a('s_waitcnt %s(%d)' % (self.cnt, n))
        self.done = self.issued - n
    def drain(self):
        self.a('s_waitcnt %s(0)' % self.cnt); self.done = self.issued

N_CONV = 256
K2_GRID = N_CONV
HB = 0; HBP = 4608
KE = 9216
EX = KE + 4*4160
PX = EX + 16384
K2_LDS = PX + 4096
K2_VGPR = 256
SHADOW_START = 6
SHN = 3
WFLAG_AT = 105

SC = ' sc1'
TWD = False
def setup(a):
    a('''
    s_and_b32 s8, s2, 7                   ; m8
    s_lshr_b32 s9, s2, 3
    s_and_b32 s10, s9, 7                  ; j
    s_lshr_b32 s9, s9, 3                  ; i2
    s_lshl_b32 s12, s8, 2
    s_add_u32 s12, s12, s9                ; 4*m8 + i2
    s_lshl_b32 s13, s12, 4
    s_add_u32 s13, s13, s10               ; dA
    s_lshl_b32 s76, s12, 7
    s_lshl_b32 s15, s10, 12
    s_add_u32 s76, s76, s15               ; XT2 offset within lb32
    v_lshrrev_b32 v3, 2, v0
    v_lshlrev_b32 v3, 15, v3
    v_and_b32 v4, 3, v0
    v_lshl_add_u32 v3, v4, 4, v3
    v_lshlrev_b32 v4, 4, v0
    v_lshlrev_b32 v5, 4, v2               ; lane*16
    s_lshr_b32 s48, s3, 1                 ; k (channel sel of this wave)
    s_and_b32 s49, s3, 1                  ; hh / copy
    s_lshl_b32 s50, s48, 3
    s_add_u32 s50, s50, s13               ; this wave's channel d
    s_mul_i32 s52, s3, 4160
    s_add_u32 s52, s52, %d
    s_mov_b32 s53, %d
    s_add_u32 s54, s53, 4096
    s_add_u32 s55, s53, 8192
    s_add_u32 s56, s53, 12288
    s_lshl_b32 s57, s13, 2
    s_add_u32 s57, s57, %d
    ; ---- prep task decode: G = 2*m8 + (i&1), mat = (i>>1)&1, kp = i>>2
    s_lshr_b32 s58, s2, 3
    s_and_b32 s59, s58, 1
    s_lshl_b32 s60, s8, 1
    s_add_u32 s59, s59, s60               ; G
    s_lshr_b32 s61, s58, 1                ; ks
    v_lshrrev_b32 v6, 5, v2               ; plb
    v_and_b32 v7, 7, v2                   ; cg
    v_bfe_u32 v15, v2, 3, 2               ; w'
    v_cmp_eq_u32 s[64:65], 3, v15
    v_mul_u32_u24 v250, 48, v15
    s_nop 0
    v_cndmask_b32 v8, 6, 4, s[64:65]
    v_mul_u32_u24 v8, v8, v7
    v_and_b32 v9, 2, v8
    v_sub_u32 v8, v8, v9
    v_add_u32 v250, v250, v8
    v_mul_u32_u24 v9, 0x010100, v9
    v_lshlrev_b32 v9, 8, v9
    v_add_u32 v10, 0x01000c0c, v9
    v_add_u32 v11, 0x03020c0c, v9
    v_add_u32 v14, 0x05040c0c, v9
    v_and_b32 v9, 31, v2
    v_cmp_eq_u32 vcc, 31, v9
    v_mov_b32 v8, 0x40000000
    v_mul_u32_u24 v252, 3072, v15
    v_lshl_add_u32 v252, v6, 5, v252
    v_lshrrev_b32 v9, 1, v7
    v_lshl_add_u32 v252, v9, 5, v252
    v_cndmask_b32 v250, v250, v8, vcc     ; W voffset
    v_lshl_add_u32 v252, v7, 4, v252      ; WP voffset
    v_cndmask_b32 v254, v252, v8, s[64:65] ; WP voffset for s=2
    v_lshlrev_b32 v253, 5, v6
    v_mul_u32_u24 v9, 192, v15
    v_add_u32 v253, v253, v9
    v_lshl_add_u32 v253, v7, 2, v253      ; PCS voffset
    s_lshl_b32 s64, s61, 2
    s_add_u32 s64, s64, s3                ; 16-row block index
    s_mul_i32 s77, s64, %d
    s_mul_i32 s65, s59, 172
    s_add_u32 s77, s77, s65               ; W soffset
    v_mov_b32 v251, 0
    s_lshl_b32 s64, s64, 5
    s_add_u32 s64, s64, %d
    s_mov_b32 s69, s64
    s_mov_b32 s74, 0x80000000
    s_mov_b32 s75, 0
    s_mov_b32 s14, %d
    s_mov_b32 s15, 0x20000
    ''' % (KE, ST1_OFF, MOD_OFF, 8*2752, MOD_OFF + 3*2048, 512*2752))
    a('''
    s_lshl_b32 s64, s59, 4
    s_add_u32 s64, s64, s61
    s_mul_i32 s64, s64, 11264
    s_lshl_b32 s65, s3, 8
    s_add_u32 s64, s64, s65
    s_add_u32 s64, s64, %d                 ; WP soffset
    s_lshl_b32 s72, s61, 4
    s_add_u32 s72, s72, s59
    s_mul_i32 s72, s72, 1536
    s_lshl_b32 s73, s3, 6
    s_add_u32 s72, s72, s73
    s_add_u32 s72, s72, %d                 ; PCS soffset  (wave w stores s = w)
    s_cmp_eq_u32 s3, 3
    s_cselect_b32 s73, 0x40000000, 0
    v_or_b32 v253, s73, v253
    ''' % (WP_OFF, PCS_OFF))
    a('''
    v_and_b32 v6, 15, v2                   ; n / b
    v_lshrrev_b32 v7, 4, v2                ; g
    v_lshrrev_b32 v8, 1, v6
    v_lshlrev_b32 v8, 15, v8
    v_and_b32 v9, 1, v6
    v_lshl_add_u32 v8, v9, 5, v8
    v_lshl_add_u32 v8, v7, 3, v8
    s_lshl_b32 s59, s49, 20
    s_add_u32 s59, s59, s76
    s_lshl_b32 s60, s48, 6
    s_add_u32 s59, s59, s60
    ''')
    a('''
    v_mov_b32 v255, 0
    s_mul_i32 s60, s48, %d
    s_lshl_b32 s61, s49, 8
    s_add_u32 s61, s61, s60
    v_lshl_add_u32 v60, v2, 2, s61
    v_lshl_add_u32 v61, v6, 2, s52
    s_lshl_b32 s61, s49, 1
    s_sub_u32 s61, s52, s61
    v_mov_b32 v59, s61
    v_lshlrev_b32 v12, 5, v6
    v_lshl_add_u32 v12, v7, 4, v12
    s_lshl_b32 s61, s49, 8
    s_sub_u32 s61, s60, s61
    s_add_u32 s61, s61, %d
    v_add_u32 v12, s61, v12                ; B address
    v_lshlrev_b32 v13, 5, v6
    v_lshl_add_u32 v13, v7, 3, v13         ; output voffset
    v_lshlrev_b32 v15, 3, v7
    v_sub_u32 v15, v15, v6
    v_add_u32 v15, 2031, v15
    v_and_b32 v9, 1, v15
    v_mul_u32_u24 v9, 4158, v9
    v_lshl_add_u32 v15, v15, 1, v9
    s_mul_i32 s61, s48, 8320
    s_lshl_b32 s73, s49, 8
    s_sub_u32 s61, s61, s73
    s_add_u32 s61, s61, %d
    v_add_u32 v40, s61, v15
    v_subrev_u32 v41, 1024, v40
    v_subrev_u32 v42, 2048, v40
    v_subrev_u32 v43, 3072, v40
    v_add_u32 v44, %d, v4                  ; h write address
    s_mul_i32 s58, s50, XPITCH
    s_lshl_b32 s73, s49, 11
    s_add_u32 s58, s58, s73
    s_add_u32 s58, s58, %d                 ; output soffset
    s_lshl_b32 s73, s3, 12
    v_add_u32 v45, s73, v5                 ; exchange write addr
    v_xor_b32 v46, 4096, v45
    v_mov_b32 v47, 0x3f803f80
    s_lshl_b32 s70, s50, 2
    s_add_u32 s70, s70, MODGA
    ''' % (HBP, HB + 480 - 192, KE - 512 - 192, HB + 512, X1T_OFF))
    a('s_mov_b32 s12, s32\ns_mov_b32 s13, s33')

def wloads(a, h):
    if h == 0: a('s_mov_b32 s8, s34\ns_mov_b32 s9, s35\ns_mov_b32 s10, s14\ns_mov_b32 s28, s77')
    a('s_mov_b32 exec_%s, 0' % ('hi' if h < 4 else 'lo'))
    for e in range(2*(h % 4), 2*(h % 4) + 2):
        a('buffer_load_dwordx2 v[%d:%d], v250, %s, %s offen\ns_add_u32 %s, %s, 2752' % ((64+2*e, 65+2*e) + (('s[12:15]', 's77', 's77', 's77') if h < 4 else ('s[8:11]', 's28', 's28', 's28'))))
    a('s_mov_b64 exec, -1')

def pads(a):
    a('ds_write_b32 v60, v255 offset:%d\nds_write_b32 v61, v255 offset:4096\nds_write_b16 v59, v255 offset:4096' % HB)

def loads(a):
    vq = LdsQ(a, 'vmcnt', 63)
    vq.issue('buffer_load_dwordx4 v[16:19], v3, s[4:7], s76 offen' + SC)
    vq.issue('buffer_load_dwordx4 v[20:23], v3, s[4:7], s76 offen offset:64' + SC)
    vq.issue('buffer_load_dword v49, off, s[4:7], s57' + SC)
    vq.issue('buffer_load_dword v51, off, s[4:7], s57 offset:32' + SC)
    vq.issue('buffer_load_dword v48, off, s[4:7], s57 offset:2048' + SC)
    vq.issue('buffer_load_dword v50, off, s[4:7], s57 offset:2080' + SC)
    for q in range(4): vq.issue('buffer_load_dwordx4 v[%d:%d], v4, s[4:7], s%d offen' % (24+4*q, 27+4*q, 53+q) + SC, ('S', q))
    a('s_mov_b32 s57, s69')
    return vq

def conv(a, vq):
    early = [('buffer_load_dwordx4 v[224:227], v251, s[4:7], s57 offen' + SC, None),
             ('buffer_load_dwordx4 v[216:219], v251, s[4:7], s57 offen offset:2048' + SC, 'M0'),
             ('buffer_load_dwordx4 v[228:231], v251, s[4:7], s57 offen offset:16' + SC, None),
             ('buffer_load_dwordx4 v[220:223], v251, s[4:7], s57 offen offset:2064' + SC, 'M1')]
    for tx, tag in early: vq.issue(tx, tag)
    a('s_waitcnt vmcnt(%d)' % vq.issued)
    for e in range(8): a('v_mov_b64 v[%d:%d], v[%d:%d]' % (200+2*e, 201+2*e, 64+2*e, 65+2*e))
    for q in range(4):
        vq.need(('S', q))
        for k in range(2):
            x = 16 + 4*k + q; t = 52 + 2*k
            a('''
            v_lshlrev_b32 v%d, 16, v%d
            v_and_b32 v%d, 0xffff0000, v%d
            v_pk_fma_f32 v[%d:%d], v[%d:%d], v[%d:%d], v[%d:%d]
            v_pk_fma_f32 v[%d:%d], v[%d:%d], v[%d:%d], v[%d:%d] op_sel:[0,0,1] op_sel_hi:[1,0,1]
            v_cvt_pk_bf16_f32 v%d, v%d, v%d
            ''' % (t, x, t+1, x, t, t+1, t, t+1, 24+4*q, 25+4*q, 26+4*q, 27+4*q,
                   t, t+1, t, t+1, 48+2*k, 49+2*k, 48+2*k, 49+2*k, 56+4*k+q, t, t+1))
    a('ds_write_b128 v44, v[56:59]\nds_write_b128 v44, v[60:63] offset:%d' % HBP)
    a('s_waitcnt lgkmcnt(0)')
    a('s_barrier')
    a.stamp(7)
    q_ = LdsQ(a)
    ACC = lambda t: 64 + 4*t
    AF = lambda q: 96 + 4*q
    BF = lambda st, d: 128 + 32*st + 4*d
    rend = [sum(8-i for i in range(q+1)) for q in range(8)]
    def ra(it, q):
        o = (1 - (q & 1))*128 + (3 - it)*16
        e = 36*(it-1) + rend[q] - 1
        return [('ds_read2_b32 v[%d:%d], v%d offset0:%d offset1:%d' % (AF(q), AF(q)+1, 40 + q//2, o, o+1), None, e),
                ('ds_read2_b32 v[%d:%d], v%d offset0:%d offset1:%d' % (AF(q)+2, AF(q)+3, 40 + q//2, o+2, o+3), ('A', it, q), e)]
    def rb(it, d):
        return [('ds_read_b128 v[%d:%d], v12 offset:%d' % (BF(it % 2, d), BF(it % 2, d)+3, 512*d + 64*(3-it)), ('B', it, d), 36*(it-1))]
    first = ra(0, 0) + sum((rb(0, d) for d in range(8)), []) + sum((ra(0, q) for q in range(1, 8)), [])
    for t, tag, _ in first[:12]: q_.issue(t, tag)
    pend = first[12:]
    for it in range(1, 4):
        pend += ra(it, 0) + sum((rb(it, d) for d in range(8)), []) + sum((ra(it, q) for q in range(1, 8)), [])
    sh = []
    OUT = lambda s, p: 232 + 4*s + p
    CS = lambda s: 244 + s
    BI = lambda s: 247 + s
    SX = lambda r, s: 56 + 3*r + s
    for p in range(4):
        for r in range(2):
            e = 2*p + r; d0 = 200 + 2*e
            for s, sel in enumerate((10, 11, 14)):
                sh.append(('v_perm_b32 v%d, v%d, v%d, v%d' % (52+s, d0+1, d0, sel), 'M%d' % (e//4)))
            for s in range(3): sh.append(('v_mul_f32 v%d, v%d, v%d' % (SX(r, s), 52+s, 216+e), None))
            for s in range(3): sh.append((('v_mul_f32 v%d, v%d, v%d' if e == 0 else 'v_fmac_f32 v%d, v%d, v%d') % (BI(s), 52+s, 224+e), None))
            if e == 1:
                for s in range(3): sh.append(('v_add_f32 v%d, v%d, v%d' % (CS(s), SX(0, s), SX(1, s)), None))
            elif e > 1:
                for s in range(3): sh.append(('v_add_f32 v%d, v%d, v%d' % (CS(s), CS(s), SX(r, s)), None))
        for s in range(3): sh.append(('v_cvt_pk_bf16_f32 v%d, v%d, v%d' % (OUT(s, p), SX(0, s), SX(1, s)), None))
        sh.append(('v_cndmask_b32 v%d, v%d, v47, s[74:75]' % (OUT(0, p), OUT(0, p)), None))
    ST = 'ST'
    for s in (1, 2, 0):
        sh.append(('buffer_store_dwordx4 v[%d:%d], v%d, s[4:7], s64 offen offset:%d sc1' % (OUT(s, 0), OUT(s, 3), 254 if s == 2 else 252, 1024*s), ST))
    for i in range(8):
        sh.append(('v_lshlrev_b32 v%d, 16, v%d' % (16+2*i, 192+i), 'XD')); sh.append(('v_and_b32 v%d, 0xffff0000, v%d' % (17+2*i, 192+i), None))
    early = []
    if TWD:
        a('s_lshr_b32 s28, s2, 3\ns_mul_i32 s28, s28, 45056\ns_add_u32 s28, s28, %d\nv_lshlrev_b32 v5, 7, v0\nv_min_u32 v6, 95, v0\nv_lshlrev_b32 v6, 7, v6\nv_add_u32 v6, 0x8000, v6' % WD_OFF)
    early.append(('buffer_load_dword v63, off, s[4:7], s70' + SC, None))
    for i in range(4):
        early.append(('buffer_load_dwordx2 v[%d:%d], v8, s[4:7], s59 offen%s\ns_add_u32 s59, s59, 0x40000' % (192+2*i, 193+2*i, SC), 'XD'))
    if TWD: early += [('buffer_load_dword v7, v%d, s[4:7], s28 offen sc1' % r, None) for r in (5, 6)]
    g = 0
    for it in range(4):
        for q in range(8):
            for t in range(q, 8):
                q_.need(('A', it, q), ('B', it, t-q))
                c = 'v[%d:%d]' % (ACC(t), ACC(t)+3)
                a('v_mfma_f32_16x16x32_bf16 %s, v[%d:%d], v[%d:%d], %s' % (c, AF(q), AF(q)+3, BF(it % 2, t-q), BF(it % 2, t-q)+3, c if (it or q) else '0'))
                n = 0
                maxl = 2 if (g % 36) >= 30 or g < SHADOW_START else 1
                while n < maxl:
                    k = next((i for i, x in enumerate(pend[:12]) if x[2] <= g), None)
                    if k is None: break
                    tx, tag, _ = pend.pop(k); q_.issue(tx, tag); n += 1
                while n < SHN and sh and g >= SHADOW_START:
                    tx, tag = sh.pop(0)
                    if tag == ST: vq.issue(tx, ST)
                    else:
                        if tag: vq.need(tag)
                        a(tx)
                    n += 1
                if early and g % 4 == 0:
                    tx, tag = early.pop(0); vq.issue(tx, tag)
                if g == WFLAG_AT:
                    vq.need(ST)
                    a('''
    s_lshl_b32 s71, s2, 7
    s_add_u32 s71, s71, %d
    s_cmp_eq_u32 s3, 3
    v_mov_b32 v62, s30
    s_barrier
    s_cbranch_scc0 K2_nf
    s_mov_b64 exec, 1
    buffer_store_dword v62, off, s[4:7], s71 sc1
    s_mov_b64 exec, -1
K2_nf:
    ''' % FLW_OFF)
                g += 1
    assert not pend, pend
    print('K2 shadow leftover', len(sh))
    for tx, tag in sh:
        if tag and tag != ST: vq.need(tag)
        a(tx)
    a.stamp(8)
    a('''
    s_cmp_eq_u32 s49, 0
    s_cbranch_scc0 K2_hi
    s_nop 6
    ''')
    def exch(send, keep):
        for i in range(4):
            a('ds_write_b128 v45, v[%d:%d] offset:%d' % (ACC(send+i), ACC(send+i)+3, EX + 1024*i))
        for i in range(16):
            a('v_fmac_f32 v%d, v63, v%d' % (16+i, ACC(keep)+i))
    exch(4, 0)
    a('s_branch K2_join\nK2_hi:')
    exch(0, 4)
    a('K2_join:')
    a('v_lshrrev_b32 v9, 2, v45\nv_lshlrev_b32 v62, 2, v0')
    for s in range(3): a('ds_write2st64_b32 v9, v%d, v%d offset0:%d offset1:%d' % (CS(s), BI(s), PX//256 + s, PX//256 + 16 + s))
    a('''
    s_bfe_u32 s71, s2, 0x20004
    s_and_b32 s28, s2, 1
    s_lshl_b32 s28, s28, 2
    s_add_u32 s71, s71, s28
    s_and_b32 s28, s2, 8
    s_add_u32 s71, s71, s28
    s_lshl_b32 s71, s71, 7
    s_add_u32 s31, s71, %d                 ; W flags: producers 16i + 8(G&1) + (G>>1)
    v_and_b32 v48, 15, v2
    v_lshlrev_b32 v48, 11, v48
    s_waitcnt lgkmcnt(0)
    s_barrier
    buffer_load_dword v61, v48, s[4:7], s31 offen sc1
    ''' % FLW_OFF)
    for i in range(4):
        a('ds_read_b128 v[%d:%d], v46 offset:%d' % (96+4*i, 99+4*i, EX + 1024*i))
    a('ds_read2st64_b32 v[56:57], v62 offset0:%d offset1:%d' % (PX//256, PX//256 + 4))
    a('ds_read2st64_b32 v[58:59], v62 offset0:%d offset1:%d' % (PX//256 + 8, PX//256 + 12))
    a('ds_read2st64_b32 v[52:53], v62 offset0:%d offset1:%d' % (PX//256 + 16, PX//256 + 20))
    a('ds_read2st64_b32 v[54:55], v62 offset0:%d offset1:%d' % (PX//256 + 24, PX//256 + 28))
    for i in range(4):
        a('s_waitcnt lgkmcnt(%d)' % (7-i))
        for e in range(4):
            a('v_fmac_f32 v%d, v63, v%d' % (16+4*i+e, 96+4*i+e))
        a('''
        v_cvt_pk_bf16_f32 v%d, v%d, v%d
        v_cvt_pk_bf16_f32 v%d, v%d, v%d
        buffer_store_dwordx2 v[%d:%d], v13, s[4:7], s58 offen offset:%d sc1
        ''' % (32+2*i, 16+4*i, 17+4*i, 33+2*i, 18+4*i, 19+4*i, 32+2*i, 33+2*i, 512*i))
    a('s_waitcnt lgkmcnt(0)\nv_add_f32 v56, v56, v57\nv_add_f32 v58, v58, v59\nv_add_f32 v52, v52, v53\nv_add_f32 v54, v54, v55\nv_add_f32 v56, v56, v58\nv_add_f32 v52, v52, v54\nbuffer_store_dword v56, v253, s[4:7], s72 offen sc1\nbuffer_store_dword v52, v253, s[4:7], s72 offen offset:768 sc1')
```

```python
from gen_common import *
from layout import *
from k1 import prologue, wait_args, poll4
from k2 import LdsQ
import struct
def fhex(x): return '0x%08x' % struct.unpack('<I', struct.pack('<f', x))[0]
K3_GRID = 256
SCR = 131072
SCS = SCR + 8192
SCT = SCS + 2048
SCX = SCT + 1536
K3_LDS = SCX + 4096
GK0 = -2*0.7978845608028654*1.4426950408889634
GK1 = GK0*0.044715
AHEAD = 4
UNR = 6
FUSED = True
SC = ' sc1'
WD_TAIL = 16
WD_EPI = 18
LA = 14
NEARLY = 1
FLAG_POS = 8
POLL_LEAD = [4, 4]
WD_SCHED = [(1,1,0,1)]*2 + [(1,1,0,0)]*6
HOOK2_AT = 12
FLAGB_AFTER = 7

class FQ(LdsQ):
    force = False
    def need(self, *tags):
        if self.force: self.done = 0
        LdsQ.need(self, *tags)

def WFr(ks, s):
    st = ks % UNR
    return ('a', 192 + 12*st + 4*s) if st < 5 else ('v', 40 + 4*s)
def rr(t, n=4): return '%s[%d:%d]' % (t[0], t[1], t[1]+n-1)
WDr = lambda k, c: ('a', (16*k + 4*c + 192) % 256)
HFr = lambda k, j: ('v', 64 + 16*k + 4*j)
AC4 = lambda j, c: ('a', 128 + 16*j + 4*c)

def wd_loads():
    L = []
    for k in range(12):
        u = k % 3
        for c in range(4):
            if u < 2: t = 'buffer_load_dwordx4 %s, v52, s[4:7], s60 offen offset:%d sc1' % (rr(WDr(k, c)), 1024*c)
            else: t = 'buffer_load_dwordx3 %s, v53, s[4:7], s60 offen offset:%d sc1' % (rr(WDr(k, c), 3), 768*c) + '\nv_accvgpr_write_b32 a%d, 0' % (WDr(k, c)[1]+3)
            if c == 3: t += '\ns_add_u32 s60, s60, %d' % (4096 if u < 2 else 3072)
            L.append((t, ('WD', k)))
    return L

def k4_setup(a):
    a('''
    v_lshlrev_b32 v52, 4, v2
    v_mul_u32_u24 v53, 12, v2
    s_lshl_b32 s60, s62, 4
    s_lshl_b32 s63, s3, 2
    s_add_u32 s60, s60, s63
    s_mul_i32 s60, s60, 11264
    s_add_u32 s60, s60, %d                 ; WD soffset
    ''' % WD_OFF)

def k4_setup2(a):
    a('''
    s_lshr_b32 s63, s61, 1
    s_lshl_b32 s63, s63, 3
    s_and_b32 s64, s61, 1
    s_add_u32 s63, s63, s64                ; rt of q=0
    s_lshl_b32 s64, s63, 4
    s_lshl_b32 s65, s3, 2
    s_add_u32 s64, s64, s65
    s_mul_i32 s64, s64, 3072
    s_add_u32 s64, s64, %d                 ; HF soffset (q=0, G=4w)
    s_lshl_b32 s65, s3, 1
    s_add_u32 s63, s63, s65                ; own rt
    v_and_b32 v57, 15, v2
    v_lshrrev_b32 v58, 4, v2
    v_mul_u32_u24 v59, 4*XPITCH, v57
    v_lshl_add_u32 v59, v58, 3, v59        ; residual voffset
    s_mul_i32 s70, s62, 64*XPITCH
    s_lshl_b32 s71, s63, 5
    s_add_u32 s70, s70, s71
    s_add_u32 s70, s70, %d
    v_lshlrev_b32 v60, 4, v57              ; gb voffset
    s_lshl_b32 s71, s62, 8
    s_add_u32 s71, s71, %d
    v_lshlrev_b32 v61, 12, v58
    v_lshl_add_u32 v61, v57, 3, v61        ; out voffset
    s_lshl_b32 s72, s63, 14
    s_lshl_b32 s73, s62, 7
    s_add_u32 s72, s72, s73
    s_lshl_b32 s73, s3, 12
    v_add_u32 v54, s73, v52                ; exchange write addr
    s_lshl_b32 s73, s3, 14
    v_add_u32 v55, s73, v52                ; exchange read addr
    s_mov_b32 s14, 0x200000
    s_mov_b32 s15, 0x20000
    ''' % (HF_OFF, X1T_OFF, MOD_OFF + 5*2048))

HRL = [r for b, n in ((64, 8), (128, 4), (160, 4), (192, 4), (96, 8), (144, 4), (176, 4), (208, 4), (224, 8)) for r in range(b, b + 4*n, 4)]
HR = lambda q, k: ('v', HRL[12*q + k])
def hl(q, k):
    t = 'buffer_load_dwordx4 %s, v52, s[4:7], s64 offen offset:%d sc1' % (rr(HR(q, k)), 1024*(k % 4))
    if k % 4 == 3: t += '\ns_add_u32 s64, s64, %d' % (4096 + (0 if k < 11 else 2*49152 - 12288))
    return (t, ('H', q, k))
def k4_main(a, vq, wd_rest, sc, kidx, st0, hooks={}):
    a('s_mov_b32 s12, s42\ns_mov_b32 s13, s43')
    Q = []
    for c in range(4):
        Q.append(('buffer_load_dwordx2 v[%d:%d], v59, s[4:7], s70 offen sc1\ns_add_u32 s70, s70, XPITCH' % (16+2*c, 17+2*c), None))
    Q.append(('buffer_load_dwordx4 v[24:27], v60, s[4:7], s71 offen sc1', 'RES'))
    R = Q; Q = list(wd_rest)
    hooks = {p: [('HOOK', f) for f in v] for p, v in hooks.items()}
    hooks[RES_AT] = R + hooks.get(RES_AT, [])
    for pos in sorted(hooks, reverse=True):
        Q[pos:pos] = hooks[pos]
    def pop():
        t, tag = Q.pop(0)
        if t == 'HOOK': tag(vq)
        else: vq.issue(t, tag)
    def pump(cur):
        while Q and (vq.issued - vq.done < LA or Q[0][0] == 'HOOK' or cur < 0):
            if Q[0][0] == 'HOOK' and cur < Q[0][1].at: break
            pop()
    sends = []
    pump(-1)
    for q in range(4):
        for k in range(12):
            while ('H', q, k) not in vq.pos: pop()
            pump(12*q + k)
            vq.need(('H', q, k), ('WD', k))
            if P2D and k == 0 and q: a.stamp(q)
            for c in range(4):
                cc = rr(AC4(q, c))
                a('v_mfma_f32_16x16x32_bf16 %s, %s, %s, %s' % (cc, rr(HR(q, k)), rr(WDr(k, c)), cc if k else '0'))
                if c == 0: pump(12*q + k)
                if c == 2 and sends and k >= 2: a(sends.pop(0))
        sends = ['ds_write_b128 v54, %s offset:%d' % (rr(AC4(q, c)), 16384*q + 1024*c) for c in range(4)]
    assert not Q
    a.stamp(st0+2)
    vq.need('RES')
    for c in range(4):
        for hlf in range(2):
            a('v_lshlrev_b32 v%d, 16, v%d\nv_and_b32 v%d, 0xffff0000, v%d' % (32+4*c+2*hlf, 16+2*c+hlf, 33+4*c+2*hlf, 16+2*c+hlf))
        if c == 1:
            for x in sends: a(x)
    a('s_waitcnt lgkmcnt(0)\ns_barrier')
    for j in range(16):
        a('ds_read_b128 v[%d:%d], v55 offset:%d' % (64+4*j, 67+4*j, 1024*((j % 4)*4 + j//4)))
    for c in range(4):
        a('s_waitcnt lgkmcnt(%d)' % (12-4*c))
        b = 64 + 16*c
        for hlf in range(2):
            r = b + 2*hlf
            a('v_pk_add_f32 v[%d:%d], v[%d:%d], v[%d:%d]' % (r, r+1, r, r+1, r+4, r+5))
            a('v_pk_add_f32 v[%d:%d], v[%d:%d], v[%d:%d]' % (r+8, r+9, r+8, r+9, r+12, r+13))
        for hlf in range(2):
            r = b + 2*hlf
            a('v_pk_add_f32 v[%d:%d], v[%d:%d], v[%d:%d]' % (r, r+1, r, r+1, r+8, r+9))
        for hlf in range(2):
            r = b + 2*hlf; d = 32 + 4*c + 2*hlf
            a('v_pk_fma_f32 v[%d:%d], v[%d:%d], v[%d:%d], v[%d:%d] op_sel:[0,%d,0] op_sel_hi:[1,%d,1]' % (d, d+1, r, r+1, 24 + (c & 2), 25 + (c & 2), d, d+1, c & 1, c & 1))
    for reg in range(4):
        a('''
        v_cvt_pk_bf16_f32 v%d, v%d, v%d
        v_cvt_pk_bf16_f32 v%d, v%d, v%d
        buffer_store_dwordx2 v[%d:%d], v61, s[12:15], s72 offen offset:%d
        ''' % (16+2*reg, 32+reg, 36+reg, 17+2*reg, 40+reg, 44+reg, 16+2*reg, 17+2*reg, 1024*reg))
    a.stamp_out(kidx, st0+2)

def gen_k3(a):
    a.stamp(7)
    a('''
    s_and_b32 s8, s2, 7
    s_lshr_b32 s9, s2, 3
    s_and_b32 s62, s9, 7                   ; Bd (phase 2)
    s_and_b32 s61, s8, 1
    s_lshl_b32 s12, s61, 3
    s_add_u32 s10, s62, s12                ; G
    s_lshr_b32 s9, s9, 3
    s_lshr_b32 s8, s8, 1
    s_lshl_b32 s8, s8, 2
    s_add_u32 s8, s8, s9                   ; mt
    s_lshl_b32 s12, s8, 1
    s_add_u32 s61, s61, s12                ; rb (phase 2)
    v_lshrrev_b32 v4, 4, v2                ; g
    v_bfe_u32 v5, v2, 1, 3                 ; p
    s_and_b32 s12, s3, 1
    s_lshl_b32 s12, s12, 2
    v_or_b32 v6, s12, v4                   ; f(ch)
    v_xor_b32 v5, v5, v6                   ; logical slot
    v_lshlrev_b32 v5, 5, v5
    v_and_b32 v6, 1, v2
    v_lshl_add_u32 v5, v6, 4, v5
    v_mul_u32_u24 v3, XPITCH, v4
    v_add_u32 v3, v3, v5
    s_mul_i32 s48, s3, 8*XPITCH
    s_lshl_b32 s49, s8, 8
    s_add_u32 s48, s48, s49
    s_add_u32 s48, s48, %d                 ; DMA soffset
    s_add_u32 s55, s48, 4*XPITCH-1024
    s_lshl_b32 s49, s3, 11                 ; LDS dest
    v_bfe_u32 v5, v2, 2, 2
    v_lshlrev_b32 v7, 4, v2
    s_mul_i32 s50, s10, %d
    s_mul_i32 s51, s3, 3072
    s_add_u32 s50, s50, s51
    s_add_u32 s50, s50, %d                 ; W' soffset
    s_mov_b32 m0, s49
    v_and_b32 v6, 1, v4
    v_lshl_or_b32 v6, v6, 2, v5            ; F = r | (g&1)<<2
    v_lshl_add_u32 v16, v4, 3, v5          ; 8g + r
    v_lshlrev_b32 v16, 8, v16
    v_and_b32 v17, 3, v2
    v_lshl_add_u32 v16, v17, 3, v16
    ''' % (X1T_OFF, 16*11264, WP_OFF))
    for rt in range(8):
        a('v_xor_b32 v17, %d, v6\nv_lshl_add_u32 v%d, v17, 5, v16' % (rt, 8+rt))
    a('''
    s_mul_i32 s29, s10, %d
    s_lshr_b32 s28, s2, 6
    s_mul_i32 s28, s28, 2816
    s_add_u32 s29, s29, s28
    s_add_u32 s29, s29, %d
    s_add_u32 s28, s29, %d
    v_lshrrev_b32 v24, 5, v0
    v_mul_u32_u24 v24, 11264, v24
    v_and_b32 v20, 31, v0
    v_min_u32 v20, 21, v20
    v_lshl_add_u32 v24, v20, 7, v24
    v_lshrrev_b32 v22, 1, v2
    v_mul_u32_u24 v22, 32*XPITCH, v22
    v_and_b32 v23, 1, v2
    v_lshl_add_u32 v22, v23, 7, v22
    s_lshl_b32 s27, s62, 2
    s_add_u32 s27, s27, s3
    s_mul_i32 s27, s27, XPITCH
    s_lshl_b32 s26, s8, 8
    s_add_u32 s27, s27, s26
    s_add_u32 s27, s27, %d
    s_waitcnt vmcnt(6)
    v_mov_b32 v62, v61
    ''' % (16*11264, WP_OFF, 8*11264, X1T_OFF))
    spin(a, 'K3_pw', 'v48', 's31', 0, True)
    if TW: a('buffer_load_dword v21, v24, s[4:7], s29 offen sc1\nbuffer_load_dword v21, v24, s[4:7], s28 offen sc1')
    a.stamp(1)
    a('s_cmp_eq_u32 s3, 3\ns_cbranch_scc1 K3_w3')
    path(a, False)
    a('K3_w3:')
    path(a, True)
    a('K3_p2:')
    phase2(a)
    a('K3_end:\ns_endpgm')

def mid(a, w3, n):
    setup2(a); k4_setup(a); k4_setup2(a)
    a('''
    s_lshl_b32 s74, s8, 13
    s_add_u32 s74, s74, %d
    s_lshl_b32 s66, s10, 9
    s_add_u32 s66, s66, s74                ; own flag lines
    s_lshl_b32 s75, s3, 11
    s_add_u32 s74, s74, s75                ; flags to poll
    v_and_b32 v63, 3, v2
    v_lshlrev_b32 v63, 9, v63
    s_mov_b32 s76, 1
    s_mov_b32 s77, 0
    s_lshl_b32 s28, s2, 7
    s_add_u32 s28, s28, %d
    s_mov_b32 s29, %d
    v_mov_b32 v56, s30
    v_lshlrev_b32 v49, 7, v0
    s_cmp_eq_u32 s3, 1
    s_waitcnt vmcnt(%d)
    s_barrier
    s_cbranch_scc0 K3_nf%d
    s_mov_b64 exec, 1
    buffer_store_dword v56, off, s[4:7], s28 sc1
    s_mov_b64 exec, -1
K3_nf%d:
    ''' % (FLG_OFF, FL3_OFF, FL3_OFF, n, w3, w3))
    a.stamp(6)

def setup2(a):
    a('''
    v_lshlrev_b32 v224, 3, v0              ; PCS voffset
    s_mul_i32 s52, s10, 1536
    s_add_u32 s52, s52, %d
    s_lshl_b32 s54, s8, 7
    s_add_u32 s54, s54, s10
    s_mul_i32 s54, s54, 3072
    s_add_u32 s54, s54, %d                 ; HF soffset
    s_mov_b32 s56, %s
    s_mov_b32 s57, %s
    v_and_b32 v225, 15, v2                 ; n
    v_lshl_add_u32 v226, v5, 4, v225
    v_lshlrev_b32 v226, 4, v226
    v_and_b32 v227, 3, v2
    v_lshl_add_u32 v226, v227, 2, v226
    v_add_u32 v226, %d, v226               ; sumsq read addr
    v_lshlrev_b32 v227, 2, v225
    v_add_u32 v227, %d, v227               ; sum read addr
    v_lshrrev_b32 v228, 3, v0
    v_lshlrev_b32 v228, 6, v228
    v_and_b32 v229, 3, v0
    v_lshl_add_u32 v228, v229, 4, v228
    v_bfe_u32 v229, v0, 2, 1
    v_lshl_add_u32 v228, v229, 3, v228
    v_add_u32 v228, %d, v228               ; table write addr
    s_mul_i32 s53, s3, 192
    s_add_u32 s53, s53, %d
    v_lshl_add_u32 v232, v4, 4, s53        ; table read addr
    v_mov_b32 v230, 0x3b000000
    v_mov_b32 v231, 0x3727c5ac
    s_mov_b32 s59, 0
    ''' % (PCS_OFF, HF_OFF, fhex(GK1), fhex(GK0), SCR, SCS + 192, SCT, SCT))


NPRE = 16
NP0 = 4
NPOL = 14
AH = 6
TW = TX = False
P2D = False
E0, X1, X2 = 2, 7, 11
SLOTS = 3
HPRE0, HPRE1 = 1, 3
def FLAG(i): return 's_mov_b64 exec, s[76:77]\nbuffer_store_dword v56, v50, s[4:7], s66 offen offset:%d sc1\ns_mov_b64 exec, -1' % (128*i)
def spin(a, lb, va, so, off, have):
    a("""
    s_mov_b32 s75, 0
    %s
LB:
    buffer_load_dword v62, %s, s[4:7], %s offen offset:%d sc1
    s_add_u32 s75, s75, 1
    s_waitcnt vmcnt(0)
LB_c:
    v_cmpx_ne_u32 vcc, s30, v62
    s_cmp_gt_u32 s75, 0x40000
    s_cbranch_scc1 LB_x
    s_cbranch_execnz LB
LB_x:
    s_mov_b64 exec, -1
    """.replace('LB', lb) % ('s_branch %s_c' % lb if have else '', va, so, off))
def pissue(vq, q): vq.issue('buffer_load_dword v62, v63, s[4:7], s74 offen offset:%d sc1' % (128*q), ('P', q))
def pcheck(a, vq, q, sfx=''):
    vq.need(('P', q)); spin(a, 'K3_ph%d%s' % (q, sfx), 'v63', 's74', 128*q, True)

ENTRY = {}
def phase2(a):
    vq = LdsQ(a, 'vmcnt', 63)
    vq.issued = ENTRY['issued']; vq.done = ENTRY['done']; vq.pos = dict(ENTRY['pos'])
    rest = [hl(q, k) for q in range(4) for k in range(12) if ('H', q, k) not in vq.pos]
    n1 = sum(1 for x in rest if x[1][1] < 2)
    def mk(f, at):
        g = lambda vq: f(vq)
        g.at = at; return g
    def fl(vq):
        vq.need(('S', 7)); a('s_barrier'); vq.issue(FLAG(3))
    k4_main(a, vq, rest, SC, 2, 6, {0: [mk(lambda vq: pcheck(a, vq, 1), AT[2])], FLP: [mk(fl, AT[3])],
                                    n1: [mk(lambda vq: pissue(vq, 3), AT[0]), mk(lambda vq: pcheck(a, vq, 3), AT[1])]})
AT = [16, 22, 2, 10]
FLP = 11
RES_AT = 12
NWA = 4
WPS = 4
P0_AT = 15
PA_AT = 3

def path(a, w3):
    ns = 2 if w3 else 3
    vq = LdsQ(a, 'vmcnt', 63); lq = LdsQ(a)
    ACC = lambda s, rt: 128 + 32*s + 4*rt
    XF = lambda st, r: 64 + 16*st + 4*r
    V4 = lambda r: 'v[%d:%d]' % (r, r+3)
    P = lambda r: 'v[%d:%d]' % (r, r+1)
    def dl(ks): return [('buffer_load_dwordx4 v3, s[4:7], s48 offen sc1 lds\ns_add_u32 s48, s48, 32*XPITCH\ns_add_u32 s49, s49, 0x2000', None),
             ('buffer_load_dwordx4 v3, s[4:7], s55 offen offset:1024 sc1 lds\ns_add_u32 s55, s55, 32*XPITCH\ns_mov_b32 m0, s49', ('D', ks))]
    def wl(ks): return [('buffer_load_dwordx4 a[%d:%d], v7, s[4:7], s50 offen offset:%d sc1' % (12*ks+4*s, 12*ks+4*s+3, 1024*s) + ('\ns_add_u32 s50, s50, 11264' if s == ns-1 else ''), ('W', ks)) for s in range(ns)]
    def trs(g):
        h2, ks = divmod(g, 16)
        return [('ds_read_b64_tr_b16 %s, v%d offset:%d' % (P(XF(g % 2, r) + 2*h), 8+4*h2+r, (32*(ks % 8) + 4*h)*256), ('X', g, r)) for r in range(4) for h in range(2)]
    for ks in range(NPRE):
        if ks == NP0: mid(a, w3, NP0*ns + 2*TW)
        if ks == NPOL: vq.issue('buffer_load_dword v62, v49, s[4:7], s29 offen sc1', 'XP')
        for x in wl(ks): vq.issue(*x)
    if w3: a('v_lshlrev_b32 v233, 4, v2\nv_add_u32 v233, %d, v233\nv_lshlrev_b32 v234, 2, v2\nv_add_u32 v234, %d, v234\nv_mov_b32 v229, 0x40000000\nv_mov_b32 v50, 0' % (SCR, SCS))
    else: a("""
        v_lshlrev_b32 v229, 4, v2
        s_lshl_b32 s58, s3, 10
        s_add_u32 s54, s54, s58
        s_and_b32 s58, s3, 1
        s_lshl_b32 s58, s58, 11
        s_add_u32 s58, s58, %d
        v_lshl_add_u32 v234, v2, 2, s58
        v_mov_b32 v50, 0x40000000
        """ % SCX)
    vq.need('XP')
    spin(a, 'K3_px%d' % w3, 'v49', 's29', 0, True)
    a('s_barrier')
    a.stamp(2)
    if TX: vq.issue('s_mov_b64 exec, 0xffffffff\nbuffer_load_dword v21, v22, s[4:7], s27 offen sc1\ns_mov_b64 exec, -1')
    M = []
    for ks in range(16):
        M += dl(ks)
        if NPRE + ks//2 < 16 and ks % 2: M += wl(NPRE + ks//2)
        if ks == 15 and not w3: M += [('buffer_load_dwordx2 %s, v224, s[4:7], s52 offen sc1\ns_add_u32 s52, s52, 24576' % P(16+2*k), 'PCS') for k in range(16)]
    W = wd_loads()
    M += W[:NWA]; W = W[NWA:]; wn = [NWA]
    def upto(tag):
        while tag not in vq.pos or (M and M[0][1] == tag): vq.issue(*M.pop(0)); a('s_nop 0')
    upto(('D', AH))
    vq.need(('D', 0)); a('s_barrier')
    for x in trs(0): lq.issue(*x)
    ST = lambda r: 40 + 2*r
    T = lambda s, k: 96 + 8*s + 2*k
    O = lambda r: 236 + 4*r
    def dump(h2): return ['ds_write_b128 v233, %s offset:%d' % (V4(ACC(2, rt)), 1024*rt) for rt in range(4*h2, 4*h2+4)] + ['ds_write_b32 v234, v%d offset:%d' % (ACC(0, rt)+1, 256*rt) for rt in range(4*h2, 4*h2+4)]
    def sread(h2): return [x for r in (0, 2) for x in ('ds_read2st64_b32 %s, v227 offset0:%d offset1:%d' % (P(120+r), 4*h2+r, 4*h2+r+1), 'ds_read2st64_b32 %s, v226 offset0:%d offset1:%d' % (P(124+r), 16*h2+4*r, 16*h2+4*r+4))]
    def store(rt): vq.issue('buffer_store_dwordx4 %s, v229, s[4:7], s54 offen sc1\ns_add_u32 s54, s54, 49152' % V4(O(rt % 4)), ('S', rt))
    def w3w(rt): return 'ds_write2st64_b32 v234, v%d, v%d offset0:%d offset1:%d' % (O(rt % 4), O(rt % 4)+1, (SCX-SCS)//256 + rt, (SCX-SCS)//256 + 8 + rt)
    def xr(rt): return 'ds_read_b32 v%d, v234 offset:%d' % (O(rt % 4)+3, 256*rt)
    E = []
    for f in ('v_mul_f32 v{m}, v230, v{m}', 'v_fma_f32 v{q}, v{q}, v230, v231', 'v_fma_f32 v{q}, -v{m}, v{m}, v{q}', 'v_rsq_f32 v{a}, v{q}', 'v_mul_f32 v{b}, -v{m}, v{a}'):
        for r in range(4): E.append((f.format(m=120+r, q=124+r, a=ST(r), b=ST(r)+1), 2 if 'rsq' in f else 1, 'SR'))
    for r in range(4):
        for f, n in (('v_fma_f32 v{t}, v{c}, v{b}, v{d}', 4), ('v_fmac_f32 v{t}, v{x}, v{a}', 4), ('v_mul_f32 v{z}, v{t}, v{t}', 2), ('v_fma_f32 v{z}, v{z}, s56, v51', 2),
                     ('v_mul_f32 v{z}, v{z}, v{t}', 2), ('v_exp_f32 v{z}, v{z}', 2), ('v_mul_f32 v{t}, v{t}, v{u}', 2), ('v_add_f32 v{z}, 1.0, v{z}', 2), ('v_rcp_f32 v{z}, v{z}', 2),
                     ('v_mul_f32 v{t}, v{t}, v{z}', 2), ('v_cvt_pk_bf16_f32 v{o}, v{t}, v{t1}', 1)):
            for s in range(ns):
                for e in range(n):
                    E.append((f.format(t=T(s, 0)+e, t1=T(s, 0)+1, u=T(s, 1)+e, z=T(s, 2)+e, c=16+4*s+e, d=28+4*s+e, x=ACC(s, r)+e, a=ST(r), b=ST(r)+1, o=O(r)+s), 2 if ('exp' in f or 'rcp' in f) else 1, None))
        E.append((r, 1, 'DONE'))
    a('v_mov_b32 v51, s57')
    done = [0]; stored = [0]; have = [0]
    def epi(budget):
        while E and budget > 0:
            t, c, kd = E.pop(0); budget -= c
            if kd == 'DONE':
                done[0] = t + 1
                if w3: lq.issue(w3w(t), ('W3', t))
            else:
                if kd: lq.need(kd)
                a(t)
    for g in range(32):
        h2, ks = divmod(g, 16)
        pend = []; extra = []; vm = []
        if h2 == 0:
            upto(('W', ks)); vq.need(('W', ks))
            if ks == 14 and not w3:
                upto('PCS'); vq.need('PCS')
                extra = [('v_add_f32 v%d, v%d, v%d\nv_add_f32 v%d, v%d, v%d' % (d, d, d+16, d+1, d+1, d+17), 0) for d in range(16, 32, 2)]
            if ks == 15 and not w3:
                extra = [('v_add_f32 v%d, v%d, v%d\nv_add_f32 v%d, v%d, v%d' % (d, d, x, d+1, d+1, x+1), 0) for d, x in [(16, 18), (20, 22), (24, 26), (28, 30), (16, 20), (24, 28), (16, 24)]] + [('ds_write_b64 v228, v[16:17]', 1)]
        else:
            nw = min(16 + 3*ks - wn[0], WPS, len(W)); vm = W[:nw]; W = W[nw:]; wn[0] += nw
            if ks == P0_AT: pissue(vq, 0)
            if ks == 0 and w3: extra = [None]*2 + [(x, 1) for x in dump(0)]
        order = [(r, s) for r in range(4) for s in range(3)]
        if w3 and g == 31: order = [(r, s) for s in (2, 0, 1) for r in range(4)]; extra = [None]*5 + [(x, 1) for x in dump(1)[:7]]
        for n, (r, s) in enumerate(order):
            rt = 4*h2 + r
            if n == 2 and g < 31:
                if g < 15 and ks % 2 == 0:
                    upto(('D', min(ks+2, 15))); vq.need(('D', min(ks+2, 15))); a('s_barrier')
                if ks == 7:
                    for i in range(4): a('v_add_u32 v%d, 0x10000, v%d' % (8+4*h2+i, 8+4*h2+i))
                pend = trs(g+1)
            if h2 and n == 0 and ks in (1, X1, X2):
                if ks > 1 and w3: assert done[0] >= (2 if ks == X1 else 4), (ks, done)
                if ks == X2: vq.need(('S', 1))
                lq.drain(); a('s_barrier')
                if ks == X2: vq.issue(FLAG(0))
                if ks == 1:
                    for x in sread(0): lq.issue(x)
                    for ty in range(2):
                        for s_ in range(ns): lq.issue('ds_read_b128 %s, v232 offset:%d' % (V4(16+12*ty+4*s_), 768*ty + 64*s_), 'SR')
                else:
                    have[0] += 2
                    if not w3:
                        for i in (have[0]-2, have[0]-1): lq.issue(xr(i), ('XR', i))
            lq.need(('X', g, r))
            c = V4(ACC(s, rt)); xf = V4(XF(g % 2, r))
            a('v_mfma_f32_16x16x32_bf16 %s, %s, %s, %s' % (c, xf if s >= ns else 'a[%d:%d]' % (12*ks+4*s, 12*ks+4*s+3), xf, c if ks else '0'))
            if pend: lq.issue(*pend.pop(0))
            if h2 == 0 and M and n % 3 == 1 and (vq.pos.get(('D', min(ks + AH + 1, 15))) is None or ks >= 15 - AH - 1): vq.issue(*M.pop(0))
            if vm and n % 3 == 2: vq.issue(*vm.pop(0))
            if extra:
                x = extra.pop(0)
                if x: (lq.issue if x[1] else a)(x[0])
            if h2 and ks >= E0: epi(SLOTS)
            if h2 and n == 6 and (SCHED[stored[0]] == ks if w3 else stored[0] < min(done[0], have[0])) and stored[0] < 4:
                if not w3: lq.need(('XR', stored[0])); SCHED[stored[0]] = ks
                store(stored[0]); stored[0] += 1
        assert not pend and not vm and not extra, (g, pend, vm, extra)
        if g == 15: a.stamp(3); assert not M
    a.stamp(4)
    if w3: a('s_nop 4'); lq.issue(dump(1)[7])
    print('epi A leftover', len(E), 'stored', stored[0])
    assert not W
    epi(10**6)
    lq.drain()
    assert stored[0] == 4
    vq.need(('S', 3))
    a('s_barrier')
    vq.issue(FLAG(1))
    for x in sread(1): a(x)
    for r in (0, 2):
        a('s_waitcnt lgkmcnt(%d)' % (2 - r))
        a("""
        v_pk_mul_f32 {m}, {m}, v[230:231] op_sel_hi:[1,0]
        v_pk_fma_f32 {q}, {q}, v[230:231], v[230:231] op_sel:[0,0,1] op_sel_hi:[1,0,1]
        v_pk_fma_f32 {q}, {m}, {m}, {q} neg_lo:[1,0,0] neg_hi:[1,0,0]
        v_rsq_f32 v{a}, v{q0}
        v_rsq_f32 v{b}, v{q1}
        v_mul_f32 v{a1}, -v{m0}, v{a}
        v_mul_f32 v{b1}, -v{m1}, v{b}
        """.format(m=P(120+r), q=P(124+r), a=ST(r), b=ST(r+1), a1=ST(r)+1, b1=ST(r+1)+1, q0=124+r, q1=125+r, m0=120+r, m1=121+r))
    HQ = []
    def hload(n):
        for _ in range(n):
            if HQ: vq.issue(*HQ.pop(0))
    XB = {1: (4, 5), 3: (6, 7)}
    for r in range(4):
        rt = 4 + r; st = P(ST(r))
        if P2D and r in (1, 3): a.stamp(6 + r//2)
        if r == HPRE0: pcheck(a, vq, 0, 'w%d' % w3); HQ += [hl(0, k) for k in range(12)]
        if r == PA_AT: pissue(vq, 1)
        for f, nl in (('v_pk_fma_f32 {t}, {c}, {st}, {d} op_sel:[0,1,0] op_sel_hi:[1,1,1]\nv_pk_fma_f32 {u}, {c2}, {st}, {d2} op_sel:[0,1,0] op_sel_hi:[1,1,1]', 2),
                  ('v_pk_fma_f32 {t}, {x}, {st}, {t} op_sel_hi:[1,0,1]\nv_pk_fma_f32 {u}, {x2}, {st}, {u} op_sel_hi:[1,0,1]', 2),
                  ('v_pk_mul_f32 {z}, {t}, {t}', 0), ('v_pk_fma_f32 {z}, {z}, s[56:57], s[56:57] op_sel:[0,0,1] op_sel_hi:[1,0,1]', 1), ('v_pk_mul_f32 {z}, {z}, {t}', 'X'),
                  ('v_exp_f32 v{z0}, v{z0}\nv_exp_f32 v{z1}, v{z1}', 1), ('v_pk_mul_f32 {t}, {t}, {u}', 0), ('v_pk_add_f32 {z}, {z}, 1.0 op_sel_hi:[1,0]', 'S'),
                  ('v_rcp_f32 v{z0}, v{z0}\nv_rcp_f32 v{z1}, v{z1}', 2), ('v_pk_mul_f32 {t}, {t}, {z}', 0), ('v_cvt_pk_bf16_f32 v{o}, v{t0}, v{t1}', 0)):
            for s in range(ns):
                a(f.format(t=P(T(s, 0)), u=P(T(s, 1)), z=P(T(s, 2)), c=P(16+4*s), c2=P(18+4*s), d=P(28+4*s), d2=P(30+4*s), x=P(ACC(s, rt)), x2=P(ACC(s, rt)+2), st=st,
                           z0=T(s, 2), z1=T(s, 2)+1, t0=T(s, 0), t1=T(s, 0)+1, o=O(r)+s))
            if nl == 'X':
                if r in XB and not w3:
                    a('s_barrier')
                    for i in XB[r]: a(xr(i))
            elif nl == 'S':
                if r in XB and not w3: a('s_waitcnt lgkmcnt(0)')
                if r >= 1: store(rt-1)
            else: hload(nl)
        if w3:
            a(w3w(rt))
            if r in XB: a('s_waitcnt lgkmcnt(0)\ns_barrier')
    hload(99)
    store(7)
    rel = {t: p - vq.issued for t, p in vq.pos.items() if t[0] in 'HSP' and t != 'PCS'}
    if not w3: ENTRY.update(issued=vq.issued, done=0, pos=dict(vq.pos), rel=rel)
    else: assert rel == ENTRY['rel']
    a.stamp(5)
    if not w3: a('s_branch K3_p2')
SCHED = {0: -1, 1: -1, 2: -1, 3: -1, 4: -1}
```

```python
XT_OFF   = 0
ST1_OFF  = 0x200000
MOD_OFF  = 0x204000
FLG_OFF  = 0x208000
PCS_OFF  = 0x1C00000
KX_OFF   = 0x220000
KX_PITCH = 4224
WD_OFF   = 0x430000
WP_OFF   = 0x5A0000
X1T_OFF  = 0x860000
HF_OFF   = 0xA60000
WS_END   = HF_OFF + 128*16*3072
assert KX_OFF + 512*KX_PITCH <= WD_OFF
assert WD_OFF + 8*16*11264 <= WP_OFF
assert WP_OFF + 16*16*11264 <= X1T_OFF
assert WS_END <= 0x1060000
DIAG_OFF = 0x1000000

PCS_OFF = 0x1060000
DIAG_OFF = 0x1100000
def fmap(G, slot, cg):
    if slot < 9: return 86*G + 24*(slot//3) + 3*cg + slot % 3
    return 86*G + 72 + 2*cg + (slot-9) if cg < 7 else -1
CHUNK = [[0,1,2,9],[3,4,5,10],[6,7,8]]

FL2_OFF = 0x220000
EPOCH_OFF = 0x228000
FL3_OFF = 0x22A000
FLW_OFF = 0x232000
FLG_OFF = 0x240000
XP = 4352
X1T_OFF = 0x1200000
```

```python
import sys
from gen_common import *
Asm.DIAG = 'diag' in sys.argv or 'diag2' in sys.argv
Asm.SKIP = 'diag2' in sys.argv
import k1, k2, k34
for kv in sys.argv[1:]:
    if '=' in kv:
        k, v = kv.split('='); m, n = k.split('.'); setattr(globals()[m], n, eval(v))
L = [('k1_kernel', 256, 256, k34.K3_LDS)]
K = [('k1_kernel', k1.gen_k1(), 512, 256)]
hdr = ''.join(l for l in open('adaLN_cond__ssm_conv_s4d__glu_gated_geglu__prompt.s.ref').readlines()[:17])
out = [x for x in sys.argv[1:] if x.endswith('.s')]
open(out[0], 'w').write(build(L, K, hdr))
if 'plain' in sys.argv:
    L = open(out[0]).read().split('\n')
    for i, l in enumerate(L):
        if 'buffer_load' in l and ' sc1' in l and 'v62,' not in l and 'v58,' not in l: L[i] = l.replace(' sc1', '')
    open(out[0], 'w').write('\n'.join(L))
```

```python
from gen_common import *
from layout import *
LOG2E = 0x3fb8aa3b
INV2PI = 0x3e22f983
def prologue(a):
    a.stamp(0)
    a('''
    s_load_dwordx16 s[16:31], s[0:1], 0
    s_load_dwordx16 s[32:47], s[0:1], 64
    v_lshrrev_b32 v1, 6, v0
    v_and_b32 v2, 63, v0
    v_readfirstlane_b32 s3, v1
    s_mov_b32 s6, 0x2000000
    s_mov_b32 s7, 0x20000
    s_mov_b32 s11, 0x20000
    ''')
def wait_args(a):
    a('''
    s_waitcnt lgkmcnt(0)
    s_mov_b32 s4, s46
    s_mov_b32 s5, s47
    ''')
    a.stamp(1)
def cmul(a, d, x, y, t):
    a('v_pk_mul_f32 v[%d:%d], v[%d:%d], v[%d:%d] op_sel:[0,0] op_sel_hi:[1,0]' % (t, t+1, x, x+1, y, y+1))
    a('v_pk_fma_f32 v[%d:%d], v[%d:%d], v[%d:%d], v[%d:%d] op_sel:[1,1,0] op_sel_hi:[0,1,1] neg_lo:[1,0,0]' % (d, d+1, x, x+1, y, y+1, t, t+1))

HLD = 98304
PITCH = 544
CHB = 64*PITCH
K1_LDS = 2*CHB

import re
KSH = 96
class ShAsm:
    def __init__(self, a, sh=96): self.a = a; self.sh = sh
    def __call__(self, s):
        KSH = self.sh
        s = re.sub(r'\bv\[(\d+):(\d+)\]', lambda m: 'v[%d:%d]' % (int(m.group(1))+KSH, int(m.group(2))+KSH), s)
        s = re.sub(r'\bv(\d+)\b', lambda m: 'v%d' % (int(m.group(1)) + (KSH if 3 <= int(m.group(1)) < 250 else 0)), s)
        self.a(s)
    def stamp(self, i): self.a.stamp(i)
NFLAG = 128 + 80
def nonce_load(a, r=20): a('global_load_dwordx2 v[%d:%d], v%d, s[44:45] offset:128 sc1' % (r, r+1, r+2))
def nonce_wait(a, lb, r=20):
    a('''
    v_cmp_ne_u32 vcc, 1, v%d
    s_cbranch_vccz %s_x
    s_mov_b32 s73, 0
%s:
    global_load_dwordx2 v[%d:%d], v%d, s[44:45] offset:128 sc1
    s_add_u32 s73, s73, 1
    s_waitcnt vmcnt(0)
    v_cmp_ne_u32 vcc, 1, v%d
    s_cmp_gt_u32 s73, 0x40000
    s_cbranch_scc1 %s_x
    s_cbranch_vccnz %s
%s_x:
    ''' % (r+1, lb, lb, r, r+1, r+2, r+1, lb, lb, lb))
PUB_AT = 22
TLO, THI = 0, 32
NONCE_AT = 6
FPOLL = (3, 2)
STASH = [3, 4, 8, 10, 11, 12, 13, 14, 40, 41, 42, 43, 44, 45, 46, 47, 58, 59, 60, 61]
PARAMS = """
    global_load_short_d16_hi v12, v4, s[26:27]
    global_load_short_d16_hi v8, v3, s[18:19]
    global_load_short_d16_hi v9, v3, s[20:21]
    global_load_short_d16_hi v10, v3, s[22:23]
    global_load_short_d16_hi v11, v3, s[24:25]
    global_load_short_d16_hi v29, v4, s[28:29]
"""
def poll4(a, lb, r, va, so):
    a("""
    s_mov_b32 s73, 0
    s_branch LB_c
LB:
    buffer_load_dwordx4 v[%d:%d], %s, s[4:7], %s offen sc1
    s_add_u32 s73, s73, 1
    s_waitcnt vmcnt(0)
LB_c:
    v_xor_b32 v%d, s30, v%d
    v_xor_b32 v%d, s30, v%d
    v_xor_b32 v%d, s30, v%d
    v_xor_b32 v%d, s30, v%d
    v_or3_b32 v%d, v%d, v%d, v%d
    v_or_b32 v%d, v%d, v%d
    v_cmpx_ne_u32 vcc, 0, v%d
    s_cmp_gt_u32 s73, 0x40000
    s_cbranch_scc1 LB_y
    s_cbranch_execnz LB
LB_y:
    s_mov_b64 exec, -1
    """.replace('LB', lb) % (r, r+3, va, so, r, r, r+1, r+1, r+2, r+2, r+3, r+3, r, r, r+1, r+2, r, r, r+3, r))
def gen_k1():
    import k2, k34
    a0 = Asm()
    prologue(a0)
    a0('''
    s_cmp_ge_u32 s2, 256
    s_cbranch_scc1 K3_end
    s_cmp_ge_u32 s2, TLO
    s_cselect_b32 s8, 1, 0
    s_cmp_lt_u32 s2, THI
    s_cselect_b32 s8, s8, 0
    s_cmp_eq_u32 s8, 0
    s_cbranch_scc1 K1_nt
    s_bfe_u32 s8, s2, 0x20003
    s_lshl_b32 s8, s8, 14
    v_lshl_add_u32 v11, v0, 6, s8
    v_min_u32 v11, CODE_END-K1_pc-4, v11
    s_getpc_b64 s[64:65]
K1_pc:
    global_load_dword v12, v11, s[64:65]
K1_nt:
    s_mov_b32 s60, 0x05040100
    s_mov_b32 s61, 0x07060302
    s_mov_b32 s51, 0
    s_mov_b32 s49, 0
    v_mov_b32 v9, 0
    v_mov_b32 v10, 0
    v_mov_b32 v11, 0
    ''')
    a = ash = ShAsm(a0)
    a('''
    s_and_b32 s8, s2, 7
    s_lshr_b32 s9, s2, 3
    s_and_b32 s10, s9, 7
    s_lshr_b32 s9, s9, 3
    s_lshl_b32 s12, s8, 2
    s_add_u32 s12, s12, s9
    s_lshl_b32 s12, s12, 4
    s_add_u32 s12, s12, s10               ; dA
    s_lshr_b32 s9, s3, 1
    s_and_b32 s10, s3, 1                  ; half
    s_lshl_b32 s13, s9, 3
    s_add_u32 s12, s12, s13               ; channel
    s_lshl_b32 s8, s12, 8
    s_lshl_b32 s13, s10, 7
    s_add_u32 s8, s8, s13
    v_lshl_add_u32 v3, v2, 1, s8
    s_lshl_b32 s13, s12, 1
    v_mov_b32 v4, s13
    v_mov_b32 v29, 0
    v_mov_b32 v8, 0
    v_mov_b32 v9, 0
    v_mov_b32 v10, 0
    v_mov_b32 v11, 0
    v_mov_b32 v12, 0
    s_mov_b32 s62, s12
    ''')
    a = a0
    a('''
    s_cmp_ge_u32 s2, 224
    s_cbranch_scc1 K1_wd
    s_cmp_lt_u32 s2, 128
    s_cbranch_scc1 K1_ln
    ''')
    IN = lambda r, c: 16 + 4*r + c
    a('''
    s_sub_u32 s8, s2, %d
    s_and_b32 s9, s8, 7
    s_lshr_b32 s8, s8, 3
    s_lshl_b32 s9, s9, 1
    s_and_b32 s10, s8, 1
    s_add_u32 s9, s9, s10
    s_lshr_b32 s8, s8, 1
    s_lshl_b32 s8, s8, 4
    s_add_u32 s8, s8, s9                   ; column block
    v_and_b32 v3, 3, v0                    ; cq
    v_lshrrev_b32 v4, 2, v0                ; rg
    v_lshlrev_b32 v5, 4, v4                ; c offset
    v_mul_u32_u24 v6, %d, v4
    v_lshl_add_u32 v6, v3, 4, v6
    s_lshl_b32 s9, s8, 6
    s_lshl_b32 s67, s8, 7
    s_add_u32 s67, s67, FL2M
    s_mov_b32 s68, 15
    ''' % (128, 8*6144))
    wait_args(a)
    a('''
    s_mov_b32 s12, s40
    s_mov_b32 s13, s41
    s_mov_b32 s14, %d
    s_mov_b32 s15, 0x20000
    global_load_dwordx4 v[8:11], v5, s[38:39]
    ''' % (512*6144))
    for r in range(8):
        a('buffer_load_dwordx4 v[%d:%d], v6, s[12:15], s9 offen' % (IN(r, 0), IN(r, 3)))
        if r < 7: a('s_add_u32 s9, s9, 6144')
    ash(PARAMS)
    a('s_branch K1_mid')
    a('''
K1_wd:
    s_sub_u32 s8, s2, 224
    s_lshl_b32 s8, s8, 2
    s_add_u32 s8, s8, s3
    s_memrealtime s[64:65]
    s_mov_b32 s67, EPOCH+128
    s_mov_b32 s68, 1
    ''')
    wait_args(a)
    a('''
    s_cmp_lg_u32 s8, 0
    s_cbranch_scc1 K1_nolead
    s_mul_i32 s65, s65, 0x9e3779b1
    s_xor_b32 s64, s64, s65
    v_mov_b32 v14, s64
    v_mov_b32 v15, 1
    v_mov_b32 v13, 0
    s_mov_b64 exec, 1
    global_store_dwordx2 v13, v[14:15], s[44:45] offset:128 sc1
    s_mov_b64 exec, -1
K1_nolead:
    ''')
    ash(PARAMS)
    a('s_branch K1_mid\nK1_ln:')
    a('''
    s_mov_b32 s66, s2
    s_and_b32 s48, s66, 63
    s_lshl_b32 s8, s48, 2
    s_add_u32 s8, s8, s3                   ; lb
    s_lshl_b32 s9, s8, 13
    v_lshl_add_u32 v3, v2, 4, s9
    v_add_u32 v4, 0x1000, v3
    v_mov_b32 v5, 0x3f803f80
    s_lshl_b32 s49, s48, 15
    s_lshl_b32 s50, s3, 13
    s_add_u32 s49, s49, s50                ; XT2 soffset (wave covers 8 KB)
    s_add_u32 s51, s49, 4096
    v_lshlrev_b32 v6, 6, v2
    v_bfe_u32 v9, v2, 1, 2
    v_xor_b32 v9, s3, v9
    v_lshl_add_u32 v9, v9, 4, v6        ; LDS write addr (swizzled piece)
    v_bfe_u32 v10, v2, 3, 2
    v_xor_b32 v10, v10, v2
    v_lshl_add_u32 v10, v10, 4, s50      ; LDS read addr
    v_lshlrev_b32 v11, 4, v2
    v_add_u32 v9, HLDV, v9
    v_add_u32 v10, HLDV, v10
    s_lshr_b32 s67, s48, 1
    s_lshl_b32 s67, s67, 5
    s_and_b32 s68, s48, 1
    s_add_u32 s67, s67, s68
    s_lshr_b32 s68, s66, 6
    s_lshl_b32 s68, s68, 1
    s_add_u32 s67, s67, s68
    s_lshl_b32 s67, s67, 2
    s_add_u32 s67, s67, %d
    s_mov_b32 s68, 1
    ''' % FL2_OFF)
    wait_args(a)
    IN = lambda r, c: 16 + 4*r + c
    for r in range(8):
        a('global_load_dwordx4 v[%d:%d], v%d, s[16:17] offset:%d' % (IN(r, 0), IN(r, 3), 3 + r//4, 1024*(r % 4)))
    ash(PARAMS)
    a('''
K1_mid:
    s_mov_b32 s16, s8
    s_mov_b32 s17, s49
    s_mov_b32 s18, s51
    s_mov_b32 s19, s67
    s_mov_b64 s[20:21], s[60:61]
    s_mov_b32 s26, s68
    s_mov_b32 s27, 0
    ''')
    a = ash
    a('''
    s_lshr_b32 s9, s3, 1
    s_and_b32 s10, s3, 1
    s_mul_i32 s14, s9, %d
    s_lshl_b32 s15, s10, 8
    s_add_u32 s15, s15, s14
    s_mov_b32 m0, s15
    ''' % CHB)
    a('''
    v_and_b32 v5, 15, v2                  ; m / n'
    v_lshrrev_b32 v6, 4, v2               ; g
    v_sub_u32 v7, 15, v5
    v_cvt_f32_u32 v7, v7                  ; beta
    v_lshl_add_u32 v13, v6, 4, s14        ; chbase + 16 g
    s_cmp_eq_u32 s10, 0
    ''')
    inv = {1: 0x3f800000, 2: 0x3f000000, 4: 0x3e800000, 8: 0x3e000000}
    for i, (s0, b0, b1) in enumerate([(1, 0, 35), (2, 16, 38), (4, 25, 41), (4, 30, 44)]):
        a('''
        s_mov_b32 s48, 0x%x
        s_cselect_b32 s48, s48, 0x%x
        s_cselect_b32 s49, %d, %d
        v_mul_f32 v14, s48, v7
        v_rndne_f32 v14, v14
        v_cvt_u32_f32 v14, v14
        v_add_u32 v14, s49, v14
        v_mul_u32_u24 v14, %d, v14
        v_add_u32 v%d, v14, v13
        ''' % (inv[s0], inv[8], b0, b1, PITCH, 20+i))
    a('''
    v_sub_u32 v14, 62, v5
    v_mul_u32_u24 v14, %d, v14
    v_add_u32 v24, v14, v13
    v_lshlrev_b32 v25, 5, v5
    v_lshl_add_u32 v25, v6, 3, v25
    s_mul_i32 s50, s9, 8320
    s_lshl_b32 s52, s10, 11
    s_sub_u32 s50, s50, s52
    s_add_u32 s50, s50, %d
    v_add_u32 v25, s50, v25               ; K LDS write address
    v_mov_b32 v26, 0x3f80                 ; z^0 = (1, 0)
    ds_write_addtid_b32 v26 offset:0
    ''' % (PITCH, k2.KE + 2048))
    a = a0
    a2 = ShAsm(a0, 140)
    k2.setup(a2)
    a2('''
    v_cmp_gt_u32 vcc, 32, v2
    v_cndmask_b32 v58, 0, v2, vcc
    s_lshr_b32 s51, s62, 5
    s_add_u32 s51, s51, 32
    v_writelane_b32 v58, s51, 32
    s_add_u32 s51, s51, 16
    v_writelane_b32 v58, s51, 33
    s_add_u32 s51, s51, 16
    v_writelane_b32 v58, s51, 34
    s_lshr_b32 s51, s2, 4
    s_add_u32 s51, s51, 80
    v_writelane_b32 v58, s51, 35
    s_add_u32 s51, s51, 16
    v_writelane_b32 v58, s51, 36
    v_lshlrev_b32 v58, 7, v58
    s_mov_b32 s51, %d
    ''' % FL2_OFF)
    for n, r in enumerate(STASH): a('v_accvgpr_write_b32 a%d, v%d' % (n, r+140))
    a('''
    s_cmp_lt_u32 s2, 64
    s_cbranch_scc1 K1_tp
    s_cmp_lt_u32 s2, 128
    s_cbranch_scc1 K1_st
    s_cmp_lt_u32 s2, 224
    s_cbranch_scc1 K1_mp
    ''')
    a('''
    ''')
    a('''
    s_and_b32 s28, s16, 7                    ; Bd
    s_lshr_b32 s29, s16, 3                  ; G
    v_and_b32 v3, 15, v2
    v_lshrrev_b32 v4, 4, v2                ; g
    v_lshlrev_b32 v3, 3, v3
    v_mul_u32_u24 v5, 6144, v4
    v_add_u32 v5, v5, v3                   ; voffA
    v_lshl_add_u32 v6, v4, 12, v3          ; voffB
    v_mov_b32 v8, 0x40000000
    v_cmp_eq_u32 vcc, 3, v4
    s_mul_i32 s17, s29, %d
    s_lshl_b32 s18, s28, 7
    v_cndmask_b32 v7, v6, v8, vcc          ; voffB for r=1
    s_add_u32 s17, s17, s18                ; base soffset
    s_add_u32 s25, s17, %d
    s_lshl_b32 s22, s28, 4
    s_add_u32 s22, s22, s29
    s_mul_i32 s22, s22, 11264
    s_add_u32 s22, s22, %d
    s_add_u32 s23, s22, 4096
    s_add_u32 s24, s22, 8192
    v_lshlrev_b32 v9, 4, v2
    v_mul_u32_u24 v10, 12, v2
    s_mov_b32 s10, %d
    ''' % (86*1024, 72*1024, WD_OFF, 1376*1024))
    a('s_mov_b32 s8, s36\ns_mov_b32 s9, s37')
    Lr = lambda s, r: 16 + 4*s + 2*r
    for u, ch in enumerate(CHUNK):
        for r in range(2):
            a('s_add_u32 s18, s17, %d' % ((24*u + 3*r)*1024))
            for s in ch[:3]:
                a('buffer_load_dwordx2 v[%d:%d], v5, s[8:11], s18 offen offset:%d' % (Lr(s, r), Lr(s, r)+1, 1024*(s % 3)))
            if len(ch) == 4:
                s = ch[3]
                a('buffer_load_dwordx2 v[%d:%d], v%d, s[8:11], s25 offen offset:%d' % (Lr(s, r), Lr(s, r)+1, 6+r, 1024*(2*r + s - 9)))
    a('s_waitcnt vmcnt(22)\ns_branch K1_join\nK1_wdp:\ns_waitcnt vmcnt(16)')
    nonce_wait(a, 'K1_nw2', 96)
    a('v_readfirstlane_b32 s30, v96')
    for u, ch in enumerate(CHUNK):
        for c in range(4):
            o = 80 + 4*c
            for j, s in enumerate(ch):
                a('v_perm_b32 v%d, v%d, v%d, s%d' % (o+j, Lr(s, 1) + c//2, Lr(s, 0) + c//2, 20 + c % 2))
            if u < 2:
                a('buffer_store_dwordx4 v[%d:%d], v9, s[4:7], s%d offen offset:%d sc1' % (o, o+3, 22+u, 1024*c))
            else:
                a('buffer_store_dwordx3 v[%d:%d], v10, s[4:7], s24 offen offset:%d sc1' % (o, o+2, 768*c))
    a('s_branch K1_wdr\nK1_mp:')
    a('s_waitcnt vmcnt(14)')
    for i in range(4):
        a('v_lshlrev_b32 v%d, 16, v%d\nv_and_b32 v%d, 0xffff0000, v%d' % (48+2*i, 8+i, 49+2*i, 8+i))
    for i in range(8): a('v_mul_f32 v%d, 0x%x, v%d' % (56+i, LOG2E | 0x80000000, 48+i))
    for i in range(8): a('v_exp_f32 v%d, v%d' % (56+i, 56+i))
    for i in range(8): a('v_add_f32 v%d, 1.0, v%d' % (56+i, 56+i))
    for i in range(8): a('v_rcp_f32 v%d, v%d' % (56+i, 56+i))
    for i in range(8): a('v_mul_f32 v%d, v%d, v%d' % (48+i, 48+i, 56+i))
    for p in range(4): a('v_cvt_pk_bf16_f32 v%d, v%d, v%d' % (8+p, 48+2*p, 49+2*p))
    for p in range(4):
        a('s_waitcnt vmcnt(%d)' % (12-2*p))
        for j in range(8):
            a('v_perm_b32 v%d, v%d, v%d, s%d' % (64+j, IN(2*p+1, j//2), IN(2*p, j//2), 20 + j % 2))
        for j in range(8):
            a('v_dot2_f32_bf16 v%d, v%d, v%d, %s' % (48+j, 64+j, 8+p, 'v%d' % (48+j) if p else '0'))
    a('s_nop 2')
    for j in range(4): a('v_permlane32_swap_b32 v%d, v%d' % (48+j, 52+j))
    for j in range(4): a('v_add_f32 v%d, v%d, v%d' % (48+j, 48+j, 52+j))
    a('s_nop 0')
    for j in range(2): a('v_permlane16_swap_b32 v%d, v%d' % (48+j, 50+j))
    for j in range(2): a('v_add_f32 v%d, v%d, v%d' % (48+j, 48+j, 50+j))
    a('s_nop 0')
    for sh in (8, 4):
        for j in range(2): a('v_add_f32_dpp v%d, v%d, v%d row_ror:%d row_mask:0xf bank_mask:0xf' % (48+j, 48+j, 48+j, sh))
        a('s_nop 0')
    a('''
    v_lshrrev_b32 v4, 4, v2
    v_lshlrev_b32 v4, 3, v4
    v_lshl_add_u32 v4, v3, 5, v4
    s_lshl_b32 s9, s3, 7
    s_add_u32 s9, s9, HLDV
    v_add_u32 v4, s9, v4
    ds_write_b64 v4, v[48:49]
    s_waitcnt vmcnt(0) lgkmcnt(0)
    s_barrier
    s_cmp_lg_u32 s3, 0
    s_cbranch_scc1 K1_join
    v_and_b32 v4, 31, v2
    v_lshlrev_b32 v4, 2, v4
    v_add_u32 v5, HLDV, v4
    ds_read2_b32 v[8:9], v5 offset0:0 offset1:32
    ds_read2_b32 v[10:11], v5 offset0:64 offset1:96
    s_lshr_b32 s9, s16, 4
    s_cmp_eq_u32 s9, 1
    s_cselect_b32 s10, 1.0, 0
    s_cmp_eq_u32 s9, 4
    s_cselect_b32 s10, 1.0, s10
    s_lshl_b32 s9, s16, 7
    s_add_u32 s9, s9, %d
    s_waitcnt lgkmcnt(0)
    v_add_f32 v8, v8, v9
    v_add_f32 v10, v10, v11
    v_add_f32 v8, v8, v10
    v_cvt_pk_bf16_f32 v8, v8, v8
    v_and_b32 v8, 0xffff0000, v8
    v_add_f32 v8, s10, v8
    v_cvt_pk_bf16_f32 v8, v8, v8
    v_and_b32 v8, 0xffff0000, v8
    buffer_store_dword v8, v4, s[4:7], s9 offen sc1
    s_branch K1_join
    ''' % MOD_OFF)
    a('K1_tp:')
    S = lambda r: 48 + r
    Qq = lambda r: 56 + r
    OUT = lambda j, p: 64 + 4*j + p
    def dots(r):
        for c in range(4):
            a('v_dot2_f32_bf16 v%d, v%d, v5, %s' % (S(r), IN(r, c), 'v%d' % S(r) if c else '0'))
            a('v_dot2_f32_bf16 v%d, v%d, v%d, %s' % (Qq(r), IN(r, c), IN(r, c), 'v%d' % Qq(r) if c else '0'))
    for p in range(4):
        a('s_waitcnt vmcnt(%d)' % (12-2*p))
        for j in range(8):
            a('v_perm_b32 v%d, v%d, v%d, s%d' % (OUT(j, p), IN(2*p+1, j//2), IN(2*p, j//2), 20 + j % 2))
            if p == 3: a('ds_write_b128 v9, v[%d:%d] offset:%d' % (OUT(j, 0), OUT(j, 3), 4096*j))
    a('s_waitcnt lgkmcnt(0)\ns_barrier')
    for j in range(8):
        a('ds_read_b128 v[%d:%d], v10 offset:%d' % (OUT(j, 0), OUT(j, 3), 1024*j))
    for j in range(8):
        a('s_waitcnt lgkmcnt(%d)' % (7-j))
        a('buffer_store_dwordx4 v[%d:%d], v11, s[4:7], s%d offen offset:%d sc1' % (OUT(j, 0), OUT(j, 3), 17 + j//4, 1024*(j % 4)))
    a('s_waitcnt vmcnt(8)\ns_branch K1_join\nK1_st:')
    for r in range(8):
        a('s_waitcnt vmcnt(%d)' % (13-r))
        dots(r)
    a('s_nop 1')
    for r in range(8):
        a('v_permlane32_swap_b32 v%d, v%d' % (S(r), Qq(r)))
    for r in range(8):
        a('v_add_f32 v%d, v%d, v%d' % (S(r), S(r), Qq(r)))
    for i in range(4):
        a('v_permlane16_swap_b32 v%d, v%d' % (S(i), S(i+4)))
    for i in range(4):
        a('v_add_f32 v%d, v%d, v%d' % (S(i), S(i), S(i+4)))
    for sh in (8, 4, 2, 1):
        for i in range(4):
            a('v_add_f32_dpp v%d, v%d, v%d row_ror:%d row_mask:0xf bank_mask:0xf' % (S(i), S(i), S(i), sh))
    for i in range(4):
        a('v_mov_b32 v%d, v%d' % (Qq(i), S(i)))
    a('s_nop 0')
    for i in range(4):
        a('v_permlane32_swap_b32 v%d, v%d' % (S(i), Qq(i)))
    a('v_mov_b32 v6, 0x3727c5ac')
    for i in range(4):
        a('v_mul_f32 v%d, 0x3b000000, v%d' % (S(i), S(i)))
    for i in range(4):
        a('v_fmamk_f32 v%d, v%d, 0x3b000000, v6' % (Qq(i), Qq(i)))
    for i in range(4):
        a('v_fma_f32 v%d, -v%d, v%d, v%d' % (Qq(i), S(i), S(i), Qq(i)))
    RR = lambda i: 8 + 4*(i//2) + i % 2
    for i in range(4):
        a('v_rsq_f32 v%d, v%d' % (RR(i), Qq(i)))
    a('s_nop 0')
    for i in range(4):
        a('v_mul_f32 v%d, -v%d, v%d' % (RR(i)+2, S(i), RR(i)))
    a('''
    v_lshlrev_b32 v7, 9, v2                ; lane 0 -> 0, lane 16 -> 8192
    s_lshl_b32 s9, s16, 4
    s_add_u32 s9, s9, %d
    s_add_u32 s10, s9, 4096
    s_mov_b64 exec, 0x10001
    buffer_store_dwordx4 v[8:11], v7, s[4:7], s9 offen sc1
    buffer_store_dwordx4 v[12:15], v7, s[4:7], s10 offen sc1
    s_mov_b64 exec, -1
    ''' % ST1_OFF)
    a('''
    s_waitcnt vmcnt(2)
K1_join:
    v_mov_b32 v98, 0
    ''')
    a.stamp(2)
    def publish():
        a0('s_cmp_ge_u32 s2, 224\ns_cbranch_scc1 K1_npub\ns_waitcnt vmcnt(0)')
        nonce_wait(a0, 'K1_nw', 96)
        a0('''
        s_barrier
        v_readfirstlane_b32 s30, v96
        v_lshlrev_b32 v97, 2, v2
        s_cmp_eq_u32 s3, 1
        s_cbranch_scc0 K1_npub
        s_mov_b64 exec, s[26:27]
        buffer_store_dword v96, v97, s[4:7], s19 offen sc1
        s_mov_b64 exec, -1
K1_npub:
        ''')
        a0.stamp(3)
    def hook(tt):
        if tt == NONCE_AT: nonce_load(a0, 96)
        if tt == PUB_AT: publish()
        if tt > PUB_AT and (tt - PUB_AT) % 4 == 2 and (tt - PUB_AT)//4 < 8: k2.wloads(a0, (tt - PUB_AT)//4)
    a = ash
    a('''
    v_mul_f32 v12, 0x%x, v12
    v_mul_f32 v8, 0x%x, v8
    v_exp_f32 v12, v12
    v_exp_f32 v8, v8
    s_nop 0
    v_cvt_pk_bf16_f32 v14, v12, v8
    v_lshlrev_b32 v12, 16, v14            ; dt
    v_and_b32 v8, 0xffff0000, v14         ; exp(logA)
    v_mul_f32 v8, v8, v12
    v_mul_f32 v8, 0x%x, v8                ; lr = -Ar dt log2e
    v_mul_f32 v9, v9, v12
    v_mul_f32 v9, 0x%x, v9                ; th (revolutions/step)
    v_add_f32 v12, v12, v12
    ''' % (LOG2E, LOG2E, LOG2E | 0x80000000, INV2PI))
    Z = lambda m: 32 + 2*m
    Q = lambda k: 68 + 2*k
    def direct(d, p, t):
        a('''
        v_mul_f32 v%d, 0x%x, v8
        v_mul_f32 v%d, 0x%x, v9
        v_exp_f32 v%d, v%d
        v_fract_f32 v%d, v%d
        v_cos_f32 v%d, v%d
        v_sin_f32 v%d, v%d
        ''' % (t, p, t+1, p, t, t, t+1, t+1, d, t+1, d+1, t+1))
    direct(Z(1), 0x3f800000, 88)
    direct(Z(16), 0x41800000, 90)
    direct(Q(1), 0x43800000, 92)
    for d, t in ((Z(1), 88), (Z(16), 90), (Q(1), 92)):
        a('v_pk_mul_f32 v[%d:%d], v[%d:%d], v[%d:%d] op_sel_hi:[1,0]' % (d, d+1, d, d+1, t, t+1))
    a('v_pk_mul_f32 v[84:85], v[10:11], v[12:13] op_sel_hi:[1,0]')
    a('v_and_b32 v30, 127, v0\nv_cmp_eq_u32 vcc, 63, v30\ns_nop 1\nv_cndmask_b32 v29, 0, v29, vcc')
    pk = [0]
    def emit(row, r, neg=False):
        t = 96 + pk[0] % 8; pk[0] += 1
        a('v_cvt_pk_bf16_f32 v%d, v%d, %sv%d' % (t, r, '-' if neg else '', r+1))
        a('ds_write_addtid_b32 v%d offset:%d' % (t, row*PITCH))
    emit(1, Z(1))
    emit(47, 84, True)
    emit(16, Q(1))
    ops = []
    zs = []
    for m in range(2, 16):
        h = m//2
        zs.append((Z(m), Z(h), Z(m-h), m, False))
    cs = []
    for n in range(1, 16):
        cs.append((84 + 2*(n % 2), 84 + 2*((n-1) % 2), Z(16), 47+n, True))
    qs = []
    rowbase = {1: 16, 2: 25, 3: 30, 4: 35, 5: 38, 6: 41, 7: 44}
    for k in range(2, 8):
        h = k//2
        qs.append((Q(k), Q(h), Q(k-h), rowbase[k], False))
    seq = []
    for i in range(15):
        if i < len(zs): seq.append(zs[i])
        seq.append(cs[i])
        if i < len(qs): seq.append(qs[i])
    tt = 0
    for d, x, y, row, neg in seq:
        hook(tt)
        cmul(a, d, x, y, 88 + 2*(tt % 2)); tt += 1
        emit(row, d, neg)
    rest = [(k, r) for k in range(1, 8) for r in range(1, 16//(2 if k == 1 else (4 if k < 4 else 8)) + 1)]
    for n, (k, r) in enumerate(rest):
        step = 2 if k == 1 else (4 if k < 4 else 8)
        hook(tt)
        d = 92 + 2*(tt % 2)
        cmul(a, d, Q(k), Z(step*r), 88 + 2*(tt % 2)); tt += 1
        emit(rowbase[k] + r, d)
    a0('s_cmp_ge_u32 s2, 224\ns_cbranch_scc1 K1_wdp\nK1_wdr:')
    a0('s_cmp_eq_u32 s3, 1')
    for n, r in enumerate(STASH): a0('v_accvgpr_read_b32 v%d, a%d' % (r, n))
    a('s_waitcnt lgkmcnt(0)\ns_barrier')
    a.stamp(4)
    for s in range(8):
        a('ds_read_b128 v[%d:%d], v24 offset:%d' % (32+4*s, 35+4*s, 64*s))
        a('ds_read_b128 v[%d:%d], v20 offset:%d' % (64+4*s, 67+4*s, 64*s))
    def cv(j):
        a('''
        v_cvt_pk_bf16_f32 v%d, v%d, v%d
        v_cvt_pk_bf16_f32 v%d, v%d, v%d
        v_cvt_pk_bf16_f32 v%d, v%d, v%d
        ''' % (144+2*j, 128+4*j, 129+4*j, 145+2*j, 130+4*j, 131+4*j, 16+j, 129+4*j, 130+4*j))
    def kw(j):
        o = 512*(3-j)
        a('''
        ds_write_b64 v25, v[%d:%d] offset:%d
        ds_write_b32 v25, v%d offset:%d
        ds_write_b16 v25, v%d offset:%d
        ds_write_b16_d16_hi v25, v%d offset:%d
        ''' % (144+2*j, 145+2*j, o, 16+j, o+4160, 144+2*j, o+4158, 145+2*j, o+4164))
    for i in range(4):
        cur = 64 + 32*(i % 2); nxt = 64 + 32*((i+1) % 2)
        for s in range(8):
            if i == 0:
                a('s_waitcnt lgkmcnt(%d)' % (14 - 2*s + s))
            elif i < 3:
                a('s_waitcnt lgkmcnt(7)')
            elif s < 3:
                a('s_waitcnt lgkmcnt(%d)' % (7 - s))
            elif s == 3:
                a0('s_cbranch_scc0 K1_poll_x\ns_waitcnt vmcnt(0)')
                poll4(a0, 'K1_poll', 16, 'v58', 's51')
                a('K1_poll_x:\ns_waitcnt lgkmcnt(0)\ns_barrier')
                a.stamp(5)
                vq = k2.loads(a0)
            c = 'v[%d:%d]' % (128+4*i, 131+4*i)
            a('v_mfma_f32_16x16x32_bf16 %s, v[%d:%d], v[%d:%d], %s' % (c, cur+4*s, cur+4*s+3, 32+4*s, 35+4*s, c if s else '0'))
            if i < 3:
                a('ds_read_b128 v[%d:%d], v%d offset:%d' % (nxt+4*s, nxt+4*s+3, 21+i, 64*s))
            if i > 0 and s == 2:
                if i == 1: a('v_add_f32 v131, v131, v29')
                cv(i-1)
            if i == 3 and s in (3, 4, 5): kw(s-3)
            if i == 3 and s == 6: k2.pads(a0)
            if (i, s) == FPOLL: a0('s_cbranch_scc0 K1_np2\nbuffer_load_dwordx4 v[16:19], v58, s[4:7], s51 offen sc1\nK1_np2:')
    a('s_nop 7')
    cv(3); kw(3)
    a.stamp(6)
    a = a0
    k2.conv(a, vq)
    Asm.SKIP = not Asm.SKIP
    k34.gen_k3(a)
    return a.text().replace('MODGA', str(MOD_OFF + 4096)).replace('EPOCH', str(EPOCH_OFF)).replace('HLDV', str(HLD)).replace('XPITCH', str(XP)).replace('TLO', str(TLO)).replace('THI', str(THI)).replace('FL2M', str(FL2_OFF + 4096))
```

```python
from gen_common import *
from layout import *
from k1 import prologue, wait_args, poll4
from k2 import LdsQ
import struct
def fhex(x): return '0x%08x' % struct.unpack('<I', struct.pack('<f', x))[0]
K3_GRID = 256
SCR = 131072
SCS = SCR + 8192
SCT = SCS + 2048
SCX = SCT + 1536
K3_LDS = SCX + 4096
GK0 = -2*0.7978845608028654*1.4426950408889634
GK1 = GK0*0.044715
AHEAD = 4
UNR = 6
FUSED = True
SC = ' sc1'
WD_TAIL = 16
WD_EPI = 18
LA = 14
NEARLY = 1
FLAG_POS = 8
POLL_LEAD = [4, 4]
WD_SCHED = [(1,1,0,1)]*2 + [(1,1,0,0)]*6
HOOK2_AT = 12
FLAGB_AFTER = 7

class FQ(LdsQ):
    force = False
    def need(self, *tags):
        if self.force: self.done = 0
        LdsQ.need(self, *tags)

def WFr(ks, s):
    st = ks % UNR
    return ('a', 192 + 12*st + 4*s) if st < 5 else ('v', 40 + 4*s)
def rr(t, n=4): return '%s[%d:%d]' % (t[0], t[1], t[1]+n-1)
WDr = lambda k, c: ('a', (16*k + 4*c + 192) % 256)
HFr = lambda k, j: ('v', 64 + 16*k + 4*j)
AC4 = lambda j, c: ('a', 128 + 16*j + 4*c)

def wd_loads():
    L = []
    for k in range(12):
        u = k % 3
        for c in range(4):
            if u < 2: t = 'buffer_load_dwordx4 %s, v52, s[4:7], s60 offen offset:%d sc1' % (rr(WDr(k, c)), 1024*c)
            else: t = 'buffer_load_dwordx3 %s, v53, s[4:7], s60 offen offset:%d sc1' % (rr(WDr(k, c), 3), 768*c) + '\nv_accvgpr_write_b32 a%d, 0' % (WDr(k, c)[1]+3)
            if c == 3: t += '\ns_add_u32 s60, s60, %d' % (4096 if u < 2 else 3072)
            L.append((t, ('WD', k)))
    return L

def k4_setup(a):
    a('''
    v_lshlrev_b32 v52, 4, v2
    v_mul_u32_u24 v53, 12, v2
    s_lshl_b32 s60, s62, 4
    s_lshl_b32 s63, s3, 2
    s_add_u32 s60, s60, s63
    s_mul_i32 s60, s60, 11264
    s_add_u32 s60, s60, %d                 ; WD soffset
    ''' % WD_OFF)

def k4_setup2(a):
    a('''
    s_lshr_b32 s63, s61, 1
    s_lshl_b32 s63, s63, 3
    s_and_b32 s64, s61, 1
    s_add_u32 s63, s63, s64                ; rt of q=0
    s_lshl_b32 s64, s63, 4
    s_lshl_b32 s65, s3, 2
    s_add_u32 s64, s64, s65
    s_mul_i32 s64, s64, 3072
    s_add_u32 s64, s64, %d                 ; HF soffset (q=0, G=4w)
    s_lshl_b32 s65, s3, 1
    s_add_u32 s63, s63, s65                ; own rt
    v_and_b32 v57, 15, v2
    v_lshrrev_b32 v58, 4, v2
    v_mul_u32_u24 v59, 4*XPITCH, v57
    v_lshl_add_u32 v59, v58, 3, v59        ; residual voffset
    s_mul_i32 s70, s62, 64*XPITCH
    s_lshl_b32 s71, s63, 5
    s_add_u32 s70, s70, s71
    s_add_u32 s70, s70, %d
    v_lshlrev_b32 v60, 4, v57              ; gb voffset
    s_lshl_b32 s71, s62, 8
    s_add_u32 s71, s71, %d
    v_lshlrev_b32 v61, 12, v58
    v_lshl_add_u32 v61, v57, 3, v61        ; out voffset
    s_lshl_b32 s72, s63, 14
    s_lshl_b32 s73, s62, 7
    s_add_u32 s72, s72, s73
    s_lshl_b32 s73, s3, 12
    v_add_u32 v54, s73, v52                ; exchange write addr
    s_lshl_b32 s73, s3, 14
    v_add_u32 v55, s73, v52                ; exchange read addr
    s_mov_b32 s14, 0x200000
    s_mov_b32 s15, 0x20000
    ''' % (HF_OFF, X1T_OFF, MOD_OFF + 5*2048))

HRL = [r for b, n in ((64, 8), (128, 4), (160, 4), (192, 4), (96, 8), (144, 4), (176, 4), (208, 4), (224, 8)) for r in range(b, b + 4*n, 4)]
HR = lambda q, k: ('v', HRL[12*q + k])
def hl(q, k):
    t = 'buffer_load_dwordx4 %s, v52, s[4:7], s64 offen offset:%d sc1' % (rr(HR(q, k)), 1024*(k % 4))
    if k % 4 == 3: t += '\ns_add_u32 s64, s64, %d' % (4096 + (0 if k < 11 else 2*49152 - 12288))
    return (t, ('H', q, k))
def k4_main(a, vq, wd_rest, sc, kidx, st0, hooks={}):
    a('s_mov_b32 s12, s42\ns_mov_b32 s13, s43')
    Q = []
    for c in range(4):
        Q.append(('buffer_load_dwordx2 v[%d:%d], v59, s[4:7], s70 offen sc1\ns_add_u32 s70, s70, XPITCH' % (16+2*c, 17+2*c), None))
    Q.append(('buffer_load_dwordx4 v[24:27], v60, s[4:7], s71 offen sc1', 'RES'))
    R = Q; Q = list(wd_rest)
    hooks = {p: [('HOOK', f) for f in v] for p, v in hooks.items()}
    hooks[RES_AT] = R + hooks.get(RES_AT, [])
    for pos in sorted(hooks, reverse=True):
        Q[pos:pos] = hooks[pos]
    def pop():
        t, tag = Q.pop(0)
        if t == 'HOOK': tag(vq)
        else: vq.issue(t, tag)
    def pump(cur):
        while Q and (vq.issued - vq.done < LA or Q[0][0] == 'HOOK' or cur < 0):
            if Q[0][0] == 'HOOK' and cur < Q[0][1].at: break
            pop()
    sends = []
    pump(-1)
    for q in range(4):
        for k in range(12):
            while ('H', q, k) not in vq.pos: pop()
            pump(12*q + k)
            vq.need(('H', q, k), ('WD', k))
            if P2D and k == 0 and q: a.stamp(q)
            for c in range(4):
                cc = rr(AC4(q, c))
                a('v_mfma_f32_16x16x32_bf16 %s, %s, %s, %s' % (cc, rr(HR(q, k)), rr(WDr(k, c)), cc if k else '0'))
                if c == 0: pump(12*q + k)
                if c == 2 and sends and k >= 2: a(sends.pop(0))
        sends = ['ds_write_b128 v54, %s offset:%d' % (rr(AC4(q, c)), 16384*q + 1024*c) for c in range(4)]
    assert not Q
    a.stamp(st0+2)
    vq.need('RES')
    for c in range(4):
        for hlf in range(2):
            a('v_lshlrev_b32 v%d, 16, v%d\nv_and_b32 v%d, 0xffff0000, v%d' % (32+4*c+2*hlf, 16+2*c+hlf, 33+4*c+2*hlf, 16+2*c+hlf))
        if c == 1:
            for x in sends: a(x)
    a('s_waitcnt lgkmcnt(0)\ns_barrier')
    for j in range(16):
        a('ds_read_b128 v[%d:%d], v55 offset:%d' % (64+4*j, 67+4*j, 1024*((j % 4)*4 + j//4)))
    for c in range(4):
        a('s_waitcnt lgkmcnt(%d)' % (12-4*c))
        b = 64 + 16*c
        for hlf in range(2):
            r = b + 2*hlf
            a('v_pk_add_f32 v[%d:%d], v[%d:%d], v[%d:%d]' % (r, r+1, r, r+1, r+4, r+5))
            a('v_pk_add_f32 v[%d:%d], v[%d:%d], v[%d:%d]' % (r+8, r+9, r+8, r+9, r+12, r+13))
        for hlf in range(2):
            r = b + 2*hlf
            a('v_pk_add_f32 v[%d:%d], v[%d:%d], v[%d:%d]' % (r, r+1, r, r+1, r+8, r+9))
        for hlf in range(2):
            r = b + 2*hlf; d = 32 + 4*c + 2*hlf
            a('v_pk_fma_f32 v[%d:%d], v[%d:%d], v[%d:%d], v[%d:%d] op_sel:[0,%d,0] op_sel_hi:[1,%d,1]' % (d, d+1, r, r+1, 24 + (c & 2), 25 + (c & 2), d, d+1, c & 1, c & 1))
    for reg in range(4):
        a('''
        v_cvt_pk_bf16_f32 v%d, v%d, v%d
        v_cvt_pk_bf16_f32 v%d, v%d, v%d
        buffer_store_dwordx2 v[%d:%d], v61, s[12:15], s72 offen offset:%d
        ''' % (16+2*reg, 32+reg, 36+reg, 17+2*reg, 40+reg, 44+reg, 16+2*reg, 17+2*reg, 1024*reg))
    a.stamp_out(kidx, st0+2)

def gen_k3(a):
    a.stamp(7)
    a('''
    s_and_b32 s8, s2, 7
    s_lshr_b32 s9, s2, 3
    s_and_b32 s62, s9, 7                   ; Bd (phase 2)
    s_and_b32 s61, s8, 1
    s_lshl_b32 s12, s61, 3
    s_add_u32 s10, s62, s12                ; G
    s_lshr_b32 s9, s9, 3
    s_lshr_b32 s8, s8, 1
    s_lshl_b32 s8, s8, 2
    s_add_u32 s8, s8, s9                   ; mt
    s_lshl_b32 s12, s8, 1
    s_add_u32 s61, s61, s12                ; rb (phase 2)
    v_lshrrev_b32 v4, 4, v2                ; g
    v_bfe_u32 v5, v2, 1, 2                 ; p
    s_and_b32 s12, s3, 1
    s_lshl_b32 s12, s12, 1
    v_and_b32 v6, 1, v4
    v_or_b32 v6, s12, v6                   ; f(ch)
    v_xor_b32 v5, v5, v6                   ; logical slot
    v_lshlrev_b32 v5, 5, v5
    v_and_b32 v6, 1, v2
    v_lshl_add_u32 v5, v6, 4, v5
    v_lshrrev_b32 v3, 3, v2
    v_mul_u32_u24 v3, XPITCH, v3
    v_add_u32 v3, v3, v5
    s_mul_i32 s48, s3, 8*XPITCH
    s_lshl_b32 s49, s8, 8
    s_add_u32 s48, s48, s49
    s_add_u32 s48, s48, %d                 ; DMA soffset
    s_lshl_b32 s49, s3, 10                 ; LDS dest
    v_bfe_u32 v5, v2, 2, 2
    v_lshlrev_b32 v7, 4, v2
    s_mul_i32 s50, s10, %d
    s_mul_i32 s51, s3, 3072
    s_add_u32 s50, s50, s51
    s_add_u32 s50, s50, %d                 ; W' soffset
    s_mov_b32 m0, s49
    v_and_b32 v6, 1, v4
    v_lshrrev_b32 v17, 1, v5
    v_lshl_or_b32 v6, v6, 1, v17           ; F = r>>1 | (g&1)<<1
    v_lshl_add_u32 v16, v4, 3, v5          ; 8g + r
    v_lshlrev_b32 v16, 7, v16
    v_and_b32 v17, 3, v2
    v_lshl_add_u32 v16, v17, 3, v16
    ''' % (X1T_OFF, 16*11264, WP_OFF))
    for rt in range(4):
        a('v_xor_b32 v17, %d, v6\nv_lshl_add_u32 v%d, v17, 5, v16\nv_add_u32 v%d, 0x10000, v%d' % (rt, 8+rt, 12+rt, 8+rt))
    a('''
    s_mul_i32 s29, s10, %d
    s_lshr_b32 s28, s2, 6
    s_mul_i32 s28, s28, 2816
    s_add_u32 s29, s29, s28
    s_add_u32 s29, s29, %d
    s_add_u32 s28, s29, %d
    v_lshrrev_b32 v24, 5, v0
    v_mul_u32_u24 v24, 11264, v24
    v_and_b32 v20, 31, v0
    v_min_u32 v20, 21, v20
    v_lshl_add_u32 v24, v20, 7, v24
    v_lshrrev_b32 v22, 1, v2
    v_mul_u32_u24 v22, 32*XPITCH, v22
    v_and_b32 v23, 1, v2
    v_lshl_add_u32 v22, v23, 7, v22
    s_lshl_b32 s27, s62, 2
    s_add_u32 s27, s27, s3
    s_mul_i32 s27, s27, XPITCH
    s_lshl_b32 s26, s8, 8
    s_add_u32 s27, s27, s26
    s_add_u32 s27, s27, %d
    s_waitcnt vmcnt(6)
    v_mov_b32 v62, v61
    ''' % (16*11264, WP_OFF, 8*11264, X1T_OFF))
    spin(a, 'K3_pw', 'v48', 's31', 0, True)
    if TW: a('buffer_load_dword v21, v24, s[4:7], s29 offen sc1\nbuffer_load_dword v21, v24, s[4:7], s28 offen sc1')
    a.stamp(1)
    a('s_cmp_eq_u32 s3, 3\ns_cbranch_scc1 K3_w3')
    path(a, False)
    a('K3_w3:')
    path(a, True)
    a('K3_p2:')
    phase2(a)
    a('K3_end:\ns_endpgm')

def mid(a, w3, n):
    setup2(a); k4_setup(a); k4_setup2(a)
    a('''
    s_lshl_b32 s74, s8, 13
    s_add_u32 s74, s74, %d
    s_lshl_b32 s66, s10, 9
    s_add_u32 s66, s66, s74                ; own flag lines
    s_lshl_b32 s75, s3, 11
    s_add_u32 s74, s74, s75                ; flags to poll
    v_and_b32 v63, 3, v2
    v_lshlrev_b32 v63, 9, v63
    s_mov_b32 s76, 1
    s_mov_b32 s77, 0
    s_lshl_b32 s28, s2, 7
    s_add_u32 s28, s28, %d
    s_mov_b32 s29, %d
    v_mov_b32 v56, s30
    v_lshlrev_b32 v49, 7, v0
    s_cmp_eq_u32 s3, 1
    s_waitcnt vmcnt(%d)
    s_barrier
    s_cbranch_scc0 K3_nf%d
    s_mov_b64 exec, 1
    buffer_store_dword v56, off, s[4:7], s28 sc1
    s_mov_b64 exec, -1
K3_nf%d:
    ''' % (FLG_OFF, FL3_OFF, FL3_OFF, n, w3, w3))
    a.stamp(6)

def setup2(a):
    a('''
    v_lshlrev_b32 v224, 3, v0              ; PCS voffset
    s_mul_i32 s52, s10, 1536
    s_add_u32 s52, s52, %d
    s_lshl_b32 s54, s8, 7
    s_add_u32 s54, s54, s10
    s_mul_i32 s54, s54, 3072
    s_add_u32 s54, s54, %d                 ; HF soffset
    s_mov_b32 s56, %s
    s_mov_b32 s57, %s
    v_and_b32 v225, 15, v2                 ; n
    v_lshl_add_u32 v226, v5, 4, v225
    v_lshlrev_b32 v226, 4, v226
    v_and_b32 v227, 3, v2
    v_lshl_add_u32 v226, v227, 2, v226
    v_add_u32 v226, %d, v226               ; sumsq read addr
    v_lshlrev_b32 v227, 2, v225
    v_add_u32 v227, %d, v227               ; sum read addr
    v_lshrrev_b32 v228, 3, v0
    v_lshlrev_b32 v228, 6, v228
    v_and_b32 v229, 3, v0
    v_lshl_add_u32 v228, v229, 4, v228
    v_bfe_u32 v229, v0, 2, 1
    v_lshl_add_u32 v228, v229, 3, v228
    v_add_u32 v228, %d, v228               ; table write addr
    s_mul_i32 s53, s3, 192
    s_add_u32 s53, s53, %d
    v_lshl_add_u32 v232, v4, 4, s53        ; table read addr
    v_mov_b32 v230, 0x3b000000
    v_mov_b32 v231, 0x3727c5ac
    s_mov_b32 s59, 0
    ''' % (PCS_OFF, HF_OFF, fhex(GK1), fhex(GK0), SCR, SCS + 192, SCT, SCT))


NPRE = 16
NP0 = 4
NPOL = 14
AH = 7
PACE = 3
DSPLIT = 32
PCS_AT = 15
XM = 0
TW = TX = False
P2D = False
E0, X1, X2 = 2, 7, 11
SLOTS = 3
HPRE0, HPRE1 = 1, 3
def FLAG(i): return 's_mov_b64 exec, s[76:77]\nbuffer_store_dword v56, v50, s[4:7], s66 offen offset:%d sc1\ns_mov_b64 exec, -1' % (128*i)
def spin(a, lb, va, so, off, have):
    a("""
    s_mov_b32 s75, 0
    %s
LB:
    buffer_load_dword v62, %s, s[4:7], %s offen offset:%d sc1
    s_add_u32 s75, s75, 1
    s_waitcnt vmcnt(0)
LB_c:
    v_cmpx_ne_u32 vcc, s30, v62
    s_cmp_gt_u32 s75, 0x40000
    s_cbranch_scc1 LB_x
    s_cbranch_execnz LB
LB_x:
    s_mov_b64 exec, -1
    """.replace('LB', lb) % ('s_branch %s_c' % lb if have else '', va, so, off))
def pissue(vq, q): vq.issue('buffer_load_dword v62, v63, s[4:7], s74 offen offset:%d sc1' % (128*q), ('P', q))
def pcheck(a, vq, q, sfx=''):
    vq.need(('P', q)); spin(a, 'K3_ph%d%s' % (q, sfx), 'v63', 's74', 128*q, True)

ENTRY = {}
def phase2(a):
    vq = LdsQ(a, 'vmcnt', 63)
    vq.issued = ENTRY['issued']; vq.done = ENTRY['done']; vq.pos = dict(ENTRY['pos'])
    rest = [hl(q, k) for q in range(4) for k in range(12) if ('H', q, k) not in vq.pos]
    n1 = sum(1 for x in rest if x[1][1] < 2)
    def mk(f, at):
        g = lambda vq: f(vq)
        g.at = at; return g
    def fl(vq):
        vq.need(('S', 7)); a('s_barrier'); vq.issue(FLAG(3))
    k4_main(a, vq, rest, SC, 2, 6, {0: [mk(lambda vq: pcheck(a, vq, 1), AT[2])], FLP: [mk(fl, AT[3])],
                                    n1: [mk(lambda vq: pissue(vq, 3), AT[0]), mk(lambda vq: pcheck(a, vq, 3), AT[1])]})
AT = [16, 22, 2, 10]
FLP = 11
RES_AT = 12
NWA = 8
WPS = 4
P0_AT = 15
PA_AT = 3

def path(a, w3):
    ns = 2 if w3 else 3
    vq = LdsQ(a, 'vmcnt', 63); lq = LdsQ(a)
    ACC = lambda s, rt: 128 + 32*s + 4*rt
    XF = lambda st, r: 64 + 16*st + 4*r
    V4 = lambda r: 'v[%d:%d]' % (r, r+3)
    P = lambda r: 'v[%d:%d]' % (r, r+1)
    def dl(g): return [('buffer_load_dwordx4 v3, s[4:7], s48 offen sc1 lds\ns_add_u32 s49, s49, 0x1000\n%s\ns_mov_b32 m0, s49' % ('s_add_u32 s48, s48, 32*XPITCH' if g != 15 else 's_sub_u32 s48, s48, 480*XPITCH-128'), ('D', g))]
    def wl(ks): return [('buffer_load_dwordx4 a[%d:%d], v7, s[4:7], s50 offen offset:%d sc1' % (12*ks+4*s, 12*ks+4*s+3, 1024*s) + ('\ns_add_u32 s50, s50, 11264' if s == ns-1 else ''), ('W', ks)) for s in range(ns)]
    def trs(g):
        h2, ks = divmod(g, 16)
        return [('ds_read_b64_tr_b16 %s, v%d offset:%d' % (P(XF(g % 2, r) + 2*h), 8+4*h2+r, 4096*ks + 512*h), ('X', g, r)) for r in range(4) for h in range(2)]
    for ks in range(NPRE):
        if ks == NP0: mid(a, w3, NP0*ns + 2*TW)
        if ks == NPOL: vq.issue('buffer_load_dword v62, v49, s[4:7], s29 offen sc1', 'XP')
        for x in wl(ks): vq.issue(*x)
    if w3: a('v_lshlrev_b32 v233, 4, v2\nv_add_u32 v233, %d, v233\nv_lshlrev_b32 v234, 2, v2\nv_add_u32 v234, %d, v234\nv_mov_b32 v229, 0x40000000\nv_mov_b32 v50, 0' % (SCR, SCS))
    else: a("""
        v_lshlrev_b32 v229, 4, v2
        s_lshl_b32 s58, s3, 10
        s_add_u32 s54, s54, s58
        s_and_b32 s58, s3, 1
        s_lshl_b32 s58, s58, 11
        s_add_u32 s58, s58, %d
        v_lshl_add_u32 v234, v2, 2, s58
        v_mov_b32 v50, 0x40000000
        """ % SCX)
    vq.need('XP')
    spin(a, 'K3_px%d' % w3, 'v49', 's29', 0, True)
    a('s_barrier')
    a.stamp(2)
    if TX: vq.issue('s_mov_b64 exec, 0xffffffff\nbuffer_load_dword v21, v22, s[4:7], s27 offen sc1\ns_mov_b64 exec, -1')
    M = []
    for ks in range(DSPLIT):
        M += dl(ks)
        if ks == PCS_AT and not w3: M += [('buffer_load_dwordx2 %s, v224, s[4:7], s52 offen sc1\ns_add_u32 s52, s52, 24576' % P(16+2*k), 'PCS') for k in range(16)]
    W = wd_loads()
    M += W[:NWA]; W = W[NWA:]; wn = [NWA]
    MB = [x for g in range(DSPLIT, 32) for x in dl(g)]
    def upto(tag):
        while tag not in vq.pos or (M and M[0][1] == tag): vq.issue(*M.pop(0)); a('s_nop 0')
    upto(('D', AH))
    vq.need(('D', 0)); a('s_barrier')
    for x in trs(0): lq.issue(*x)
    ST = lambda r: 40 + 2*r
    T = lambda s, k: 96 + 8*s + 2*k
    O = lambda r: 236 + 4*r
    def dump(h2): return ['ds_write_b128 v233, %s offset:%d' % (V4(ACC(2, rt)), 1024*rt) for rt in range(4*h2, 4*h2+4)] + ['ds_write_b32 v234, v%d offset:%d' % (ACC(0, rt)+1, 256*rt) for rt in range(4*h2, 4*h2+4)]
    def sread(h2): return [x for r in (0, 2) for x in ('ds_read2st64_b32 %s, v227 offset0:%d offset1:%d' % (P(120+r), 4*h2+r, 4*h2+r+1), 'ds_read2st64_b32 %s, v226 offset0:%d offset1:%d' % (P(124+r), 16*h2+4*r, 16*h2+4*r+4))]
    def store(rt): vq.issue('buffer_store_dwordx4 %s, v229, s[4:7], s54 offen sc1\ns_add_u32 s54, s54, 49152' % V4(O(rt % 4)), ('S', rt))
    def w3w(rt): return 'ds_write2st64_b32 v234, v%d, v%d offset0:%d offset1:%d' % (O(rt % 4), O(rt % 4)+1, (SCX-SCS)//256 + rt, (SCX-SCS)//256 + 8 + rt)
    def xr(rt): return 'ds_read_b32 v%d, v234 offset:%d' % (O(rt % 4)+3, 256*rt)
    E = []
    for f in ('v_mul_f32 v{m}, v230, v{m}', 'v_fma_f32 v{q}, v{q}, v230, v231', 'v_fma_f32 v{q}, -v{m}, v{m}, v{q}', 'v_rsq_f32 v{a}, v{q}', 'v_mul_f32 v{b}, -v{m}, v{a}'):
        for r in range(4): E.append((f.format(m=120+r, q=124+r, a=ST(r), b=ST(r)+1), 2 if 'rsq' in f else 1, 'SR'))
    for r in range(4):
        for f, n in (('v_fma_f32 v{t}, v{c}, v{b}, v{d}', 4), ('v_fmac_f32 v{t}, v{x}, v{a}', 4), ('v_mul_f32 v{z}, v{t}, v{t}', 2), ('v_fma_f32 v{z}, v{z}, s56, v51', 2),
                     ('v_mul_f32 v{z}, v{z}, v{t}', 2), ('v_exp_f32 v{z}, v{z}', 2), ('v_mul_f32 v{t}, v{t}, v{u}', 2), ('v_add_f32 v{z}, 1.0, v{z}', 2), ('v_rcp_f32 v{z}, v{z}', 2),
                     ('v_mul_f32 v{t}, v{t}, v{z}', 2), ('v_cvt_pk_bf16_f32 v{o}, v{t}, v{t1}', 1)):
            for s in range(ns):
                for e in range(n):
                    E.append((f.format(t=T(s, 0)+e, t1=T(s, 0)+1, u=T(s, 1)+e, z=T(s, 2)+e, c=16+4*s+e, d=28+4*s+e, x=ACC(s, r)+e, a=ST(r), b=ST(r)+1, o=O(r)+s), 2 if ('exp' in f or 'rcp' in f) else 1, None))
        E.append((r, 1, 'DONE'))
    a('v_mov_b32 v51, s57')
    done = [0]; stored = [0]; have = [0]
    def epi(budget):
        while E and budget > 0:
            t, c, kd = E.pop(0); budget -= c
            if kd == 'DONE':
                done[0] = t + 1
                if w3: lq.issue(w3w(t), ('W3', t))
            else:
                if kd: lq.need(kd)
                a(t)
    for g in range(32):
        h2, ks = divmod(g, 16)
        pend = []; extra = []; vm = []
        if h2 == 0:
            upto(('W', ks)); vq.need(('W', ks))
            if ks == 14 and not w3:
                upto('PCS'); vq.need('PCS')
                extra = [('v_add_f32 v%d, v%d, v%d\nv_add_f32 v%d, v%d, v%d' % (d, d, d+16, d+1, d+1, d+17), 0) for d in range(16, 32, 2)]
            if ks == 15 and not w3:
                extra = [('v_add_f32 v%d, v%d, v%d\nv_add_f32 v%d, v%d, v%d' % (d, d, x, d+1, d+1, x+1), 0) for d, x in [(16, 18), (20, 22), (24, 26), (28, 30), (16, 20), (24, 28), (16, 24)]] + [('ds_write_b64 v228, v[16:17]', 1)]
        else:
            vm = MB[:2]; MB = MB[2:]; nw = min(16 + 3*ks - wn[0], WPS - len(vm), len(W)); vm += W[:nw]; W = W[nw:]; wn[0] += nw
            if ks == P0_AT: pissue(vq, 0)
            if ks == 0 and w3: extra = [None]*2 + [(x, 1) for x in dump(0)]
        order = [(r, s) for r in range(4) for s in range(3)]
        if w3 and g == 31: order = [(r, s) for s in (2, 0, 1) for r in range(4)]; extra = [None]*5 + [(x, 1) for x in dump(1)[:7]]
        for n, (r, s) in enumerate(order):
            rt = 4*h2 + r
            if n == 2 and g < 31:
                if g < 15 and ks % 2 == 0:
                    upto(('D', ks+2+(ks == 14))); vq.need(('D', ks+2+(ks == 14))); a('s_barrier')
                pend = trs(g+1)
            if h2 and n == 0 and ks in (1, X1, X2):
                if ks > 1 and w3: assert done[0] >= (2 if ks == X1 else 4), (ks, done)
                vq.need(('D', {1: 16 + X1, X1: 16 + X2, X2: 31}[ks]))
                if ks == X2: vq.need(('S', 1))
                lq.drain(); a('s_barrier')
                if ks == X2: vq.issue(FLAG(0))
                if ks == 1:
                    for x in sread(0): lq.issue(x)
                    for ty in range(2):
                        for s_ in range(ns): lq.issue('ds_read_b128 %s, v232 offset:%d' % (V4(16+12*ty+4*s_), 768*ty + 64*s_), 'SR')
                else:
                    have[0] += 2
                    if not w3:
                        for i in (have[0]-2, have[0]-1): lq.issue(xr(i), ('XR', i))
            lq.need(('X', g, r | XM))
            c = V4(ACC(s, rt)); xf = V4(XF(g % 2, r))
            a('v_mfma_f32_16x16x32_bf16 %s, %s, %s, %s' % (c, xf if s >= ns else 'a[%d:%d]' % (12*ks+4*s, 12*ks+4*s+3), xf, c if ks else '0'))
            if pend: lq.issue(*pend.pop(0))
            if h2 == 0 and M and n % 3 == 1 and (n % 6 == 1 or ks >= PACE): vq.issue(*M.pop(0))
            if vm and n % 3 == 2: vq.issue(*vm.pop(0))
            if extra:
                x = extra.pop(0)
                if x: (lq.issue if x[1] else a)(x[0])
            if h2 and ks >= E0: epi(SLOTS)
            if h2 and n == 6 and (SCHED[stored[0]] == ks if w3 else stored[0] < min(done[0], have[0])) and stored[0] < 4:
                if not w3: lq.need(('XR', stored[0])); SCHED[stored[0]] = ks
                store(stored[0]); stored[0] += 1
        assert not pend and not vm and not extra, (g, pend, vm, extra)
        if g == 15: a.stamp(3); assert not M
    a.stamp(4)
    if w3: a('s_nop 4'); lq.issue(dump(1)[7])
    print('epi A leftover', len(E), 'stored', stored[0])
    assert not W
    epi(10**6)
    lq.drain()
    assert stored[0] == 4
    vq.need(('S', 3))
    a('s_barrier')
    vq.issue(FLAG(1))
    for x in sread(1): a(x)
    for r in (0, 2):
        a('s_waitcnt lgkmcnt(%d)' % (2 - r))
        a("""
        v_pk_mul_f32 {m}, {m}, v[230:231] op_sel_hi:[1,0]
        v_pk_fma_f32 {q}, {q}, v[230:231], v[230:231] op_sel:[0,0,1] op_sel_hi:[1,0,1]
        v_pk_fma_f32 {q}, {m}, {m}, {q} neg_lo:[1,0,0] neg_hi:[1,0,0]
        v_rsq_f32 v{a}, v{q0}
        v_rsq_f32 v{b}, v{q1}
        v_mul_f32 v{a1}, -v{m0}, v{a}
        v_mul_f32 v{b1}, -v{m1}, v{b}
        """.format(m=P(120+r), q=P(124+r), a=ST(r), b=ST(r+1), a1=ST(r)+1, b1=ST(r+1)+1, q0=124+r, q1=125+r, m0=120+r, m1=121+r))
    HQ = []
    def hload(n):
        for _ in range(n):
            if HQ: vq.issue(*HQ.pop(0))
    XB = {1: (4, 5), 3: (6, 7)}
    for r in range(4):
        rt = 4 + r; st = P(ST(r))
        if P2D and r in (1, 3): a.stamp(6 + r//2)
        if r == HPRE0: pcheck(a, vq, 0, 'w%d' % w3); HQ += [hl(0, k) for k in range(12)]
        if r == PA_AT: pissue(vq, 1)
        for f, nl in (('v_pk_fma_f32 {t}, {c}, {st}, {d} op_sel:[0,1,0] op_sel_hi:[1,1,1]\nv_pk_fma_f32 {u}, {c2}, {st}, {d2} op_sel:[0,1,0] op_sel_hi:[1,1,1]', 2),
                  ('v_pk_fma_f32 {t}, {x}, {st}, {t} op_sel_hi:[1,0,1]\nv_pk_fma_f32 {u}, {x2}, {st}, {u} op_sel_hi:[1,0,1]', 2),
                  ('v_pk_mul_f32 {z}, {t}, {t}', 0), ('v_pk_fma_f32 {z}, {z}, s[56:57], s[56:57] op_sel:[0,0,1] op_sel_hi:[1,0,1]', 1), ('v_pk_mul_f32 {z}, {z}, {t}', 'X'),
                  ('v_exp_f32 v{z0}, v{z0}\nv_exp_f32 v{z1}, v{z1}', 1), ('v_pk_mul_f32 {t}, {t}, {u}', 0), ('v_pk_add_f32 {z}, {z}, 1.0 op_sel_hi:[1,0]', 'S'),
                  ('v_rcp_f32 v{z0}, v{z0}\nv_rcp_f32 v{z1}, v{z1}', 2), ('v_pk_mul_f32 {t}, {t}, {z}', 0), ('v_cvt_pk_bf16_f32 v{o}, v{t0}, v{t1}', 0)):
            for s in range(ns):
                a(f.format(t=P(T(s, 0)), u=P(T(s, 1)), z=P(T(s, 2)), c=P(16+4*s), c2=P(18+4*s), d=P(28+4*s), d2=P(30+4*s), x=P(ACC(s, rt)), x2=P(ACC(s, rt)+2), st=st,
                           z0=T(s, 2), z1=T(s, 2)+1, t0=T(s, 0), t1=T(s, 0)+1, o=O(r)+s))
            if nl == 'X':
                if r in XB and not w3:
                    a('s_barrier')
                    for i in XB[r]: a(xr(i))
            elif nl == 'S':
                if r in XB and not w3: a('s_waitcnt lgkmcnt(0)')
                if r >= 1: store(rt-1)
            else: hload(nl)
        if w3:
            a(w3w(rt))
            if r in XB: a('s_waitcnt lgkmcnt(0)\ns_barrier')
    hload(99)
    store(7)
    rel = {t: p - vq.issued for t, p in vq.pos.items() if t[0] in 'HSP' and t != 'PCS'}
    if not w3: ENTRY.update(issued=vq.issued, done=0, pos=dict(vq.pos), rel=rel)
    else: assert rel == ENTRY['rel']
    a.stamp(5)
    if not w3: a('s_branch K3_p2')
SCHED = {0: -1, 1: -1, 2: -1, 3: -1, 4: -1}
```

```python
from gen_common import *
from layout import *
LOG2E = 0x3fb8aa3b
INV2PI = 0x3e22f983
def prologue(a):
    a.stamp(0)
    a('''
    s_load_dwordx16 s[16:31], s[0:1], 0
    s_load_dwordx16 s[32:47], s[0:1], 64
    v_lshrrev_b32 v1, 6, v0
    v_and_b32 v2, 63, v0
    v_readfirstlane_b32 s3, v1
    s_mov_b32 s6, 0x2000000
    s_mov_b32 s7, 0x20000
    s_mov_b32 s11, 0x20000
    ''')
def wait_args(a):
    a('''
    s_waitcnt lgkmcnt(0)
    s_mov_b32 s4, s46
    s_mov_b32 s5, s47
    ''')
    a.stamp(1)
def cmul(a, d, x, y, t):
    a('v_pk_mul_f32 v[%d:%d], v[%d:%d], v[%d:%d] op_sel:[0,0] op_sel_hi:[1,0]' % (t, t+1, x, x+1, y, y+1))
    a('v_pk_fma_f32 v[%d:%d], v[%d:%d], v[%d:%d], v[%d:%d] op_sel:[1,1,0] op_sel_hi:[0,1,1] neg_lo:[1,0,0]' % (d, d+1, x, x+1, y, y+1, t, t+1))

HLD = 98304
PITCH = 544
CHB = 64*PITCH
K1_LDS = 2*CHB

import re
KSH = 96
class ShAsm:
    def __init__(self, a, sh=96): self.a = a; self.sh = sh
    def __call__(self, s):
        KSH = self.sh
        s = re.sub(r'\bv\[(\d+):(\d+)\]', lambda m: 'v[%d:%d]' % (int(m.group(1))+KSH, int(m.group(2))+KSH), s)
        s = re.sub(r'\bv(\d+)\b', lambda m: 'v%d' % (int(m.group(1)) + (KSH if 3 <= int(m.group(1)) < 250 else 0)), s)
        self.a(s)
    def stamp(self, i): self.a.stamp(i)
NFLAG = 128 + 80
def nonce_load(a, r=20): a('global_load_dwordx2 v[%d:%d], v%d, s[44:45] offset:128 sc1' % (r, r+1, r+2))
def nonce_wait(a, lb, r=20):
    a('''
    v_cmp_ne_u32 vcc, 1, v%d
    s_cbranch_vccz %s_x
    s_mov_b32 s73, 0
%s:
    global_load_dwordx2 v[%d:%d], v%d, s[44:45] offset:128 sc1
    s_add_u32 s73, s73, 1
    s_waitcnt vmcnt(0)
    v_cmp_ne_u32 vcc, 1, v%d
    s_cmp_gt_u32 s73, 0x40000
    s_cbranch_scc1 %s_x
    s_cbranch_vccnz %s
%s_x:
    ''' % (r+1, lb, lb, r, r+1, r+2, r+1, lb, lb, lb))
PUB_AT = 22
TLO, THI = 0, 16
TSH = 7
NONCE_AT = 6
FPOLL = (3, 2)
STASH = [3, 4, 8, 10, 11, 12, 13, 14, 40, 41, 42, 43, 44, 45, 46, 47, 58, 59, 60, 61]
PARAMS = """
    global_load_short_d16_hi v12, v4, s[26:27]
    global_load_short_d16_hi v8, v3, s[18:19]
    global_load_short_d16_hi v9, v3, s[20:21]
    global_load_short_d16_hi v10, v3, s[22:23]
    global_load_short_d16_hi v11, v3, s[24:25]
    global_load_short_d16_hi v29, v4, s[28:29]
"""
def poll4(a, lb, r, va, so):
    a("""
    s_mov_b32 s73, 0
    s_branch LB_c
LB:
    buffer_load_dwordx4 v[%d:%d], %s, s[4:7], %s offen sc1
    s_add_u32 s73, s73, 1
    s_waitcnt vmcnt(0)
LB_c:
    v_xor_b32 v%d, s30, v%d
    v_xor_b32 v%d, s30, v%d
    v_xor_b32 v%d, s30, v%d
    v_xor_b32 v%d, s30, v%d
    v_or3_b32 v%d, v%d, v%d, v%d
    v_or_b32 v%d, v%d, v%d
    v_cmpx_ne_u32 vcc, 0, v%d
    s_cmp_gt_u32 s73, 0x40000
    s_cbranch_scc1 LB_y
    s_cbranch_execnz LB
LB_y:
    s_mov_b64 exec, -1
    """.replace('LB', lb) % (r, r+3, va, so, r, r, r+1, r+1, r+2, r+2, r+3, r+3, r, r, r+1, r+2, r, r, r+3, r))
def gen_k1():
    import k2, k34
    a0 = Asm()
    prologue(a0)
    a0('''
    s_cmp_ge_u32 s2, 256
    s_cbranch_scc1 K3_end
    s_cmp_ge_u32 s2, TLO
    s_cselect_b32 s8, 1, 0
    s_cmp_lt_u32 s2, THI
    s_cselect_b32 s8, s8, 0
    s_cmp_eq_u32 s8, 0
    s_cbranch_scc1 K1_nt
    s_bfe_u32 s8, s2, TBF
    s_lshl_b32 s8, s8, TSH+8
    v_lshl_add_u32 v11, v0, TSH, s8
    v_cmp_gt_u32 vcc, CODE_END-K1_pc-4, v11
    s_getpc_b64 s[64:65]
K1_pc:
    s_and_b64 exec, exec, vcc
    s_cbranch_execz K1_nt0
    global_load_dword v12, v11, s[64:65]
K1_nt0:
    s_mov_b64 exec, -1
K1_nt:
    s_mov_b32 s60, 0x05040100
    s_mov_b32 s61, 0x07060302
    s_mov_b32 s51, 0
    s_mov_b32 s49, 0
    v_mov_b32 v9, 0
    v_mov_b32 v10, 0
    v_mov_b32 v11, 0
    ''')
    a = ash = ShAsm(a0)
    a('''
    s_and_b32 s8, s2, 7
    s_lshr_b32 s9, s2, 3
    s_and_b32 s10, s9, 7
    s_lshr_b32 s9, s9, 3
    s_lshl_b32 s12, s8, 2
    s_add_u32 s12, s12, s9
    s_lshl_b32 s12, s12, 4
    s_add_u32 s12, s12, s10               ; dA
    s_lshr_b32 s9, s3, 1
    s_and_b32 s10, s3, 1                  ; half
    s_lshl_b32 s13, s9, 3
    s_add_u32 s12, s12, s13               ; channel
    s_lshl_b32 s8, s12, 8
    s_lshl_b32 s13, s10, 7
    s_add_u32 s8, s8, s13
    v_lshl_add_u32 v3, v2, 1, s8
    s_lshl_b32 s13, s12, 1
    v_mov_b32 v4, s13
    v_mov_b32 v29, 0
    v_mov_b32 v8, 0
    v_mov_b32 v9, 0
    v_mov_b32 v10, 0
    v_mov_b32 v11, 0
    v_mov_b32 v12, 0
    s_mov_b32 s62, s12
    ''')
    a = a0
    a('''
    s_cmp_ge_u32 s2, 224
    s_cbranch_scc1 K1_wd
    s_cmp_lt_u32 s2, 128
    s_cbranch_scc1 K1_ln
    ''')
    IN = lambda r, c: 16 + 4*r + c
    a('''
    s_sub_u32 s8, s2, %d
    s_and_b32 s9, s8, 7
    s_lshr_b32 s8, s8, 3
    s_lshl_b32 s9, s9, 1
    s_and_b32 s10, s8, 1
    s_add_u32 s9, s9, s10
    s_lshr_b32 s8, s8, 1
    s_lshl_b32 s8, s8, 4
    s_add_u32 s8, s8, s9                   ; column block
    v_and_b32 v3, 3, v0                    ; cq
    v_lshrrev_b32 v4, 2, v0                ; rg
    v_lshlrev_b32 v5, 4, v4                ; c offset
    v_mul_u32_u24 v6, %d, v4
    v_lshl_add_u32 v6, v3, 4, v6
    s_lshl_b32 s9, s8, 6
    s_lshl_b32 s67, s8, 7
    s_add_u32 s67, s67, FL2M
    s_mov_b32 s68, 15
    ''' % (128, 8*6144))
    wait_args(a)
    a('''
    s_mov_b32 s12, s40
    s_mov_b32 s13, s41
    s_mov_b32 s14, %d
    s_mov_b32 s15, 0x20000
    global_load_dwordx4 v[8:11], v5, s[38:39]
    ''' % (512*6144))
    for r in range(8):
        a('buffer_load_dwordx4 v[%d:%d], v6, s[12:15], s9 offen' % (IN(r, 0), IN(r, 3)))
        if r < 7: a('s_add_u32 s9, s9, 6144')
    ash(PARAMS)
    a('s_branch K1_mid')
    a('''
K1_wd:
    s_sub_u32 s8, s2, 224
    s_lshl_b32 s8, s8, 2
    s_add_u32 s8, s8, s3
    s_memrealtime s[64:65]
    s_mov_b32 s67, EPOCH+128
    s_mov_b32 s68, 1
    ''')
    wait_args(a)
    a('''
    s_cmp_lg_u32 s8, 0
    s_cbranch_scc1 K1_nolead
    s_mul_i32 s65, s65, 0x9e3779b1
    s_xor_b32 s64, s64, s65
    v_mov_b32 v14, s64
    v_mov_b32 v15, 1
    v_mov_b32 v13, 0
    s_mov_b64 exec, 1
    global_store_dwordx2 v13, v[14:15], s[44:45] offset:128 sc1
    s_mov_b64 exec, -1
K1_nolead:
    ''')
    ash(PARAMS)
    a('s_branch K1_mid\nK1_ln:')
    a('''
    s_mov_b32 s66, s2
    s_and_b32 s48, s66, 63
    s_lshl_b32 s8, s48, 2
    s_add_u32 s8, s8, s3                   ; lb
    s_lshl_b32 s9, s8, 13
    v_lshl_add_u32 v3, v2, 4, s9
    v_add_u32 v4, 0x1000, v3
    v_mov_b32 v5, 0x3f803f80
    s_lshl_b32 s49, s48, 15
    s_lshl_b32 s50, s3, 13
    s_add_u32 s49, s49, s50                ; XT2 soffset (wave covers 8 KB)
    s_add_u32 s51, s49, 4096
    v_lshlrev_b32 v6, 6, v2
    v_bfe_u32 v9, v2, 1, 2
    v_xor_b32 v9, s3, v9
    v_lshl_add_u32 v9, v9, 4, v6        ; LDS write addr (swizzled piece)
    v_bfe_u32 v10, v2, 3, 2
    v_xor_b32 v10, v10, v2
    v_lshl_add_u32 v10, v10, 4, s50      ; LDS read addr
    v_lshlrev_b32 v11, 4, v2
    v_add_u32 v9, HLDV, v9
    v_add_u32 v10, HLDV, v10
    s_lshr_b32 s67, s48, 1
    s_lshl_b32 s67, s67, 5
    s_and_b32 s68, s48, 1
    s_add_u32 s67, s67, s68
    s_lshr_b32 s68, s66, 6
    s_lshl_b32 s68, s68, 1
    s_add_u32 s67, s67, s68
    s_lshl_b32 s67, s67, 2
    s_add_u32 s67, s67, %d
    s_mov_b32 s68, 1
    ''' % FL2_OFF)
    wait_args(a)
    IN = lambda r, c: 16 + 4*r + c
    for r in range(8):
        a('global_load_dwordx4 v[%d:%d], v%d, s[16:17] offset:%d' % (IN(r, 0), IN(r, 3), 3 + r//4, 1024*(r % 4)))
    ash(PARAMS)
    a('''
K1_mid:
    s_mov_b32 s16, s8
    s_mov_b32 s17, s49
    s_mov_b32 s18, s51
    s_mov_b32 s19, s67
    s_mov_b64 s[20:21], s[60:61]
    s_mov_b32 s26, s68
    s_mov_b32 s27, 0
    ''')
    a = ash
    a('''
    s_lshr_b32 s9, s3, 1
    s_and_b32 s10, s3, 1
    s_mul_i32 s14, s9, %d
    s_lshl_b32 s15, s10, 8
    s_add_u32 s15, s15, s14
    s_mov_b32 m0, s15
    ''' % CHB)
    a('''
    v_and_b32 v5, 15, v2                  ; m / n'
    v_lshrrev_b32 v6, 4, v2               ; g
    v_sub_u32 v7, 15, v5
    v_cvt_f32_u32 v7, v7                  ; beta
    v_lshl_add_u32 v13, v6, 4, s14        ; chbase + 16 g
    s_cmp_eq_u32 s10, 0
    ''')
    inv = {1: 0x3f800000, 2: 0x3f000000, 4: 0x3e800000, 8: 0x3e000000}
    for i, (s0, b0, b1) in enumerate([(1, 0, 35), (2, 16, 38), (4, 25, 41), (4, 30, 44)]):
        a('''
        s_mov_b32 s48, 0x%x
        s_cselect_b32 s48, s48, 0x%x
        s_cselect_b32 s49, %d, %d
        v_mul_f32 v14, s48, v7
        v_rndne_f32 v14, v14
        v_cvt_u32_f32 v14, v14
        v_add_u32 v14, s49, v14
        v_mul_u32_u24 v14, %d, v14
        v_add_u32 v%d, v14, v13
        ''' % (inv[s0], inv[8], b0, b1, PITCH, 20+i))
    a('''
    v_sub_u32 v14, 62, v5
    v_mul_u32_u24 v14, %d, v14
    v_add_u32 v24, v14, v13
    v_lshlrev_b32 v25, 5, v5
    v_lshl_add_u32 v25, v6, 3, v25
    s_mul_i32 s50, s9, 8320
    s_lshl_b32 s52, s10, 11
    s_sub_u32 s50, s50, s52
    s_add_u32 s50, s50, %d
    v_add_u32 v25, s50, v25               ; K LDS write address
    v_mov_b32 v26, 0x3f80                 ; z^0 = (1, 0)
    ds_write_addtid_b32 v26 offset:0
    ''' % (PITCH, k2.KE + 2048))
    a = a0
    a2 = ShAsm(a0, 140)
    k2.setup(a2)
    a2('''
    v_cmp_gt_u32 vcc, 32, v2
    v_cndmask_b32 v58, 0, v2, vcc
    s_lshr_b32 s51, s62, 5
    s_add_u32 s51, s51, 32
    v_writelane_b32 v58, s51, 32
    s_add_u32 s51, s51, 16
    v_writelane_b32 v58, s51, 33
    s_add_u32 s51, s51, 16
    v_writelane_b32 v58, s51, 34
    s_lshr_b32 s51, s2, 4
    s_add_u32 s51, s51, 80
    v_writelane_b32 v58, s51, 35
    s_add_u32 s51, s51, 16
    v_writelane_b32 v58, s51, 36
    v_lshlrev_b32 v58, 7, v58
    s_mov_b32 s51, %d
    ''' % FL2_OFF)
    for n, r in enumerate(STASH): a('v_accvgpr_write_b32 a%d, v%d' % (n, r+140))
    a('''
    s_cmp_lt_u32 s2, 64
    s_cbranch_scc1 K1_tp
    s_cmp_lt_u32 s2, 128
    s_cbranch_scc1 K1_st
    s_cmp_lt_u32 s2, 224
    s_cbranch_scc1 K1_mp
    ''')
    a('''
    ''')
    a('''
    s_and_b32 s28, s16, 7                    ; Bd
    s_lshr_b32 s29, s16, 3                  ; G
    v_and_b32 v3, 15, v2
    v_lshrrev_b32 v4, 4, v2                ; g
    v_lshlrev_b32 v3, 3, v3
    v_mul_u32_u24 v5, 6144, v4
    v_add_u32 v5, v5, v3                   ; voffA
    v_lshl_add_u32 v6, v4, 12, v3          ; voffB
    v_mov_b32 v8, 0x40000000
    v_cmp_eq_u32 vcc, 3, v4
    s_mul_i32 s17, s29, %d
    s_lshl_b32 s18, s28, 7
    v_cndmask_b32 v7, v6, v8, vcc          ; voffB for r=1
    s_add_u32 s17, s17, s18                ; base soffset
    s_add_u32 s25, s17, %d
    s_lshl_b32 s22, s28, 4
    s_add_u32 s22, s22, s29
    s_mul_i32 s22, s22, 11264
    s_add_u32 s22, s22, %d
    s_add_u32 s23, s22, 4096
    s_add_u32 s24, s22, 8192
    v_lshlrev_b32 v9, 4, v2
    v_mul_u32_u24 v10, 12, v2
    s_mov_b32 s10, %d
    ''' % (86*1024, 72*1024, WD_OFF, 1376*1024))
    a('s_mov_b32 s8, s36\ns_mov_b32 s9, s37')
    Lr = lambda s, r: 16 + 4*s + 2*r
    for u, ch in enumerate(CHUNK):
        for r in range(2):
            a('s_add_u32 s18, s17, %d' % ((24*u + 3*r)*1024))
            for s in ch[:3]:
                a('buffer_load_dwordx2 v[%d:%d], v5, s[8:11], s18 offen offset:%d' % (Lr(s, r), Lr(s, r)+1, 1024*(s % 3)))
            if len(ch) == 4:
                s = ch[3]
                a('buffer_load_dwordx2 v[%d:%d], v%d, s[8:11], s25 offen offset:%d' % (Lr(s, r), Lr(s, r)+1, 6+r, 1024*(2*r + s - 9)))
    a('s_waitcnt vmcnt(22)\ns_branch K1_join\nK1_wdp:\ns_waitcnt vmcnt(16)')
    nonce_wait(a, 'K1_nw2', 96)
    a('v_readfirstlane_b32 s30, v96')
    for u, ch in enumerate(CHUNK):
        for c in range(4):
            o = 80 + 4*c
            for j, s in enumerate(ch):
                a('v_perm_b32 v%d, v%d, v%d, s%d' % (o+j, Lr(s, 1) + c//2, Lr(s, 0) + c//2, 20 + c % 2))
            if u < 2:
                a('buffer_store_dwordx4 v[%d:%d], v9, s[4:7], s%d offen offset:%d sc1' % (o, o+3, 22+u, 1024*c))
            else:
                a('buffer_store_dwordx3 v[%d:%d], v10, s[4:7], s24 offen offset:%d sc1' % (o, o+2, 768*c))
    a('s_branch K1_wdr\nK1_mp:')
    a('s_waitcnt vmcnt(14)')
    for i in range(4):
        a('v_lshlrev_b32 v%d, 16, v%d\nv_and_b32 v%d, 0xffff0000, v%d' % (48+2*i, 8+i, 49+2*i, 8+i))
    for i in range(8): a('v_mul_f32 v%d, 0x%x, v%d' % (56+i, LOG2E | 0x80000000, 48+i))
    for i in range(8): a('v_exp_f32 v%d, v%d' % (56+i, 56+i))
    for i in range(8): a('v_add_f32 v%d, 1.0, v%d' % (56+i, 56+i))
    for i in range(8): a('v_rcp_f32 v%d, v%d' % (56+i, 56+i))
    for i in range(8): a('v_mul_f32 v%d, v%d, v%d' % (48+i, 48+i, 56+i))
    for p in range(4): a('v_cvt_pk_bf16_f32 v%d, v%d, v%d' % (8+p, 48+2*p, 49+2*p))
    for p in range(4):
        a('s_waitcnt vmcnt(%d)' % (12-2*p))
        for j in range(8):
            a('v_perm_b32 v%d, v%d, v%d, s%d' % (64+j, IN(2*p+1, j//2), IN(2*p, j//2), 20 + j % 2))
        for j in range(8):
            a('v_dot2_f32_bf16 v%d, v%d, v%d, %s' % (48+j, 64+j, 8+p, 'v%d' % (48+j) if p else '0'))
    a('s_nop 2')
    for j in range(4): a('v_permlane32_swap_b32 v%d, v%d' % (48+j, 52+j))
    for j in range(4): a('v_add_f32 v%d, v%d, v%d' % (48+j, 48+j, 52+j))
    a('s_nop 0')
    for j in range(2): a('v_permlane16_swap_b32 v%d, v%d' % (48+j, 50+j))
    for j in range(2): a('v_add_f32 v%d, v%d, v%d' % (48+j, 48+j, 50+j))
    a('s_nop 0')
    for sh in (8, 4):
        for j in range(2): a('v_add_f32_dpp v%d, v%d, v%d row_ror:%d row_mask:0xf bank_mask:0xf' % (48+j, 48+j, 48+j, sh))
        a('s_nop 0')
    a('''
    v_lshrrev_b32 v4, 4, v2
    v_lshlrev_b32 v4, 3, v4
    v_lshl_add_u32 v4, v3, 5, v4
    s_lshl_b32 s9, s3, 7
    s_add_u32 s9, s9, HLDV
    v_add_u32 v4, s9, v4
    ds_write_b64 v4, v[48:49]
    s_waitcnt vmcnt(0) lgkmcnt(0)
    s_barrier
    s_cmp_lg_u32 s3, 0
    s_cbranch_scc1 K1_join
    v_and_b32 v4, 31, v2
    v_lshlrev_b32 v4, 2, v4
    v_add_u32 v5, HLDV, v4
    ds_read2_b32 v[8:9], v5 offset0:0 offset1:32
    ds_read2_b32 v[10:11], v5 offset0:64 offset1:96
    s_lshr_b32 s9, s16, 4
    s_cmp_eq_u32 s9, 1
    s_cselect_b32 s10, 1.0, 0
    s_cmp_eq_u32 s9, 4
    s_cselect_b32 s10, 1.0, s10
    s_lshl_b32 s9, s16, 7
    s_add_u32 s9, s9, %d
    s_waitcnt lgkmcnt(0)
    v_add_f32 v8, v8, v9
    v_add_f32 v10, v10, v11
    v_add_f32 v8, v8, v10
    v_cvt_pk_bf16_f32 v8, v8, v8
    v_and_b32 v8, 0xffff0000, v8
    v_add_f32 v8, s10, v8
    v_cvt_pk_bf16_f32 v8, v8, v8
    v_and_b32 v8, 0xffff0000, v8
    buffer_store_dword v8, v4, s[4:7], s9 offen sc1
    s_branch K1_join
    ''' % MOD_OFF)
    a('K1_tp:')
    S = lambda r: 48 + r
    Qq = lambda r: 56 + r
    OUT = lambda j, p: 64 + 4*j + p
    def dots(r):
        for c in range(4):
            a('v_dot2_f32_bf16 v%d, v%d, v5, %s' % (S(r), IN(r, c), 'v%d' % S(r) if c else '0'))
            a('v_dot2_f32_bf16 v%d, v%d, v%d, %s' % (Qq(r), IN(r, c), IN(r, c), 'v%d' % Qq(r) if c else '0'))
    for p in range(4):
        a('s_waitcnt vmcnt(%d)' % (12-2*p))
        for j in range(8):
            a('v_perm_b32 v%d, v%d, v%d, s%d' % (OUT(j, p), IN(2*p+1, j//2), IN(2*p, j//2), 20 + j % 2))
            if p == 3: a('ds_write_b128 v9, v[%d:%d] offset:%d' % (OUT(j, 0), OUT(j, 3), 4096*j))
    a('s_waitcnt lgkmcnt(0)\ns_barrier')
    for j in range(8):
        a('ds_read_b128 v[%d:%d], v10 offset:%d' % (OUT(j, 0), OUT(j, 3), 1024*j))
    for j in range(8):
        a('s_waitcnt lgkmcnt(%d)' % (7-j))
        a('buffer_store_dwordx4 v[%d:%d], v11, s[4:7], s%d offen offset:%d sc1' % (OUT(j, 0), OUT(j, 3), 17 + j//4, 1024*(j % 4)))
    a('s_waitcnt vmcnt(8)\ns_branch K1_join\nK1_st:')
    for r in range(8):
        a('s_waitcnt vmcnt(%d)' % (13-r))
        dots(r)
    a('s_nop 1')
    for r in range(8):
        a('v_permlane32_swap_b32 v%d, v%d' % (S(r), Qq(r)))
    for r in range(8):
        a('v_add_f32 v%d, v%d, v%d' % (S(r), S(r), Qq(r)))
    for i in range(4):
        a('v_permlane16_swap_b32 v%d, v%d' % (S(i), S(i+4)))
    for i in range(4):
        a('v_add_f32 v%d, v%d, v%d' % (S(i), S(i), S(i+4)))
    for sh in (8, 4, 2, 1):
        for i in range(4):
            a('v_add_f32_dpp v%d, v%d, v%d row_ror:%d row_mask:0xf bank_mask:0xf' % (S(i), S(i), S(i), sh))
    for i in range(4):
        a('v_mov_b32 v%d, v%d' % (Qq(i), S(i)))
    a('s_nop 0')
    for i in range(4):
        a('v_permlane32_swap_b32 v%d, v%d' % (S(i), Qq(i)))
    a('v_mov_b32 v6, 0x3727c5ac')
    for i in range(4):
        a('v_mul_f32 v%d, 0x3b000000, v%d' % (S(i), S(i)))
    for i in range(4):
        a('v_fmamk_f32 v%d, v%d, 0x3b000000, v6' % (Qq(i), Qq(i)))
    for i in range(4):
        a('v_fma_f32 v%d, -v%d, v%d, v%d' % (Qq(i), S(i), S(i), Qq(i)))
    RR = lambda i: 8 + 4*(i//2) + i % 2
    for i in range(4):
        a('v_rsq_f32 v%d, v%d' % (RR(i), Qq(i)))
    a('s_nop 0')
    for i in range(4):
        a('v_mul_f32 v%d, -v%d, v%d' % (RR(i)+2, S(i), RR(i)))
    a('''
    v_lshlrev_b32 v7, 9, v2                ; lane 0 -> 0, lane 16 -> 8192
    s_lshl_b32 s9, s16, 4
    s_add_u32 s9, s9, %d
    s_add_u32 s10, s9, 4096
    s_mov_b64 exec, 0x10001
    buffer_store_dwordx4 v[8:11], v7, s[4:7], s9 offen sc1
    buffer_store_dwordx4 v[12:15], v7, s[4:7], s10 offen sc1
    s_mov_b64 exec, -1
    ''' % ST1_OFF)
    a('''
    s_waitcnt vmcnt(2)
K1_join:
    v_mov_b32 v98, 0
    ''')
    a.stamp(2)
    def publish():
        a0('s_cmp_ge_u32 s2, 224\ns_cbranch_scc1 K1_npub\ns_waitcnt vmcnt(0)')
        nonce_wait(a0, 'K1_nw', 96)
        a0('''
        s_barrier
        v_readfirstlane_b32 s30, v96
        v_lshlrev_b32 v97, 2, v2
        s_cmp_eq_u32 s3, 1
        s_cbranch_scc0 K1_npub
        s_mov_b64 exec, s[26:27]
        buffer_store_dword v96, v97, s[4:7], s19 offen sc1
        s_mov_b64 exec, -1
K1_npub:
        ''')
        a0.stamp(3)
    def hook(tt):
        if tt == NONCE_AT: nonce_load(a0, 96)
        if tt == PUB_AT: publish()
        if tt > PUB_AT and (tt - PUB_AT) % 4 == 2 and (tt - PUB_AT)//4 < 8: k2.wloads(a0, (tt - PUB_AT)//4)
    a = ash
    a('''
    v_mul_f32 v12, 0x%x, v12
    v_mul_f32 v8, 0x%x, v8
    v_exp_f32 v12, v12
    v_exp_f32 v8, v8
    s_nop 0
    v_cvt_pk_bf16_f32 v14, v12, v8
    v_lshlrev_b32 v12, 16, v14            ; dt
    v_and_b32 v8, 0xffff0000, v14         ; exp(logA)
    v_mul_f32 v8, v8, v12
    v_mul_f32 v8, 0x%x, v8                ; lr = -Ar dt log2e
    v_mul_f32 v9, v9, v12
    v_mul_f32 v9, 0x%x, v9                ; th (revolutions/step)
    v_add_f32 v12, v12, v12
    ''' % (LOG2E, LOG2E, LOG2E | 0x80000000, INV2PI))
    Z = lambda m: 32 + 2*m
    Q = lambda k: 68 + 2*k
    def direct(d, p, t):
        a('''
        v_mul_f32 v%d, 0x%x, v8
        v_mul_f32 v%d, 0x%x, v9
        v_exp_f32 v%d, v%d
        v_fract_f32 v%d, v%d
        v_cos_f32 v%d, v%d
        v_sin_f32 v%d, v%d
        ''' % (t, p, t+1, p, t, t, t+1, t+1, d, t+1, d+1, t+1))
    direct(Z(1), 0x3f800000, 88)
    direct(Z(16), 0x41800000, 90)
    direct(Q(1), 0x43800000, 92)
    for d, t in ((Z(1), 88), (Z(16), 90), (Q(1), 92)):
        a('v_pk_mul_f32 v[%d:%d], v[%d:%d], v[%d:%d] op_sel_hi:[1,0]' % (d, d+1, d, d+1, t, t+1))
    a('v_pk_mul_f32 v[84:85], v[10:11], v[12:13] op_sel_hi:[1,0]')
    a('v_and_b32 v30, 127, v0\nv_cmp_eq_u32 vcc, 63, v30\ns_nop 1\nv_cndmask_b32 v29, 0, v29, vcc')
    pk = [0]
    def emit(row, r, neg=False):
        t = 96 + pk[0] % 8; pk[0] += 1
        a('v_cvt_pk_bf16_f32 v%d, v%d, %sv%d' % (t, r, '-' if neg else '', r+1))
        a('ds_write_addtid_b32 v%d offset:%d' % (t, row*PITCH))
    emit(1, Z(1))
    emit(47, 84, True)
    emit(16, Q(1))
    ops = []
    zs = []
    for m in range(2, 16):
        h = m//2
        zs.append((Z(m), Z(h), Z(m-h), m, False))
    cs = []
    for n in range(1, 16):
        cs.append((84 + 2*(n % 2), 84 + 2*((n-1) % 2), Z(16), 47+n, True))
    qs = []
    rowbase = {1: 16, 2: 25, 3: 30, 4: 35, 5: 38, 6: 41, 7: 44}
    for k in range(2, 8):
        h = k//2
        qs.append((Q(k), Q(h), Q(k-h), rowbase[k], False))
    seq = []
    for i in range(15):
        if i < len(zs): seq.append(zs[i])
        seq.append(cs[i])
        if i < len(qs): seq.append(qs[i])
    tt = 0
    for d, x, y, row, neg in seq:
        hook(tt)
        cmul(a, d, x, y, 88 + 2*(tt % 2)); tt += 1
        emit(row, d, neg)
    rest = [(k, r) for k in range(1, 8) for r in range(1, 16//(2 if k == 1 else (4 if k < 4 else 8)) + 1)]
    for n, (k, r) in enumerate(rest):
        step = 2 if k == 1 else (4 if k < 4 else 8)
        hook(tt)
        d = 92 + 2*(tt % 2)
        cmul(a, d, Q(k), Z(step*r), 88 + 2*(tt % 2)); tt += 1
        emit(rowbase[k] + r, d)
    a0('s_cmp_ge_u32 s2, 224\ns_cbranch_scc1 K1_wdp\nK1_wdr:')
    a0('s_cmp_eq_u32 s3, 1')
    for n, r in enumerate(STASH): a0('v_accvgpr_read_b32 v%d, a%d' % (r, n))
    a('s_waitcnt lgkmcnt(0)\ns_barrier')
    a.stamp(4)
    for s in range(8):
        a('ds_read_b128 v[%d:%d], v24 offset:%d' % (32+4*s, 35+4*s, 64*s))
        a('ds_read_b128 v[%d:%d], v20 offset:%d' % (64+4*s, 67+4*s, 64*s))
    def cv(j):
        a('''
        v_cvt_pk_bf16_f32 v%d, v%d, v%d
        v_cvt_pk_bf16_f32 v%d, v%d, v%d
        v_cvt_pk_bf16_f32 v%d, v%d, v%d
        ''' % (144+2*j, 128+4*j, 129+4*j, 145+2*j, 130+4*j, 131+4*j, 16+j, 129+4*j, 130+4*j))
    def kw(j):
        o = 512*(3-j)
        a('''
        ds_write_b64 v25, v[%d:%d] offset:%d
        ds_write_b32 v25, v%d offset:%d
        ds_write_b16 v25, v%d offset:%d
        ds_write_b16_d16_hi v25, v%d offset:%d
        ''' % (144+2*j, 145+2*j, o, 16+j, o+4160, 144+2*j, o+4158, 145+2*j, o+4164))
    for i in range(4):
        cur = 64 + 32*(i % 2); nxt = 64 + 32*((i+1) % 2)
        for s in range(8):
            if i == 0:
                a('s_waitcnt lgkmcnt(%d)' % (14 - 2*s + s))
            elif i < 3:
                a('s_waitcnt lgkmcnt(7)')
            elif s < 3:
                a('s_waitcnt lgkmcnt(%d)' % (7 - s))
            elif s == 3:
                a0('s_cbranch_scc0 K1_poll_x\ns_waitcnt vmcnt(0)')
                poll4(a0, 'K1_poll', 16, 'v58', 's51')
                a('K1_poll_x:\ns_waitcnt lgkmcnt(0)\ns_barrier')
                a.stamp(5)
                vq = k2.loads(a0)
            c = 'v[%d:%d]' % (128+4*i, 131+4*i)
            a('v_mfma_f32_16x16x32_bf16 %s, v[%d:%d], v[%d:%d], %s' % (c, cur+4*s, cur+4*s+3, 32+4*s, 35+4*s, c if s else '0'))
            if i < 3:
                a('ds_read_b128 v[%d:%d], v%d offset:%d' % (nxt+4*s, nxt+4*s+3, 21+i, 64*s))
            if i > 0 and s == 2:
                if i == 1: a('v_add_f32 v131, v131, v29')
                cv(i-1)
            if i == 3 and s in (3, 4, 5): kw(s-3)
            if i == 3 and s == 6: k2.pads(a0)
            if (i, s) == FPOLL: a0('s_cbranch_scc0 K1_np2\nbuffer_load_dwordx4 v[16:19], v58, s[4:7], s51 offen sc1\nK1_np2:')
    a('s_nop 7')
    cv(3); kw(3)
    a.stamp(6)
    a = a0
    k2.conv(a, vq)
    Asm.SKIP = not Asm.SKIP
    k34.gen_k3(a)
    return a.text().replace('MODGA', str(MOD_OFF + 4096)).replace('EPOCH', str(EPOCH_OFF)).replace('HLDV', str(HLD)).replace('XPITCH', str(XP)).replace('TBF', '0x10003' if TSH == 7 else '0x20003').replace('TSH', str(TSH)).replace('TLO', str(TLO)).replace('THI', str(THI)).replace('FL2M', str(FL2_OFF + 4096))
```
